```python
import torch

def _softmax(x, axis=-1):
    return torch.softmax(x, dim=axis)
def _gelu(x):
    return torch.nn.functional.gelu(x, approximate="tanh")
def _silu(x):
    return torch.nn.functional.silu(x)
def _sigmoid(x):
    return torch.sigmoid(x)
def _layernorm(x, axis=-1, eps=1e-5):
    m = x.mean(dim=axis, keepdim=True)
    v = x.var(dim=axis, keepdim=True, unbiased=False)
    return (x - m) / torch.sqrt(v + eps)
def _scatter_add(tgt, idx, src, axis=0):
    return tgt.clone().index_add_(axis, idx, src)
def _segment_sum(src, seg, n):
    out = torch.zeros((n,) + src.shape[1:], dtype=src.dtype)
    return out.index_add_(0, seg, src)
def _pad(x, pw):
    flat = tuple(v for pair in reversed(pw) for v in pair)
    return torch.nn.functional.pad(x, flat)

kernel_name = 'sequential_preLN__sliding_local_dilated__dense_activation_silu__prompt'

def setup_inputs():

    _w = (lambda a: (lambda t: t.to(torch.bfloat16) if t.is_floating_point() else t)(torch.as_tensor(a)))
    def _A_setup():
        B, S, D = 1, 2048, 1024
        return {
            "x": _w((lambda *s: torch.randn(*s, dtype=torch.bfloat16) * 0.05)(B, S, D)),
            "wqkv": _w((lambda *s: torch.randn(*s, dtype=torch.bfloat16) * 0.05)(D, 3 * D)),
            "wo": _w((lambda *s: torch.randn(*s, dtype=torch.bfloat16) * 0.05)(D, D)),
        }
    _A_in = _A_setup()

    def _B_setup():
        B, S, D, F = 1, 2048, 1024, 3584
        return {
            "x": _w((lambda *s: torch.randn(*s, dtype=torch.bfloat16) * 0.05)(B, S, D)),
            "w1": _w((lambda *s: torch.randn(*s, dtype=torch.bfloat16) * 3.2)(D, F) * (D ** -0.5)),
            "w2": _w((lambda *s: torch.randn(*s, dtype=torch.bfloat16) * 0.4)(F, D) * (F ** -0.5)),
        }
    _B_in = _B_setup()

    return {
        "A_x": _A_in["x"],
        "A_wqkv": _A_in["wqkv"],
        "A_wo": _A_in["wo"],
        "B_x": _B_in["x"],
        "B_w1": _B_in["w1"],
        "B_w2": _B_in["w2"],
    }

def reference(A_x, A_wqkv, A_wo, B_x, B_w1, B_w2):
    def _A_ref(x, wqkv, wo):
        B, S, D = x.shape
        H = 32; Dh = D // H
        W, dil = 8, 2
        qkv = (lambda x, *d: x.permute(*d))((x @ wqkv).reshape(B, S, 3, H, Dh), 2, 0, 3, 1, 4)
        q, k, v = qkv[0], qkv[1], qkv[2]
        scale = Dh ** -0.5
        pos = torch.arange(S)
        off = torch.arange(W) * dil
        idx = pos[:, None] - off[None, :]
        mask = idx >= 0
        idx_c = torch.where(mask, idx, 0).reshape(-1)
        kg = k[:, :, idx_c, :].reshape(B, H, S, W, Dh)
        vg = v[:, :, idx_c, :].reshape(B, H, S, W, Dh)
        logits = torch.einsum("bhsd,bhswd->bhsw", q, kg) * scale
        logits = torch.where(mask[None, None, :, :], logits, -1e9)
        attn = _softmax(logits, axis=-1)
        o = torch.einsum("bhsw,bhswd->bhsd", attn, vg)
        return (lambda x, *d: x.permute(*d))(o, 0, 2, 1, 3).reshape(B, S, D) @ wo

    def _B_ref(x, w1, w2):
        h = torch.einsum("bsd,df->bsf", x, w1)
        h = _silu(h)
        out = torch.einsum("bsf,fd->bsd", h, w2)
        return out

    x = A_x
    h = x + _A_ref(_layernorm(x, axis=-1), A_wqkv, A_wo)
    h2 = h + _B_ref(_layernorm(h, axis=-1), B_w1, B_w2)
    return h2
```

```python
class Asm:
    def __init__(self):
        self.lines = []
        self.lbl = 0
    def __call__(self, s):
        for l in s.split("\n"):
            self.lines.append("    " + l.strip() if l.strip() and not l.strip().endswith(":") else l.strip())
    def label(self, name):
        self.lines.append(name + ":")
    def newlabel(self, base):
        self.lbl += 1
        return "%s_%d" % (base, self.lbl)
    def comment(self, s):
        self.lines.append("    ; " + s)
    def text(self):
        return "\n".join(self.lines) + "\n"

def vr(b, n=1):
    return "v%d" % b if n == 1 else "v[%d:%d]" % (b, b + n - 1)
def ar(b, n=1):
    return "a%d" % b if n == 1 else "a[%d:%d]" % (b, b + n - 1)
def sr(b, n=1):
    return "s%d" % b if n == 1 else "s[%d:%d]" % (b, b + n - 1)

def interleave(main, fill, start=0, every=1):
    out = []
    fi = 0
    for i, m in enumerate(main):
        out.append(m)
        if i >= start and (i - start) % every == 0 and fi < len(fill):
            out.append(fill[fi]); fi += 1
    out.extend(fill[fi:])
    return out

def kernel_header(name):
    return (".globl %s\n.p2align 8\n.type %s,@function\n%s:\n" % (name, name, name))

def kernel_desc(name, vgpr, accum, sgpr=102):
    return (".p2align 6\n.amdhsa_kernel %s\n  .amdhsa_next_free_vgpr %d\n  .amdhsa_next_free_sgpr %d\n"
            "  .amdhsa_accum_offset %d\n  .amdhsa_group_segment_fixed_size 0\n  .amdhsa_kernarg_size 72\n"
            "  .amdhsa_user_sgpr_count 2\n  .amdhsa_user_sgpr_kernarg_segment_ptr 1\n"
            "  .amdhsa_system_sgpr_workgroup_id_x 1\n  .amdhsa_float_denorm_mode_32 3\n.end_amdhsa_kernel\n"
            % (name, vgpr, sgpr, accum))
```

```python
from gemm import *

def cfg_k3(**kw):
    c = Cfg(name="k3_kernel", K=1024, lda=2048, ldb=7168,
            A=(KA["ws"], WS_H, 4 << 20), W=(KA["w1"], 0, 1024 * 7168), O=(KA["ws"], WS_H1, 2048 * 7168),
            segw=[64, 64, 64, 32], col0=[0, 64, 128, 192], cstep=224,
            wc_bits=1, rowstep=64, mblk=[0, 16, 32, 48],
            wregs=[(0, 1, 0, 0), (0, 1, 1, 0), (0, 1, 2, 0), (0, 1, 3, 0), (2, 0, 0, 2), (2, 0, 1, 2), (3, 0, 0, 1)],
            nblk=[(0, 0, 128), (1, 0, 128), (2, 0, 128), (3, 0, 128), (4, 0, 128), (5, 0, 128), (6, 0, 64)],
            xa=8, xb=4, NS=3, bps=2, ldo=7168)
    c.mf = [(mb, nb, False) for nb in range(7) for mb in range(4)]
    c.__dict__.update(kw)
    return c

def acc_of(c, mb, nb):
    for i, (m, n, s) in enumerate(c.mf):
        if m == mb and n == nb: return V_ACC + 4 * i
    raise KeyError

def epi_plain_k3(a, c):
    a("v_and_b32 v2, 15, v1")
    a("v_lshrrev_b32 v3, 4, v1")
    a("s_lshl_b32 s%d, s%d, 7" % (S_T0, S_MT))
    a("s_lshl_b32 s%d, s%d, 6" % (S_T1, S_WR))
    a("s_add_u32 s%d, s%d, s%d" % (S_T0, S_T0, S_T1))
    a("s_mul_i32 s%d, s%d, %d" % (S_T0, S_T0, c.ldo))
    a("s_mul_i32 s%d, s%d, 448" % (S_T1, S_NT))
    a("s_add_u32 s%d, s%d, s%d" % (S_T0, S_T0, S_T1))
    a("s_mov_b32 s%d, %d" % (S_T1, c.ldo))
    a("v_mul_lo_u32 v4, v2, s%d" % S_T1)
    a("v_add_u32 v4, s%d, v4" % S_T0)
    a("v_lshl_add_u32 v5, v3, 4, v4")
    a("s_lshl_b32 s%d, s%d, 7" % (S_T2, S_WC))
    a("v_add_u32 v6, s%d, v5" % S_T2)
    a("s_lshl_b32 s%d, s%d, 6" % (S_T2, S_WC))
    a("s_add_u32 s%d, s%d, 256" % (S_T2, S_T2))
    a("v_add_u32 v7, s%d, v5" % S_T2)
    a("v_and_b32 v8, 1, v3")
    a("v_lshl_add_u32 v8, v8, 4, v4")
    a("v_lshrrev_b32 v9, 1, v3")
    a("s_mov_b32 s%d, %d" % (S_T2, 16 * c.ldo))
    a("v_mul_lo_u32 v9, v9, s%d" % S_T2)
    a("v_add_u32 v8, v8, v9")
    a("s_lshl_b32 s%d, s%d, 5" % (S_T2, S_WC))
    a("s_add_u32 s%d, s%d, 384" % (S_T2, S_T2))
    a("v_add_u32 v8, s%d, v8" % S_T2)
    jobs = []
    for mb in range(4):
        jobs.append((acc_of(c, mb, 0), acc_of(c, mb, 1), 6, mb, 0))
        jobs.append((acc_of(c, mb, 2), acc_of(c, mb, 3), 6, mb, 64))
        jobs.append((acc_of(c, mb, 4), acc_of(c, mb, 5), 7, mb, 0))
    jobs.append((acc_of(c, 0, 6), acc_of(c, 1, 6), 8, 0, 0))
    jobs.append((acc_of(c, 2, 6), acc_of(c, 3, 6), 8, 2, 0))
    for mb in range(4):
        a("s_mov_b32 s%d, %d" % (64 + mb, mb * 16 * c.ldo))
    T = [128, 132, 136, 140]
    for i, (x, y, v, mb, imm) in enumerate(jobs):
        t = T[i % 4]
        pack_pair(a, x, y, t)
        a("s_nop 1")
        swap_pair(a, t)
        a("buffer_store_dwordx4 v[%d:%d], v%d, s[%d:%d], s%d offen offset:%d" % (t, t + 3, v, S_SRDO, S_SRDO + 3, 64 + mb, imm))

def build(kernels, path):
    hdr = ""
    for c, text, vg, acc, lds, blk, grid in kernels:
        hdr += "; @launch kernel=%s grid=(%d,1,1) block=(%d,1,1) lds=%d\n" % (c.name, grid, blk, lds)
    s = hdr + '.amdgcn_target "amdgcn-amd-amdhsa--gfx950"\n.text\n'
    seen = set()
    for c, text, vg, acc, lds, blk, grid in kernels:
        if c.name in seen: continue
        seen.add(c.name)
        s += text
    s += '.section .rodata,"a"\n'
    seen = set()
    for c, text, vg, acc, lds, blk, grid in kernels:
        if c.name in seen: continue
        seen.add(c.name)
        s += kernel_desc(c.name, vg, acc)
    open(path, "w").write(s)

def cfg_k4(**kw):
    c = Cfg(name="k4_kernel", K=3584, lda=7168, ldb=2048,
            A=(KA["ws"], WS_H1, 2048 * 7168), W=(KA["w2"], 0, 3584 * 2048), O=(KA["out"], 0, 4 << 20),
            segw=[64], col0=[0], cstep=64,
            wc_bits=0, rowstep=32, mblk=[0, 16],
            wregs=[(0, 0, 0, 0), (0, 0, 1, 0), (0, 0, 2, 0), (0, 0, 3, 0)],
            nblk=[(0, 0, 128), (1, 0, 128), (2, 0, 128), (3, 0, 128)],
            xa=4, xb=8, NS=6, bps=1, ldo=2048)
    c.mf = [(mb, nb, False) for nb in range(4) for mb in range(2)]
    c.__dict__.update(kw)
    return c

def epi_none(a, c):
    pass

def epi_plain_k4(a, c):
    a("v_and_b32 v2, 15, v1")
    a("v_lshrrev_b32 v3, 4, v1")
    a("s_lshl_b32 s%d, s%d, 7" % (S_T0, S_MT))
    a("s_lshl_b32 s%d, s%d, 5" % (S_T1, S_WR))
    a("s_add_u32 s%d, s%d, s%d" % (S_T0, S_T0, S_T1))
    a("s_mul_i32 s%d, s%d, %d" % (S_T0, S_T0, c.ldo))
    a("s_lshl_b32 s%d, s%d, 7" % (S_T1, S_NT))
    a("s_add_u32 s%d, s%d, s%d" % (S_T0, S_T0, S_T1))
    a("s_mov_b32 s%d, %d" % (S_T1, c.ldo))
    a("v_mul_lo_u32 v4, v2, s%d" % S_T1)
    a("v_add_u32 v4, s%d, v4" % S_T0)
    a("v_lshl_add_u32 v5, v3, 4, v4")
    a("s_mov_b32 s64, 0"); a("s_mov_b32 s65, %d" % (16 * c.ldo))
    T = [128, 132, 136, 140]
    i = 0
    for mb in range(2):
        for p in range(2):
            t = T[i]; i += 1
            pack_pair(a, acc_of(c, mb, 2 * p), acc_of(c, mb, 2 * p + 1), t)
            a("s_nop 1")
            swap_pair(a, t)
            a("buffer_store_dwordx4 v[%d:%d], v5, s[%d:%d], s%d offen offset:%d" % (t, t + 3, S_SRDO, S_SRDO + 3, 64 + mb, 64 * p))
```

```python
from asmlib import *

WS_XN = 0
WS_O = 4 << 20
WS_H = 8 << 20
WS_H1 = 12 << 20
WS_STATS = 28 << 20
WS_CS1 = 29 << 20
WS_STAMP = 0xF000000
KA = dict(x=0, wqkv=8, wo=16, w1=32, w2=40, out=48, dbg=56, ws=64)

S_SRDA = 4; S_SRDW = 8; S_SRDO = 12; S_SRDX = 16; S_SRDY = 20
S_WAVE = 24; S_MT = 25; S_NT = 26; S_WR = 27; S_WC = 28
S_SOFA = 29; S_SOFW = 30; S_CNT = 31; S_SLOT = 32; S_DELTA = 33
S_T0 = 34; S_T1 = 35; S_T2 = 36; S_T3 = 37
S_P0 = 40
S_WSP = 48
S_STAMP = 50
S_SRDS = 56
S_EXEC = 60

class Cfg:
    def __init__(self, **kw):
        self.halo = 0; self.NS = 3; self.bps = 2; self.K = 1024
        self.nodma = self.nomfma = self.noread = False
        self.stamps = False; self.kidx = 0
        self.xa = 8; self.xb = 4
        self.dma_flags_a = ""; self.dma_flags_w = ""
        self.prio = 0
        self.read_start = 0
        self.__dict__.update(kw)

def srd(a, d, karg, off, size):
    if off:
        a("s_add_u32 s%d, s%d, 0x%x" % (d, karg, off))
        a("s_addc_u32 s%d, s%d, 0" % (d + 1, karg + 1))
    else:
        a("s_mov_b32 s%d, s%d" % (d, karg))
        a("s_mov_b32 s%d, s%d" % (d + 1, karg + 1))
    a("s_mov_b32 s%d, 0x%x" % (d + 2, size))
    a("s_mov_b32 s%d, 0x20000" % (d + 3))

def stamp(a, c, idx, vtmp=(2, 3, 4, 5, 6)):
    if not c.stamps: return
    a("s_memrealtime s[%d:%d]" % (S_STAMP, S_STAMP + 1))
    a("s_memtime s[%d:%d]" % (S_STAMP + 2, S_STAMP + 3))
    a("s_waitcnt lgkmcnt(0)")
    t = vtmp
    a("v_mov_b32 v%d, s%d" % (t[0], S_STAMP)); a("v_mov_b32 v%d, s%d" % (t[1], S_STAMP + 1))
    a("v_mov_b32 v%d, s%d" % (t[2], S_STAMP + 2)); a("v_mov_b32 v%d, s%d" % (t[3], S_STAMP + 3))
    a("s_lshl_b32 s%d, s2, 7" % S_STAMP)
    a("s_add_u32 s%d, s%d, %d" % (S_STAMP, S_STAMP, c.kidx * 512 * 128 + idx * 8))
    a("v_mov_b32 v%d, s%d" % (t[4], S_STAMP))
    a("s_mov_b64 s[%d:%d], exec" % (S_EXEC, S_EXEC + 1))
    a("s_mov_b64 exec, 1")
    a("buffer_store_dwordx2 v[%d:%d], v%d, s[%d:%d], 0 offen" % (t[0], t[1], t[4], S_SRDS, S_SRDS + 3))
    a("buffer_store_dwordx2 v[%d:%d], v%d, s[%d:%d], 0 offen offset:64" % (t[2], t[3], t[4], S_SRDS, S_SRDS + 3))
    a("s_mov_b64 exec, s[%d:%d]" % (S_EXEC, S_EXEC + 1))

def stamp_w0(a, c, idx, vtmp=(2, 3, 4, 5, 6)):
    if not c.stamps: return
    L = a.newlabel("Lst")
    a("s_cmp_lg_u32 s%d, 0" % S_WAVE)
    a("s_cbranch_scc1 %s" % L)
    stamp(a, c, idx, vtmp)
    a.label(L)

def tile_map(a, c):
    xa, xb = c.xa, c.xb
    import math
    la, lb = int(math.log2(xa)), int(math.log2(xb))
    gcols = 16 // xb
    lg = int(math.log2(gcols))
    a("s_and_b32 s%d, s2, 7" % S_T0)
    a("s_lshr_b32 s%d, s2, 3" % S_T1)
    a("s_lshr_b32 s%d, s%d, %d" % (S_T2, S_T0, lg))
    a("s_and_b32 s%d, s%d, %d" % (S_T3, S_T0, gcols - 1))
    a("s_lshl_b32 s%d, s%d, %d" % (S_MT, S_T2, la))
    a("s_lshl_b32 s%d, s%d, %d" % (S_NT, S_T3, lb))
    a("s_lshr_b32 s%d, s%d, %d" % (S_T2, S_T1, lb))
    a("s_and_b32 s%d, s%d, %d" % (S_T3, S_T1, xb - 1))
    a("s_add_u32 s%d, s%d, s%d" % (S_MT, S_MT, S_T2))
    a("s_add_u32 s%d, s%d, s%d" % (S_NT, S_NT, S_T3))

def abytes(c): return (128 + c.halo) * 128
def wbytes(c): return sum(64 * w * 2 for w in c.segw)
def slotbytes(c): return abytes(c) + wbytes(c)
def nst(c): return c.K // 64

def loader(a, c):
    NS = c.NS; NST = nst(c); SL = slotbytes(c)
    W = S_T0
    a("s_sub_u32 s%d, s%d, 4" % (W, S_WAVE))
    a("v_and_b32 v1, 63, v0")
    a("v_lshrrev_b32 v2, 3, v1")
    a("v_and_b32 v3, 7, v1")
    dmas = []
    vn = 8
    a("s_lshl_b32 s%d, s%d, 5" % (S_T1, W))
    a("s_add_u32 s%d, s%d, %d" % (S_T1, S_T1, c.halo))
    a("s_lshl_b32 s%d, s%d, 7" % (S_T2, S_MT))
    a("s_sub_u32 s%d, s%d, %d" % (S_T2, S_T2, c.halo))
    a("s_mov_b32 s%d, %d" % (S_T3, c.lda))
    for j in range(4):
        a("v_add_u32 v4, s%d, v2" % S_T1)
        if j: a("v_add_u32 v4, %d, v4" % (8 * j))
        a("v_bfe_u32 v5, v4, 1, 3")
        a("v_xor_b32 v5, v5, v3")
        a("v_add_u32 v4, s%d, v4" % S_T2)
        a("v_mul_lo_u32 v4, v4, s%d" % S_T3)
        a("v_lshl_add_u32 v%d, v5, 4, v4" % vn)
        if j: a("v_subrev_u32 v%d, %d, v%d" % (vn, 1024 * j, vn))
        dmas.append(dict(v=vn, srd=S_SRDA, soff=S_SOFA, m0c=c.halo * 128, m0w=4096, imm=1024 * j, half=False, fl=c.dma_flags_a))
        vn += 1
    if c.halo:
        a("s_lshl_b32 s%d, s%d, 2" % (S_T1, W))
        a("v_add_u32 v4, s%d, v2" % S_T1)
        a("v_bfe_u32 v5, v4, 1, 3")
        a("v_xor_b32 v5, v5, v3")
        a("v_add_u32 v4, s%d, v4" % S_T2)
        a("v_max_i32 v4, 0, v4")
        a("v_mul_lo_u32 v4, v4, s%d" % S_T3)
        a("v_lshl_add_u32 v%d, v5, 4, v4" % vn)
        dmas.append(dict(v=vn, srd=S_SRDA, soff=S_SOFA, m0c=0, m0w=512, imm=0, half=True, fl=c.dma_flags_a))
        vn += 1
    a("s_lshl_b32 s%d, s%d, 4" % (S_T1, W))
    a("s_mul_i32 s%d, s%d, %d" % (S_T2, S_NT, c.cstep * 2))
    a("s_mov_b32 s%d, %d" % (S_T3, c.ldb))
    base = {}
    fulls = [s for s, w in enumerate(c.segw) if w == 64]
    for j in range(2):
        a("v_add_u32 v4, s%d, v2" % S_T1)
        if j: a("v_add_u32 v4, 8, v4")
        a("v_bfe_u32 v5, v1, 4, 1")
        a("v_lshlrev_b32 v5, 1, v5")
        if j: a("v_or_b32 v5, 4, v5")
        a("v_xor_b32 v5, v5, v3")
        a("v_mul_lo_u32 v4, v4, s%d" % S_T3)
        a("v_lshl_add_u32 v4, v5, 4, v4")
        a("v_add_u32 v%d, s%d, v4" % (6 + j, S_T2))
    segoff = 0
    for s, w in enumerate(c.segw):
        if w == 64:
            for j in range(2):
                off = c.col0[s] * 2 - 1024 * j
                if off >= 0: a("v_add_u32 v%d, %d, v%d" % (vn, off, 6 + j))
                else: a("v_subrev_u32 v%d, %d, v%d" % (vn, -off, 6 + j))
                dmas.append(dict(v=vn, srd=S_SRDW, soff=S_SOFW, m0c=abytes(c) + segoff, m0w=2048, imm=1024 * j, half=False, fl=c.dma_flags_w))
                vn += 1
        else:
            a("v_lshrrev_b32 v4, 2, v1")
            a("v_add_u32 v4, s%d, v4" % S_T1)
            a("v_mul_lo_u32 v4, v4, s%d" % S_T3)
            a("v_bfe_u32 v5, v1, 5, 1")
            a("v_lshlrev_b32 v5, 1, v5")
            a("v_and_b32 v%d, 3, v1" % vn)
            a("v_xor_b32 v5, v5, v%d" % vn)
            a("v_lshl_add_u32 v4, v5, 4, v4")
            a("v_add_u32 v4, s%d, v4" % S_T2)
            a("v_add_u32 v%d, %d, v4" % (vn, c.col0[s] * 2))
            dmas.append(dict(v=vn, srd=S_SRDW, soff=S_SOFW, m0c=abytes(c) + segoff, m0w=1024, imm=0, half=False, fl=c.dma_flags_w))
            vn += 1
        segoff += 64 * w * 2
    n = len(dmas)
    c.ndma = n
    groups = []
    for d in dmas:
        key = (d["m0c"], d["m0w"])
        if key not in groups: groups.append(key)
        d["g"] = groups.index(key)
    for g, (m0c, m0w) in enumerate(groups):
        a("s_mul_i32 s%d, s%d, %d" % (64 + g, W, m0w))
        if m0c: a("s_add_u32 s%d, s%d, %d" % (64 + g, 64 + g, m0c))
    a("s_mov_b32 s%d, 0" % S_SOFA); a("s_mov_b32 s%d, 0" % S_SOFW); a("s_mov_b32 s%d, 0" % S_SLOT)

    def issue():
        if c.nodma: return
        cur = None
        for d in dmas:
            if d["g"] != cur:
                cur = d["g"]
                a("s_add_u32 m0, s%d, s%d" % (S_SLOT, 64 + cur))
                if d["half"]: a("s_mov_b32 exec_hi, 0")
                else: a("s_nop 0")
            a("buffer_load_dwordx4 v%d, s[%d:%d], s%d offen offset:%d %s lds" % (d["v"], d["srd"], d["srd"] + 3, d["soff"], d["imm"], d["fl"]))
            if d["half"]: a("s_mov_b32 exec_hi, -1")
        a("s_add_u32 s%d, s%d, 128" % (S_SOFA, S_SOFA))
        a("s_add_u32 s%d, s%d, %d" % (S_SOFW, S_SOFW, 64 * c.ldb))
        a("s_add_u32 s%d, s%d, %d" % (S_SLOT, S_SLOT, SL))
        a("s_cmp_eq_u32 s%d, %d" % (S_SLOT, NS * SL))
        a("s_cselect_b32 s%d, 0, s%d" % (S_SLOT, S_SLOT))

    if hasattr(c, "loader_pre"): c.loader_pre(a, c)
    L = a.newlabel("Lldp")
    a("s_mov_b32 s%d, %d" % (S_CNT, NS))
    a.label(L)
    issue()
    a("s_sub_u32 s%d, s%d, 1" % (S_CNT, S_CNT))
    a("s_cmp_lg_u32 s%d, 0" % S_CNT)
    a("s_cbranch_scc1 %s" % L)
    if hasattr(c, "loader_mid"): c.loader_mid(a, c, n * NS)
    a("s_waitcnt vmcnt(%d)" % (n * (NS - 1)))
    a("s_barrier")
    if NST - NS > 0:
        L = a.newlabel("Lldl")
        a("s_mov_b32 s%d, %d" % (S_CNT, NST - NS))
        a.label(L)
        a("s_waitcnt vmcnt(%d)" % (n * (NS - 2)))
        a("s_barrier")
        issue()
        a("s_sub_u32 s%d, s%d, 1" % (S_CNT, S_CNT))
        a("s_cmp_lg_u32 s%d, 0" % S_CNT)
        a("s_cbranch_scc1 %s" % L)
    for s in range(NST - NS + 1, NST):
        a("s_waitcnt vmcnt(%d)" % (n * (NST - 1 - s)))
        a("s_barrier")
    a("s_barrier")

V_ADDR = 2
V_ACC = 16

def compute_setup(a, c):
    a("v_and_b32 v1, 63, v0")
    a("v_and_b32 v10, 15, v1")
    a("v_lshrrev_b32 v11, 4, v1")
    a("v_bfe_u32 v12, v10, 1, 3")
    a("v_xor_b32 v12, v12, v11")
    a("s_mul_i32 s%d, s%d, %d" % (S_T0, S_WR, c.rowstep * 128))
    a("v_lshlrev_b32 v13, 7, v10")
    a("v_add_u32 v13, s%d, v13" % S_T0)
    a("v_lshl_add_u32 v%d, v12, 4, v13" % (V_ADDR))
    a("v_xor_b32 v%d, 64, v%d" % (V_ADDR + 1, V_ADDR))
    a("v_bfe_u32 v12, v1, 2, 2")
    a("v_lshl_add_u32 v12, v11, 3, v12")
    a("v_bfe_u32 v13, v1, 1, 1")
    a("v_and_b32 v14, 1, v1")
    a("v_lshlrev_b32 v14, 3, v14")
    a("v_bfe_u32 v15, v1, 3, 2")
    a("v_lshlrev_b32 v15, 1, v15")
    a("v_xor_b32 v15, v15, v13")
    a("v_lshlrev_b32 v15, 4, v15")
    a("v_add_u32 v15, v15, v14")
    a("v_lshl_add_u32 v15, v12, 7, v15")
    a("v_bfe_u32 v10, v1, 4, 1")
    a("v_lshlrev_b32 v10, 1, v10")
    a("v_xor_b32 v10, v10, v13")
    a("v_lshlrev_b32 v10, 4, v10")
    a("v_add_u32 v10, v10, v14")
    a("v_lshl_add_u32 v10, v12, 6, v10")
    segoffs = []
    o = abytes(c)
    for w in c.segw:
        segoffs.append(o); o += 64 * w * 2
    c.segoffs = segoffs
    for i, (seg, segwc, pc, pwc) in enumerate(c.wregs):
        src = 15 if c.segw[seg] == 64 else 10
        a("s_mul_i32 s%d, s%d, %d" % (S_T0, S_WC, pwc * 32))
        a("s_add_u32 s%d, s%d, %d" % (S_T0, S_T0, pc * 32))
        a("v_xor_b32 v%d, s%d, v%d" % (V_ADDR + 2 + i, S_T0, src))
        a("s_mul_i32 s%d, s%d, %d" % (S_T0, S_WC, segwc * 8192))
        a("s_add_u32 s%d, s%d, %d" % (S_T0, S_T0, segoffs[seg]))
        a("v_add_u32 v%d, s%d, v%d" % (V_ADDR + 2 + i, S_T0, V_ADDR + 2 + i))
    c.naddr = 2 + len(c.wregs)

def frag_regs(c):
    MB = len(c.mblk); NB = len(c.nblk)
    kpb = 2 // c.bps
    per = (MB + NB) * 4 * kpb
    def fa(s, kk, mb): return s * per + (kk * (MB + NB) + mb) * 4
    def fw(s, kk, nb): return s * per + (kk * (MB + NB) + MB + nb) * 4
    return fa, fw, 2 * per

def reads(c, s, kabs_list):
    fa, fw, _ = frag_regs(c)
    out = []
    for kk, kabs in kabs_list:
        ra = []; rw = []
        for mb, row in enumerate(c.mblk):
            ra.append("ds_read_b128 %s, v%d offset:%d" % (ar(fa(s, kk, mb), 4), V_ADDR + kabs, row * 128))
        for nb, (wreg, immseg, rs) in enumerate(c.nblk):
            for h in range(2):
                rw.append("ds_read_b64_tr_b16 %s, v%d offset:%d" % (ar(fw(s, kk, nb) + 2 * h, 2), V_ADDR + 2 + wreg, immseg + (32 * kabs + 4 * h) * rs))
        out += ra + rw
    if c.noread: return []
    return out

def mfmas(c, s):
    fa, fw, _ = frag_regs(c)
    kpb = 2 // c.bps
    out = []
    for kk in range(kpb):
        for i, (mb, nb, swap) in enumerate(c.mf):
            acc = vr(V_ACC + 4 * i, 4)
            A, B = ar(fw(s, kk, nb), 4), ar(fa(s, kk, mb), 4)
            if swap: A, B = B, A
            out.append("v_mfma_f32_16x16x32_bf16 %s, %s, %s, %s" % (acc, A, B, acc))
    if c.nomfma: return []
    return out

def slot_adv(c):
    SL = slotbytes(c)
    ins = ["s_add_u32 s%d, s%d, %d" % (S_SLOT, S_SLOT, SL),
           "s_cmp_eq_u32 s%d, %d" % (S_SLOT, c.NS * SL),
           "s_cselect_b32 s%d, %d, %d" % (S_DELTA, (-(c.NS - 1) * SL) & 0xffffffff, SL) if False else None]
    return ins

def compute(a, c):
    NST = nst(c); SL = slotbytes(c); NS = c.NS
    compute_setup(a, c)
    for i in range(len(c.mf) * 4):
        a("v_mov_b32 v%d, 0" % (V_ACC + i))
    if hasattr(c, "compute_pre"): c.compute_pre(a, c)
    a("s_mov_b32 s%d, 0" % S_SLOT)
    a("s_mov_b32 s%d, %d" % (S_T2, SL))
    a("s_mov_b32 s%d, %d" % (S_T3, (-(NS - 1) * SL) & 0xffffffff))
    if c.prio: a("s_setprio %d" % c.prio)
    def adv_scalar():
        return ["s_add_u32 s%d, s%d, %d" % (S_SLOT, S_SLOT, SL),
                "s_cmp_eq_u32 s%d, %d" % (S_SLOT, NS * SL),
                "s_cselect_b32 s%d, s%d, s%d" % (S_DELTA, S_T3, S_T2),
                "s_cselect_b32 s%d, 0, s%d" % (S_SLOT, S_SLOT)]
    def adv_vec():
        return ["v_add_u32 v%d, s%d, v%d" % (V_ADDR + i, S_DELTA, V_ADDR + i) for i in range(c.naddr)]
    def emit(l):
        for x in l: a(x)
    stamp_w0(a, c, 1, (128, 129, 130, 131, 132))
    a("s_barrier")
    stamp_w0(a, c, 2, (128, 129, 130, 131, 132))
    L = a.newlabel("Lc")
    if c.bps == 2:
        emit(reads(c, 0, [(0, 0)]))
        a("s_mov_b32 s%d, %d" % (S_CNT, NST))
        a(".p2align 3") if False else None
        a.label(L)
        a("s_waitcnt lgkmcnt(0)")
        emit(interleave(mfmas(c, 0), reads(c, 1, [(0, 1)]) + adv_scalar() + adv_vec(), c.read_start))
        a("s_waitcnt lgkmcnt(0)")
        a("s_barrier")
        emit(interleave(mfmas(c, 1), reads(c, 0, [(0, 0)]) + ["s_sub_u32 s%d, s%d, 1" % (S_CNT, S_CNT), "s_cmp_lg_u32 s%d, 0" % S_CNT], c.read_start))
        a("s_cbranch_scc1 %s" % L)
    else:
        assert NST % 2 == 0
        emit(reads(c, 0, [(0, 0), (1, 1)]))
        emit(adv_scalar() + adv_vec())
        a("s_mov_b32 s%d, %d" % (S_CNT, NST // 2))
        a.label(L)
        for s in range(2):
            a("s_waitcnt lgkmcnt(0)")
            a("s_barrier")
            extra = adv_scalar() + adv_vec()
            if s == 1: extra += ["s_sub_u32 s%d, s%d, 1" % (S_CNT, S_CNT), "s_cmp_lg_u32 s%d, 0" % S_CNT]
            emit(interleave(mfmas(c, s), reads(c, 1 - s, [(0, 0), (1, 1)]) + extra, c.read_start))
        a("s_cbranch_scc1 %s" % L)
    a("s_waitcnt lgkmcnt(0)")
    if c.prio: a("s_setprio 0")
    a("s_nop 7")
    stamp_w0(a, c, 3, (128, 129, 130, 131, 132))

def prologue(a, c):
    a("s_cmp_ge_u32 s2, 256")
    a("s_cbranch_scc1 %s_end" % c.name)
    a("s_load_dwordx2 s[40:41], s[0:1], %d" % c.A[0])
    a("s_load_dwordx2 s[42:43], s[0:1], %d" % c.W[0])
    a("s_load_dwordx2 s[44:45], s[0:1], %d" % c.O[0])
    a("s_load_dwordx2 s[46:47], s[0:1], %d" % KA["x"])
    a("s_load_dwordx2 s[48:49], s[0:1], %d" % KA["ws"])
    a("v_lshrrev_b32 v1, 6, v0")
    tile_map(a, c)
    a("v_readfirstlane_b32 s%d, v1" % S_WAVE)
    a("s_waitcnt lgkmcnt(0)")
    srd(a, S_SRDA, 40, c.A[1], c.A[2])
    srd(a, S_SRDW, 42, c.W[1], c.W[2])
    srd(a, S_SRDO, 44, c.O[1], c.O[2])
    if c.stamps:
        srd(a, S_SRDS, 48, WS_STAMP, 1 << 20)
    if hasattr(c, "extra_srd"): c.extra_srd(a, c)
    stamp_w0(a, c, 0)

def gemm_kernel(c):
    a = Asm()
    a.lbl = c.kidx * 1000
    a.lines.append(kernel_header(c.name).rstrip())
    prologue(a, c)
    a("s_cmp_ge_u32 s%d, 4" % S_WAVE)
    a("s_cbranch_scc1 %s_loader" % c.name)
    a("s_lshr_b32 s%d, s%d, %d" % (S_WR, S_WAVE, c.wc_bits))
    a("s_and_b32 s%d, s%d, %d" % (S_WC, S_WAVE, (1 << c.wc_bits) - 1))
    compute(a, c)
    c.epilogue(a, c)
    a("s_waitcnt vmcnt(0)") if c.stamps else None
    stamp_w0(a, c, 4)
    a("s_endpgm")
    a.label("%s_loader" % c.name)
    loader(a, c)
    if hasattr(c, "loader_post"): c.loader_post(a, c)
    a.label("%s_end" % c.name)
    a("s_endpgm")
    return a.text()

def pack_pair(a, x, y, t):
    a("v_cvt_pk_bf16_f32 v%d, v%d, v%d" % (t, x, x + 1))
    a("v_cvt_pk_bf16_f32 v%d, v%d, v%d" % (t + 1, x + 2, x + 3))
    a("v_cvt_pk_bf16_f32 v%d, v%d, v%d" % (t + 2, y, y + 1))
    a("v_cvt_pk_bf16_f32 v%d, v%d, v%d" % (t + 3, y + 2, y + 3))
def swap_pair(a, t):
    a("v_permlane32_swap_b32 v%d, v%d" % (t, t + 2))
    a("v_permlane32_swap_b32 v%d, v%d" % (t + 1, t + 3))
    a("s_nop 0")
    a("v_permlane16_swap_b32 v%d, v%d" % (t, t + 2))
    a("v_permlane16_swap_b32 v%d, v%d" % (t + 1, t + 3))
```

```python
from cfgs import *
import struct
def f2u(x): return struct.unpack("<I", struct.pack("<f", x))[0]
LOG2E = 1.4426950408889634

def k0_kernel(c):
    a = Asm(); a.lbl = 9000
    n = c.name
    a.lines.append(kernel_header(n).rstrip())
    a("s_cmp_ge_u32 s2, 256"); a("s_cbranch_scc1 %s_end" % n)
    a("s_load_dwordx2 s[40:41], s[0:1], %d" % KA["x"])
    a("s_load_dwordx2 s[42:43], s[0:1], %d" % KA["w1"])
    a("s_load_dwordx2 s[48:49], s[0:1], %d" % KA["ws"])
    a("v_lshrrev_b32 v1, 6, v0")
    a("v_and_b32 v2, 63, v0")
    a("v_readfirstlane_b32 s%d, v1" % S_WAVE)
    a("s_waitcnt lgkmcnt(0)")
    srd(a, 4, 40, 0, 4 << 20)
    srd(a, 8, 42, 0, 1024 * 7168)
    srd(a, 12, 48, WS_XN, 4 << 20)
    srd(a, 16, 48, WS_CS1, 4 * 3584 * 4)
    if c.stamps: srd(a, S_SRDS, 48, WS_STAMP, 1 << 20)
    stamp_w0(a, c, 0, (100, 101, 102, 103, 104))
    a("s_lshl_b32 s34, s2, 2"); a("s_add_u32 s34, s34, s%d" % S_WAVE); a("s_lshl_b32 s34, s34, 12")
    a("v_lshlrev_b32 v3, 4, v2")
    for i in range(4):
        a("buffer_load_dwordx4 v[%d:%d], v3, s[4:7], s34 offen offset:%d %s" % (8 + 4 * i, 11 + 4 * i, 1024 * i, c.xfl))
    a("s_cmp_ge_u32 s2, 224"); a("s_cbranch_scc1 %s_nocs1" % n)
    a("s_mul_hi_u32 s35, s2, %d" % ((1 << 32) // 56 + 1))
    a("s_mul_i32 s36, s35, 56"); a("s_sub_u32 s36, s2, s36")
    a("s_mul_i32 s37, s35, %d" % (256 * 7168)); a("s_lshl_b32 s38, s36, 7"); a("s_add_u32 s37, s37, s38")
    a("v_lshrrev_b32 v4, 3, v0"); a("v_mul_u32_u24 v4, 7168, v4"); a("v_and_b32 v5, 7, v0"); a("v_lshl_add_u32 v4, v5, 4, v4")
    for p in range(8):
        a("buffer_load_dwordx4 v[%d:%d], v4, s[8:11], s37 offen %s" % (64 + 4 * p, 67 + 4 * p, c.wfl))
        if p < 7: a("s_add_u32 s37, s37, %d" % (32 * 7168))
    a.label("%s_nocs1" % n)
    a("s_cmp_ge_u32 s2, 224"); a("s_cbranch_scc1 %s_w0" % n)
    a("s_waitcnt vmcnt(8)"); a("s_branch %s_w1" % n)
    a.label("%s_w0" % n); a("s_waitcnt vmcnt(0)"); a.label("%s_w1" % n)
    for r in range(2):
        for d in range(8):
            a("v_lshlrev_b32 v%d, 16, v%d" % (24 + 16 * r + 2 * d, 8 + 8 * r + d))
            a("v_and_b32 v%d, 0xffff0000, v%d" % (25 + 16 * r + 2 * d, 8 + 8 * r + d))
    def wave_sum2(x, y, t):
        for sh in ("row_ror:1", "row_ror:2", "row_ror:4", "row_ror:8"):
            a("s_nop 1")
            a("v_add_f32_dpp v%d, v%d, v%d %s row_mask:0xf bank_mask:0xf" % (x, x, x, sh))
            a("v_add_f32_dpp v%d, v%d, v%d %s row_mask:0xf bank_mask:0xf" % (y, y, y, sh))
        for sw in ("v_permlane16_swap_b32", "v_permlane32_swap_b32"):
            a("v_mov_b32 v%d, v%d" % (t, x)); a("v_mov_b32 v%d, v%d" % (t + 1, y)); a("s_nop 0")
            a("%s v%d, v%d" % (sw, x, t)); a("%s v%d, v%d" % (sw, y, t + 1)); a("s_nop 0")
            a("v_add_f32 v%d, v%d, v%d" % (x, x, t)); a("v_add_f32 v%d, v%d, v%d" % (y, y, t + 1))
    for r in range(2):
        a("v_add_f32 v%d, v%d, v%d" % (56 + r, 24 + 16 * r, 25 + 16 * r))
        for e in range(2, 16): a("v_add_f32 v%d, v%d, v%d" % (56 + r, 56 + r, 24 + 16 * r + e))
    wave_sum2(56, 57, 60)
    a("s_mov_b32 s35, 0x%x" % f2u(1.0 / 1024))
    for r in range(2):
        a("v_mul_f32 v%d, s35, v%d" % (56 + r, 56 + r))
    for r in range(2):
        a("v_sub_f32 v60, v%d, v%d" % (24 + 16 * r, 56 + r)); a("v_mul_f32 v%d, v60, v60" % (58 + r))
        for e in range(1, 16):
            a("v_sub_f32 v60, v%d, v%d" % (24 + 16 * r + e, 56 + r)); a("v_fmac_f32 v%d, v60, v60" % (58 + r))
    wave_sum2(58, 59, 60)
    a("s_mov_b32 s36, 0x%x" % f2u(1e-5))
    for r in range(2):
        a("v_mul_f32 v%d, s35, v%d" % (58 + r, 58 + r))
    a("v_cvt_pk_bf16_f32 v60, v56, v57"); a("v_cvt_pk_bf16_f32 v61, v58, v59")
    a("v_lshlrev_b32 v56, 16, v60"); a("v_and_b32 v57, 0xffff0000, v60")
    a("v_lshlrev_b32 v58, 16, v61"); a("v_and_b32 v59, 0xffff0000, v61")
    a("v_add_f32 v58, s36, v58"); a("v_add_f32 v59, s36, v59")
    a("v_cvt_pk_bf16_f32 v61, v58, v59")
    a("v_lshlrev_b32 v58, 16, v61"); a("v_and_b32 v59, 0xffff0000, v61")
    a("v_sqrt_f32 v58, v58"); a("v_sqrt_f32 v59, v59"); a("s_nop 0")
    a("v_cvt_pk_bf16_f32 v61, v58, v59")
    a("v_lshlrev_b32 v58, 16, v61"); a("v_and_b32 v59, 0xffff0000, v61")
    a("v_rcp_f32 v58, v58"); a("v_rcp_f32 v59, v59"); a("s_nop 0")
    for r in range(2):
        for d in range(8):
            x0, x1 = 24 + 16 * r + 2 * d, 25 + 16 * r + 2 * d
            a("v_sub_f32 v%d, v%d, v%d" % (x0, x0, 56 + r)); a("v_sub_f32 v%d, v%d, v%d" % (x1, x1, 56 + r))
            a("v_cvt_pk_bf16_f32 v60, v%d, v%d" % (x0, x1))
            a("v_lshlrev_b32 v%d, 16, v60" % x0); a("v_and_b32 v%d, 0xffff0000, v60" % x1)
            a("v_mul_f32 v%d, v%d, v%d" % (x0, x0, 58 + r)); a("v_mul_f32 v%d, v%d, v%d" % (x1, x1, 58 + r))
            a("v_cvt_pk_bf16_f32 v%d, v%d, v%d" % (8 + 8 * r + d, x0, x1))
    for i in range(4):
        a("buffer_store_dwordx4 v[%d:%d], v3, s[12:15], s34 offen offset:%d" % (8 + 4 * i, 11 + 4 * i, 1024 * i))
    a("s_cmp_ge_u32 s2, 224"); a("s_cbranch_scc1 %s_fin" % n)
    a("s_waitcnt vmcnt(4)")
    for d in range(4):
        a("v_lshlrev_b32 v%d, 16, v%d" % (24 + 2 * d, 64 + d)); a("v_and_b32 v%d, 0xffff0000, v%d" % (25 + 2 * d, 64 + d))
    for p in range(1, 8):
        for d in range(4):
            a("v_lshlrev_b32 v32, 16, v%d" % (64 + 4 * p + d)); a("v_and_b32 v33, 0xffff0000, v%d" % (64 + 4 * p + d))
            a("v_add_f32 v%d, v%d, v32" % (24 + 2 * d, 24 + 2 * d)); a("v_add_f32 v%d, v%d, v33" % (25 + 2 * d, 25 + 2 * d))
    a("v_lshlrev_b32 v4, 5, v0")
    a("ds_write_b128 v4, v[24:27]"); a("ds_write_b128 v4, v[28:31] offset:16")
    a("s_waitcnt lgkmcnt(0)"); a("s_barrier")
    a("s_cmp_lg_u32 s%d, 0" % S_WAVE); a("s_cbranch_scc1 %s_fin" % n)
    a("v_lshlrev_b32 v4, 2, v2")
    for j in range(32): a("ds_read_b32 v%d, v4 offset:%d" % (24 + j, 256 * j))
    a("s_waitcnt lgkmcnt(0)")
    for j in range(1, 32): a("v_add_f32 v24, v24, v%d" % (24 + j))
    a("s_mul_hi_u32 s35, s2, %d" % ((1 << 32) // 56 + 1))
    a("s_mul_i32 s36, s35, 56"); a("s_sub_u32 s36, s2, s36")
    a("s_mul_i32 s35, s35, %d" % (3584 * 4)); a("s_lshl_b32 s36, s36, 8"); a("s_add_u32 s35, s35, s36")
    a("buffer_store_dword v24, v4, s[16:19], s35 offen")
    a.label("%s_fin" % n)
    if c.stamps:
        a("s_waitcnt vmcnt(0)")
        for i in range(1, 5): stamp_w0(a, c, i, (100, 101, 102, 103, 104))
    a.label("%s_end" % n)
    a("s_endpgm")
    return a.text()

def cfg_k1(**kw):
    c = Cfg(name="k1_kernel", K=1024, lda=2048, ldb=6144, halo=16,
            A=(KA["ws"], WS_XN, 4 << 20), W=(KA["wqkv"], 0, 1024 * 6144), O=(KA["ws"], WS_O, 4 << 20),
            segw=[64, 64, 64], col0=[0, 1024, 2048], cstep=64,
            wc_bits=1, rowstep=64, mblk=[0, 16, 32, 48, 64],
            wregs=[(0, 0, 0, 2), (0, 0, 1, 2)],
            nblk=[(0, 0, 128), (1, 0, 128), (0, 8192, 128), (1, 8192, 128), (0, 16384, 128), (1, 16384, 128)],
            xa=8, xb=4, NS=3, bps=2, ldo=2048)
    c.mf = ([(mb, nb, False) for nb in (0, 1) for mb in range(1, 5)] +
            [(mb, nb, False) for nb in (2, 3) for mb in range(5)] +
            [(mb, nb, True) for nb in (4, 5) for mb in range(5)])
    c.epilogue = epi_k1
    c.__dict__.update(kw)
    return c

def epi_k1(a, c):
    QP, KP, VP = 128, 144, 48
    for b in range(1, 5):
        for h in range(2):
            x = acc_of(c, b, h)
            a("v_cvt_pk_bf16_f32 v%d, v%d, v%d" % (QP + 4 * (b - 1) + 2 * h, x, x + 1))
            a("v_cvt_pk_bf16_f32 v%d, v%d, v%d" % (QP + 4 * (b - 1) + 2 * h + 1, x + 2, x + 3))
    for b in range(5):
        for h in range(2):
            x = acc_of(c, b, 2 + h)
            a("v_cvt_pk_bf16_f32 v%d, v%d, v%d" % (KP + 4 * b + 2 * h, x, x + 1))
            a("v_cvt_pk_bf16_f32 v%d, v%d, v%d" % (KP + 4 * b + 2 * h + 1, x + 2, x + 3))
    for cc in range(2):
        for b in range(5):
            x = acc_of(c, b, 4 + cc)
            a("v_cvt_pk_bf16_f32 v%d, v%d, v%d" % (VP + 10 * cc + 2 * b, x, x + 1))
            a("v_cvt_pk_bf16_f32 v%d, v%d, v%d" % (VP + 10 * cc + 2 * b + 1, x + 2, x + 3))
    S = 16
    for b in range(1, 5):
        a("v_mfma_f32_16x16x32_bf16 %s, %s, %s, 0" % (vr(S + 8 * (b - 1), 4), vr(KP + 4 * (b - 1), 4), vr(QP + 4 * (b - 1), 4)))
        a("v_mfma_f32_16x16x32_bf16 %s, %s, %s, 0" % (vr(S + 8 * (b - 1) + 4, 4), vr(KP + 4 * b, 4), vr(QP + 4 * (b - 1), 4)))
    a("v_and_b32 v2, 15, v1"); a("v_lshrrev_b32 v3, 4, v1")
    a("v_lshlrev_b32 v4, 2, v3"); a("v_sub_u32 v4, v2, v4")
    a("s_mov_b32 s%d, 0x%x" % (S_T0, f2u(-1e30)))
    a("v_mov_b32 v7, s%d" % S_T0)
    for half in range(2):
        for r in range(4):
            off = (16 if half == 0 else 0) - r
            a("v_add_u32 v5, %d, v4" % off)
            a("v_and_b32 v6, 0xfffffff1, v5")
            a("v_cmp_ne_u32 vcc, 0, v6")
            a("s_nop 1")
            a("v_cndmask_b32 v%d, 0, v7, vcc" % (88 + 4 * half + r))
    a("s_or_b32 s%d, s%d, s%d" % (S_T1, S_MT, S_WR))
    a("s_cmp_eq_u32 s%d, 0" % S_T1)
    a("s_cselect_b32 s%d, s%d, 0" % (S_T1, S_T0))
    for r in range(4): a("v_add_f32 v%d, s%d, v%d" % (96 + r, S_T1, 88 + r))
    a("s_mov_b32 s%d, 0x%x" % (S_T2, f2u(32 ** -0.5 * LOG2E)))
    for b in range(4):
        for j in range(8):
            bias = 96 + j if (b == 0 and j < 4) else 88 + j
            a("v_fma_f32 v%d, v%d, s%d, v%d" % (S + 8 * b + j, S + 8 * b + j, S_T2, bias))
    M, T = 100, 104
    for b in range(4):
        s = S + 8 * b
        a("v_max3_f32 v%d, v%d, v%d, v%d" % (M + b, s, s + 1, s + 2))
        a("v_max3_f32 v%d, v%d, v%d, v%d" % (M + b, M + b, s + 3, s + 4))
        a("v_max3_f32 v%d, v%d, v%d, v%d" % (M + b, M + b, s + 5, s + 6))
        a("v_max_f32 v%d, v%d, v%d" % (M + b, M + b, s + 7))
    def xreduce(op):
        for sw in ("v_permlane16_swap_b32", "v_permlane32_swap_b32"):
            for b in range(4): a("v_mov_b32 v%d, v%d" % (T + b, M + b))
            for b in range(4): a("%s v%d, v%d" % (sw, M + b, T + b))
            for b in range(4): a("%s v%d, v%d, v%d" % (op, M + b, M + b, T + b))
    xreduce("v_max_f32")
    for b in range(4):
        for j in range(8): a("v_sub_f32 v%d, v%d, v%d" % (S + 8 * b + j, S + 8 * b + j, M + b))
    for b in range(4):
        for j in range(8): a("v_exp_f32 v%d, v%d" % (S + 8 * b + j, S + 8 * b + j))
    for b in range(4):
        s = S + 8 * b
        a("v_add_f32 v%d, v%d, v%d" % (M + b, s, s + 1))
        for j in range(2, 8): a("v_add_f32 v%d, v%d, v%d" % (M + b, M + b, s + j))
    xreduce("v_add_f32")
    for b in range(4): a("v_rcp_f32 v%d, v%d" % (M + b, M + b))
    P = 68
    for b in range(4):
        s = S + 8 * b
        for j in range(8): a("v_mul_f32 v%d, v%d, v%d" % (s + j, s + j, M + b))
        for j in range(4): a("v_cvt_pk_bf16_f32 v%d, v%d, v%d" % (P + 4 * b + j, s + 2 * j, s + 2 * j + 1))
    a("s_nop 1")
    O = 16
    for b in range(4):
        for cc in range(2):
            a("v_mfma_f32_16x16x32_bf16 %s, %s, %s, 0" % (vr(O + 8 * b + 4 * cc, 4), vr(VP + 10 * cc + 2 * b, 4), vr(P + 4 * b, 4)))
    a("s_lshl_b32 s%d, s%d, 7" % (S_T0, S_MT)); a("s_lshl_b32 s%d, s%d, 6" % (S_T1, S_WR))
    a("s_add_u32 s%d, s%d, s%d" % (S_T0, S_T0, S_T1)); a("s_lshl_b32 s%d, s%d, 11" % (S_T0, S_T0))
    a("s_lshl_b32 s%d, s%d, 7" % (S_T1, S_NT)); a("s_add_u32 s%d, s%d, s%d" % (S_T0, S_T0, S_T1))
    a("s_lshl_b32 s%d, s%d, 6" % (S_T1, S_WC)); a("s_add_u32 s%d, s%d, s%d" % (S_T0, S_T0, S_T1))
    a("v_lshlrev_b32 v4, 11, v2"); a("v_lshl_add_u32 v4, v3, 4, v4")
    a("s_nop 3")
    for b in range(4):
        t = 108 + 4 * b
        pack_pair(a, O + 8 * b, O + 8 * b + 4, t)
    for b in range(4):
        swap_pair(a, 108 + 4 * b)
    for b in range(4):
        t = 108 + 4 * b
        a("buffer_store_dwordx4 v[%d:%d], v4, s[%d:%d], s%d offen %s" % (t, t + 3, S_SRDO, S_SRDO + 3, S_T0, c.stfl))
        if b < 3: a("s_add_u32 s%d, s%d, %d" % (S_T0, S_T0, 16 * 2048))

RES = 64
def res_pre(a, c):
    a("v_and_b32 v80, 15, v1"); a("v_lshrrev_b32 v81, 4, v1")
    a("s_lshl_b32 s%d, s%d, 7" % (S_T0, S_MT)); a("s_lshl_b32 s%d, s%d, 5" % (S_T1, S_WR))
    a("s_add_u32 s%d, s%d, s%d" % (S_T0, S_T0, S_T1)); a("s_lshl_b32 s%d, s%d, 11" % (S_T0, S_T0))
    a("s_lshl_b32 s%d, s%d, 7" % (S_T1, S_NT)); a("s_add_u32 s64, s%d, s%d" % (S_T0, S_T1))
    a("s_add_u32 s65, s64, %d" % (16 * 2048))
    a("v_lshlrev_b32 v82, 11, v80")
    a("v_lshl_add_u32 v83, v81, 3, v82")
    a("v_lshl_add_u32 v84, v81, 4, v82")
    for mb in range(2):
        for nb in range(4):
            r = RES + (mb * 4 + nb) * 2
            a("buffer_load_dwordx2 v[%d:%d], v83, s[%d:%d], s%d offen offset:%d" % (r, r + 1, S_SRDX, S_SRDX + 3, 64 + mb, 32 * nb))

def epi_res(a, c):
    a("s_waitcnt vmcnt(0)")
    for mb in range(2):
        for nb in range(4):
            r = RES + (mb * 4 + nb) * 2; x = acc_of(c, mb, nb)
            for d in range(2):
                a("v_lshlrev_b32 v85, 16, v%d" % (r + d)); a("v_and_b32 v86, 0xffff0000, v%d" % (r + d))
                a("v_add_f32 v%d, v%d, v85" % (x + 2 * d, x + 2 * d)); a("v_add_f32 v%d, v%d, v86" % (x + 2 * d + 1, x + 2 * d + 1))
    T = 88
    for mb in range(2):
        for p in range(2):
            pack_pair(a, acc_of(c, mb, 2 * p), acc_of(c, mb, 2 * p + 1), T + (mb * 2 + p) * 4)
    if c.dostats:
        a("s_mov_b32 s%d, 0x3f803f80" % S_T0)
        for mb in range(2):
            a("v_mov_b32 v%d, 0" % (104 + 2 * mb)); a("v_mov_b32 v%d, 0" % (105 + 2 * mb))
        for j in range(8):
            for mb in range(2):
                d = T + mb * 8 + j
                a("v_dot2_f32_bf16 v%d, v%d, s%d, v%d" % (104 + 2 * mb, d, S_T0, 104 + 2 * mb))
                a("v_dot2_f32_bf16 v%d, v%d, v%d, v%d" % (105 + 2 * mb, d, d, 105 + 2 * mb))
    for t in range(4): swap_pair(a, T + 4 * t)
    for mb in range(2):
        for p in range(2):
            t = T + (mb * 2 + p) * 4
            a("buffer_store_dwordx4 v[%d:%d], v84, s[%d:%d], s%d offen offset:%d %s" % (t, t + 3, S_SRDO, S_SRDO + 3, 64 + mb, 64 * p, c.stfl))
    if c.dostats:
        a("v_permlane32_swap_b32 v104, v105"); a("v_permlane32_swap_b32 v106, v107"); a("s_nop 0")
        a("v_add_f32 v104, v104, v105"); a("v_add_f32 v106, v106, v107"); a("s_nop 1")
        a("v_permlane16_swap_b32 v104, v106"); a("s_nop 0")
        a("v_add_f32 v104, v104, v106")
        a("v_and_b32 v105, 31, v1"); a("v_lshlrev_b32 v105, 2, v105"); a("v_lshrrev_b32 v106, 5, v1")
        a("v_lshl_add_u32 v105, v106, 13, v105")
        a("s_lshl_b32 s%d, s%d, 14" % (S_T0, S_NT)); a("s_lshl_b32 s%d, s%d, 9" % (S_T1, S_MT)); a("s_add_u32 s%d, s%d, s%d" % (S_T0, S_T0, S_T1))
        a("s_lshl_b32 s%d, s%d, 7" % (S_T1, S_WR)); a("s_add_u32 s%d, s%d, s%d" % (S_T0, S_T0, S_T1))
        a("buffer_store_dword v104, v105, s[%d:%d], s%d offen %s" % (S_SRDY, S_SRDY + 3, S_T0, c.stfl))

def cfg_k2(**kw):
    c = cfg_k4(name="k2_kernel", K=1024, lda=2048, ldb=2048, A=(KA["ws"], WS_O, 4 << 20), W=(KA["wo"], 0, 2 << 20),
               O=(KA["ws"], WS_H, 4 << 20), dostats=True)
    def ex(a, c):
        srd(a, S_SRDX, 46, 0, 4 << 20)
        srd(a, S_SRDY, 48, WS_STATS, 16 * 2 * 8192)
    c.extra_srd = ex; c.compute_pre = res_pre; c.epilogue = epi_res
    c.__dict__.update(kw)
    return c

def cfg_k4r(**kw):
    c = cfg_k4(dostats=False)
    def ex(a, c):
        srd(a, S_SRDX, 48, WS_H, 4 << 20)
    c.extra_srd = ex; c.compute_pre = res_pre; c.epilogue = epi_res
    c.__dict__.update(kw)
    return c

def k3_loader_pre(a, c):
    a("v_and_b32 v30, 31, v1"); a("v_lshlrev_b32 v30, 2, v30"); a("v_lshrrev_b32 v31, 5, v1")
    a("v_lshl_add_u32 v30, v31, 17, v30")
    a("s_lshl_b32 s70, s%d, 9" % S_MT); a("s_lshl_b32 s71, s%d, 7" % S_T0); a("s_add_u32 s70, s70, s71")
    for j in range(8):
        for kind in range(2):
            a("buffer_load_dword v%d, v30, s[%d:%d], s70 offen" % (40 + 2 * j + kind, S_SRDY, S_SRDY + 3))
            a("s_add_u32 s70, s70, 8192")
    a("s_mul_i32 s70, s%d, 896" % S_NT); a("s_mul_i32 s71, s%d, 224" % S_T0); a("s_add_u32 s70, s70, s71")
    a("v_lshlrev_b32 v32, 2, v1")
    for p in range(4):
        a("buffer_load_dword v%d, v32, s[%d:%d], s70 offen" % (56 + p, S_SRDX, S_SRDX + 3))
        if p < 3: a("s_add_u32 s70, s70, %d" % (3584 * 4))
    a("s_mov_b32 s72, s%d" % S_T0)

def k3_loader_mid(a, c, nout):
    a("s_waitcnt vmcnt(%d)" % min(nout, 63))
    for j in range(1, 8):
        a("v_add_f32 v40, v40, v%d" % (40 + 2 * j)); a("v_add_f32 v41, v41, v%d" % (41 + 2 * j))
    a("v_add_f32 v56, v56, v57"); a("v_add_f32 v58, v58, v59")
    a("v_mov_b32 v42, v40"); a("v_mov_b32 v43, v41"); a("v_add_f32 v56, v56, v58")
    a("v_permlane32_swap_b32 v40, v42"); a("v_permlane32_swap_b32 v41, v43"); a("s_nop 0")
    a("v_add_f32 v40, v40, v42"); a("v_add_f32 v41, v41, v43")
    a("s_mov_b32 s70, 0x%x" % f2u(1.0 / 1024)); a("s_mov_b32 s71, 0x%x" % f2u(1e-5))
    a("v_mul_f32 v40, s70, v40"); a("v_mul_f32 v41, s70, v41")
    a("v_fma_f32 v41, -v40, v40, v41"); a("v_max_f32 v41, 0, v41")
    a("v_cvt_pk_bf16_f32 v42, v40, v41")
    a("v_lshlrev_b32 v40, 16, v42"); a("v_and_b32 v41, 0xffff0000, v42")
    a("v_add_f32 v41, s71, v41"); a("v_cvt_pk_bf16_f32 v42, v41, v41"); a("v_and_b32 v41, 0xffff0000, v42")
    a("v_sqrt_f32 v41, v41"); a("s_nop 0"); a("v_cvt_pk_bf16_f32 v42, v41, v41"); a("v_and_b32 v41, 0xffff0000, v42")
    a("v_rcp_f32 v42, v41"); a("s_nop 0")
    a("v_mul_f32 v43, -v40, v42")
    base = c.NS * slotbytes(c)
    a("v_and_b32 v30, 31, v1"); a("v_lshlrev_b32 v30, 3, v30"); a("s_lshl_b32 s70, s72, 8"); a("s_add_u32 s70, s70, %d" % base)
    a("v_add_u32 v30, s70, v30")
    a("ds_write_b64 v30, v[42:43]")
    a("s_mul_i32 s70, s72, 224"); a("s_add_u32 s70, s70, %d" % (base + 1024)); a("v_add_u32 v32, s70, v32")
    a("s_mov_b32 exec_hi, 0xffffff")
    a("ds_write_b32 v32, v56")
    a("s_mov_b32 exec_hi, -1")
    a("s_waitcnt lgkmcnt(0)")

def epi_k3(a, c):
    base = c.NS * slotbytes(c)
    AB = 128; CS = 136; E = 8
    a("v_and_b32 v2, 15, v1"); a("v_lshrrev_b32 v3, 4, v1")
    a("s_lshl_b32 s%d, s%d, 9" % (S_T0, S_WR)); a("s_add_u32 s%d, s%d, %d" % (S_T0, S_T0, base))
    a("v_lshlrev_b32 v4, 3, v2"); a("v_add_u32 v4, s%d, v4" % S_T0)
    for mb in range(4): a("ds_read_b64 v[%d:%d], v4 offset:%d" % (AB + 2 * mb, AB + 1 + 2 * mb, 128 * mb))
    a("v_lshlrev_b32 v5, 4, v3"); a("v_add_u32 v5, %d, v5" % (base + 1024))
    a("s_lshl_b32 s%d, s%d, 8" % (S_T0, S_WC)); a("v_add_u32 v6, s%d, v5" % S_T0)
    a("s_lshl_b32 s%d, s%d, 7" % (S_T0, S_WC)); a("v_add_u32 v7, s%d, v5" % S_T0)
    a("s_lshl_b32 s%d, s%d, 6" % (S_T0, S_WC)); a("v_add_u32 v8, s%d, v5" % S_T0)
    for t in range(4): a("ds_read_b128 v[%d:%d], v6 offset:%d" % (CS + 4 * t, CS + 4 * t + 3, 64 * t))
    for t in range(2): a("ds_read_b128 v[%d:%d], v7 offset:%d" % (CS + 16 + 4 * t, CS + 19 + 4 * t, 512 + 64 * t))
    a("ds_read_b128 v[%d:%d], v8 offset:%d" % (CS + 24, CS + 27, 768))
    a("s_lshl_b32 s%d, s%d, 7" % (S_T0, S_MT)); a("s_lshl_b32 s%d, s%d, 6" % (S_T1, S_WR))
    a("s_add_u32 s%d, s%d, s%d" % (S_T0, S_T0, S_T1)); a("s_mul_i32 s%d, s%d, %d" % (S_T0, S_T0, c.ldo))
    a("s_mul_i32 s%d, s%d, 448" % (S_T1, S_NT)); a("s_add_u32 s%d, s%d, s%d" % (S_T0, S_T0, S_T1))
    a("s_mov_b32 s%d, %d" % (S_T1, c.ldo))
    a("v_mul_lo_u32 v4, v2, s%d" % S_T1); a("v_add_u32 v4, s%d, v4" % S_T0)
    a("v_lshl_add_u32 v9, v3, 4, v4")
    a("s_lshl_b32 s%d, s%d, 7" % (S_T2, S_WC)); a("v_add_u32 v5, s%d, v9" % S_T2)
    a("s_lshl_b32 s%d, s%d, 6" % (S_T2, S_WC)); a("s_add_u32 s%d, s%d, 256" % (S_T2, S_T2)); a("v_add_u32 v6, s%d, v9" % S_T2)
    a("v_and_b32 v7, 1, v3"); a("v_lshl_add_u32 v7, v7, 4, v4"); a("v_lshrrev_b32 v9, 1, v3")
    a("s_mov_b32 s%d, %d" % (S_T2, 16 * c.ldo)); a("v_mul_lo_u32 v9, v9, s%d" % S_T2); a("v_add_u32 v7, v7, v9")
    a("s_lshl_b32 s%d, s%d, 5" % (S_T2, S_WC)); a("s_add_u32 s%d, s%d, 384" % (S_T2, S_T2)); a("v_add_u32 v7, s%d, v7" % S_T2)
    for mb in range(4): a("s_mov_b32 s%d, %d" % (64 + mb, mb * 16 * c.ldo))
    a("s_mov_b32 s68, 0x%x" % f2u(-LOG2E))
    a("s_waitcnt lgkmcnt(0)")
    jobs = []
    for mb in range(4):
        jobs.append(((mb, 0), (mb, 1), 5, mb, 0)); jobs.append(((mb, 2), (mb, 3), 5, mb, 64)); jobs.append(((mb, 4), (mb, 5), 6, mb, 0))
    jobs.append(((0, 6), (1, 6), 7, 0, 0)); jobs.append(((2, 6), (3, 6), 7, 2, 0))
    for i, (X, Y, v, mb, imm) in enumerate(jobs):
        els = []
        for (m, t) in (X, Y):
            x = acc_of(c, m, t)
            for r in range(4): els.append((x + r, AB + 2 * m, CS + 4 * t + r))
        for (x, ab, cs) in els: a("v_mul_f32 v%d, v%d, v%d" % (x, x, ab))
        for (x, ab, cs) in els: a("v_fmac_f32 v%d, v%d, v%d" % (x, ab + 1, cs))
        for j, (x, ab, cs) in enumerate(els): a("v_mul_f32 v%d, s68, v%d" % (E + j, x))
        for j in range(8): a("v_exp_f32 v%d, v%d" % (E + j, E + j))
        for j in range(8): a("v_add_f32 v%d, 1.0, v%d" % (E + j, E + j))
        for j in range(8): a("v_rcp_f32 v%d, v%d" % (E + j, E + j))
        for j, (x, ab, cs) in enumerate(els): a("v_mul_f32 v%d, v%d, v%d" % (x, x, E + j))
        t = els[0][0]
        pack_pair(a, els[0][0], els[4][0], t)
        a("s_nop 1")
        swap_pair(a, t)
        a("buffer_store_dwordx4 v[%d:%d], v%d, s[%d:%d], s%d offen offset:%d %s" % (t, t + 3, v, S_SRDO, S_SRDO + 3, 64 + mb, imm, c.stfl))

def cfg_k3r(**kw):
    c = cfg_k3()
    def ex(a, c):
        srd(a, S_SRDX, 48, WS_CS1, 4 * 3584 * 4)
        srd(a, S_SRDY, 48, WS_STATS, 16 * 2 * 8192)
    c.extra_srd = ex; c.loader_pre = k3_loader_pre; c.loader_mid = k3_loader_mid; c.epilogue = epi_k3
    c.__dict__.update(kw)
    return c

def pipeline(path, stamps=False, k0={}, k1={}, k2={}, k3={}, k4={}):
    c0 = Cfg(name="k0_kernel", stamps=stamps, kidx=0, xfl="", wfl=""); c0.__dict__.update(k0)
    d = dict(stamps=stamps, stfl="")
    c1 = cfg_k1(kidx=1, **{**d, **k1}); c2 = cfg_k2(kidx=2, **{**d, **k2}); c3 = cfg_k3r(kidx=3, **{**d, **k3}); c4 = cfg_k4r(kidx=4, **{**d, **k4})
    ks = [(c0, k0_kernel(c0), 112, 112, 8192, 256, 256)]
    ks.append((c1, gemm_kernel(c1), 184 + 72 if False else 256, 168 if False else 168, c1.NS * slotbytes(c1), 512, 256))
    ks.append((c2, gemm_kernel(c2), 256, 160, c2.NS * slotbytes(c2), 512, 256))
    ks.append((c3, gemm_kernel(c3), 256, 168, c3.NS * slotbytes(c3) + 2048, 512, 256))
    ks.append((c4, gemm_kernel(c4), 256, 160, c4.NS * slotbytes(c4), 512, 256))
    build(ks, path)
```

```python
from asmlib import *
import math, struct
def f2u(x): return struct.unpack("<I", struct.pack("<f", x))[0]
LOG2E = 1.4426950408889634

WS_O = 4 << 20
WS_H = 8 << 20
WS_H1 = 12 << 20
WS_STATS = 28 << 20
WS_STAMP = 0xF000000
KA = dict(x=0, wqkv=8, wo=16, w1=32, w2=40, out=48, dbg=56, ws=64)

S_SRDA = 4; S_SRDW = 8; S_SRDO = 12; S_SRDX = 16; S_SRDY = 20
S_WAVE = 24; S_MT = 25; S_NT = 26; S_WR = 27; S_WC = 28
S_SOFA = 29; S_SOFW = 30; S_CNT = 31; S_SLOT = 32; S_DELTA = 33
S_T0 = 34; S_T1 = 35; S_T2 = 36; S_T3 = 37; S_SOFH = 38; S_IR = 39
S_STAMP = 50
S_IC = 54; S_LW = 55
S_SRDS = 56
S_EXEC = 60
S_RSLOT = 62; S_RD = 63
S_G = 64
S_KS = 94; S_WA = 95; S_WW = 96
S_SRDP = 72
S_PTR = 76
PTR = dict(x=76, wqkv=78, wo=80, w1=84, w2=86, out=88, dbg=90, ws=92)

class Cfg:
    def __init__(self, **kw):
        self.halo = 0; self.NS = 3; self.bps = 2; self.K = 1024
        self.nodma = self.nomfma = self.noread = False
        self.stamps = False; self.kidx = 0
        self.xa = 8; self.xb = 4
        self.dma_flags_a = ""; self.dma_flags_w = ""
        self.prio = 0; self.lprio = 0
        self.rpm = 1; self.read_start = 0
        self.pre_stages = 2; self.ramp = 2
        self.stfl = "sc1"
        self.end_barriers = 0
        self.__dict__.update(kw)
    def hook(self, name, *args):
        f = getattr(self, name, None)
        if f: return f(*args)

def srd(a, d, ptr, off, size):
    p = PTR[ptr]
    if off:
        a("s_add_u32 s%d, s%d, 0x%x" % (d, p, off)); a("s_addc_u32 s%d, s%d, 0" % (d + 1, p + 1))
    else:
        a("s_mov_b32 s%d, s%d" % (d, p)); a("s_mov_b32 s%d, s%d" % (d + 1, p + 1))
    a("s_mov_b32 s%d, 0x%x" % (d + 2, size)); a("s_mov_b32 s%d, 0x20000" % (d + 3))

def stamp(a, c, idx, t):
    a("s_memrealtime s[%d:%d]" % (S_STAMP, S_STAMP + 1))
    a("s_memtime s[%d:%d]" % (S_STAMP + 2, S_STAMP + 3))
    a("s_waitcnt lgkmcnt(0)")
    a("v_mov_b32 v%d, s%d" % (t, S_STAMP)); a("v_mov_b32 v%d, s%d" % (t + 1, S_STAMP + 1))
    a("v_mov_b32 v%d, s%d" % (t + 2, S_STAMP + 2)); a("v_mov_b32 v%d, s%d" % (t + 3, S_STAMP + 3))
    a("s_lshl_b32 s%d, s2, 7" % S_STAMP)
    a("s_add_u32 s%d, s%d, %d" % (S_STAMP, S_STAMP, c.kidx * 512 * 128 + idx * 8))
    a("v_mov_b32 v%d, s%d" % (t + 4, S_STAMP))
    a("s_mov_b64 s[%d:%d], exec" % (S_EXEC, S_EXEC + 1))
    a("s_mov_b64 exec, 1")
    a("buffer_store_dwordx2 v[%d:%d], v%d, s[%d:%d], 0 offen" % (t, t + 1, t + 4, S_SRDS, S_SRDS + 3))
    a("buffer_store_dwordx2 v[%d:%d], v%d, s[%d:%d], 0 offen offset:64" % (t + 2, t + 3, t + 4, S_SRDS, S_SRDS + 3))
    a("s_mov_b64 exec, s[%d:%d]" % (S_EXEC, S_EXEC + 1))

def stamp_w0(a, c, idx, t=128):
    if not c.stamps: return
    L = a.newlabel("Lst")
    a("s_cmp_lg_u32 s%d, 0" % S_WAVE); a("s_cbranch_scc1 %s" % L)
    stamp(a, c, idx, t)
    a.label(L)

def tile_map(a, c):
    xa, xb = c.xa, c.xb
    la, lb = int(math.log2(xa)), int(math.log2(xb))
    gcols = 16 // xb; lg = int(math.log2(gcols))
    a("s_and_b32 s%d, s2, 7" % S_T0)
    a("s_lshr_b32 s%d, s2, 3" % S_T1)
    a("s_lshr_b32 s%d, s%d, %d" % (S_T2, S_T0, lg))
    a("s_and_b32 s%d, s%d, %d" % (S_T3, S_T0, gcols - 1))
    a("s_lshl_b32 s%d, s%d, %d" % (S_MT, S_T2, la))
    a("s_lshl_b32 s%d, s%d, %d" % (S_NT, S_T3, lb))
    a("s_lshr_b32 s%d, s%d, %d" % (S_IR, S_T1, lb))
    a("s_and_b32 s%d, s%d, %d" % (S_IC, S_T1, xb - 1))
    a("s_add_u32 s%d, s%d, s%d" % (S_MT, S_MT, S_IR))
    a("s_add_u32 s%d, s%d, s%d" % (S_NT, S_NT, S_IC))

def abytes(c): return (128 + c.halo) * 128
def wbytes(c): return sum(64 * w * 2 for w in c.segw)
def slotbytes(c): return abytes(c) + wbytes(c)
def nst(c): return c.K // 64
def auxbase(c): return c.NS * slotbytes(c)
def segoffs(c):
    o = abytes(c); r = []
    for w in c.segw:
        r.append(o); o += 64 * w * 2
    return r

def wait_ptrs(a, c):
    a("s_waitcnt lgkmcnt(0)")
    if c.stamps: srd(a, S_SRDS, "ws", WS_STAMP, 1 << 20)

def loader(a, c):
    NS = c.NS; NST = nst(c); SL = slotbytes(c)
    W = S_LW
    a("s_sub_u32 s%d, s%d, 4" % (W, S_WAVE))
    a("v_and_b32 v1, 63, v0")
    a("v_lshrrev_b32 v2, 3, v1")
    a("v_and_b32 v3, 7, v1")
    a("v_lshrrev_b32 v4, 4, v1")
    dmas = []
    vn = 8
    a("v_xor_b32 v5, v4, v3")
    a("v_mul_u32_u24 v6, %d, v2" % c.lda)
    a("v_lshl_add_u32 v8, v5, 4, v6")
    a("v_xor_b32 v9, 64, v8"); a("v_add_u32 v9, %d, v9" % (8 * c.lda - 1024))
    a("v_add_u32 v10, %d, v8" % (16 * c.lda - 2048)); a("v_add_u32 v11, %d, v9" % (16 * c.lda - 2048))
    for j in range(4):
        dmas.append(dict(v=8 + j, srd=S_SRDA, soff=S_SOFA, m0c=c.halo * 128, m0w=4096, imm=1024 * j, half=False, fl=c.dma_flags_a))
    vn = 12
    a("s_lshl_b32 s%d, s%d, 2" % (S_T0, S_MT)); a("s_add_u32 s%d, s%d, s%d" % (S_T0, S_T0, W))
    a("s_mul_i32 s%d, s%d, %d" % (S_SOFA, S_T0, 32 * c.lda))
    if c.halo:
        a("s_lshl_b32 s%d, s%d, 1" % (S_T1, W))
        a("v_add_u32 v5, s%d, v4" % S_T1); a("v_xor_b32 v5, v5, v3"); a("v_and_b32 v5, 7, v5")
        a("v_lshl_add_u32 v%d, v5, 4, v6" % vn)
        a("s_lshl_b32 s%d, s%d, 5" % (S_T0, S_MT)); a("s_add_u32 s%d, s%d, s%d" % (S_T0, S_T0, W))
        a("s_sub_i32 s%d, s%d, 4" % (S_T0, S_T0)); a("s_max_i32 s%d, s%d, 0" % (S_T0, S_T0))
        a("s_mul_i32 s%d, s%d, %d" % (S_SOFH, S_T0, 4 * c.lda))
        dmas.append(dict(v=vn, srd=S_SRDA, soff=S_SOFH, m0c=0, m0w=512, imm=0, half=True, fl=c.dma_flags_a))
        vn += 1
    a("v_and_b32 v5, 1, v4"); a("v_lshlrev_b32 v5, 1, v5"); a("v_xor_b32 v5, v5, v3")
    a("v_mul_u32_u24 v6, %d, v2" % c.ldb)
    a("v_lshl_add_u32 v6, v5, 4, v6")
    a("v_xor_b32 v7, 64, v6"); a("v_add_u32 v7, %d, v7" % (8 * c.ldb - 1024))
    so = segoffs(c)
    for s, w in enumerate(c.segw):
        if w == 64:
            for j in range(2):
                if c.col0[s] == 0: v = 6 + j
                else:
                    v = vn; vn += 1
                    a("v_add_u32 v%d, %d, v%d" % (v, c.col0[s] * 2, 6 + j))
                dmas.append(dict(v=v, srd=S_SRDW, soff=S_SOFW, m0c=so[s], m0w=2048, imm=1024 * j, half=False, fl=c.dma_flags_w))
        else:
            a("v_lshrrev_b32 v5, 2, v1"); a("v_mul_u32_u24 v5, %d, v5" % c.ldb)
            a("v_lshrrev_b32 v%d, 5, v1" % vn); a("v_lshlrev_b32 v%d, 1, v%d" % (vn, vn)); a("v_xor_b32 v%d, v%d, v1" % (vn, vn))
            a("v_and_b32 v%d, 3, v%d" % (vn, vn)); a("v_lshl_add_u32 v%d, v%d, 4, v5" % (vn, vn))
            a("v_add_u32 v%d, %d, v%d" % (vn, c.col0[s] * 2, vn))
            dmas.append(dict(v=vn, srd=S_SRDW, soff=S_SOFW, m0c=so[s], m0w=1024, imm=0, half=False, fl=c.dma_flags_w))
            vn += 1
    a("s_mul_i32 s%d, s%d, %d" % (S_SOFW, W, 16 * c.ldb))
    a("s_mul_i32 s%d, s%d, %d" % (S_T0, S_NT, c.cstep * 2)); a("s_add_u32 s%d, s%d, s%d" % (S_SOFW, S_SOFW, S_T0))
    assert vn <= 24
    n = len(dmas); c.ndma = n
    groups = []
    for d in dmas:
        key = (d["m0c"], d["m0w"])
        if key not in groups: groups.append(key)
        d["g"] = groups.index(key)
    for g, (m0c, m0w) in enumerate(groups):
        a("s_mul_i32 s%d, s%d, %d" % (S_G + g, W, m0w))
        if m0c: a("s_add_u32 s%d, s%d, %d" % (S_G + g, S_G + g, m0c))
    a("s_mov_b32 s%d, 0" % S_SLOT)
    if getattr(c, "rot", None):
        c.rot(a, c)
        a("s_lshl_b32 s%d, s%d, 7" % (S_T0, S_KS))
        a("s_add_u32 s%d, s%d, s%d" % (S_SOFA, S_SOFA, S_T0))
        if c.halo: a("s_add_u32 s%d, s%d, s%d" % (S_SOFH, S_SOFH, S_T0))
        a("s_mul_i32 s%d, s%d, %d" % (S_T0, S_KS, 64 * c.ldb))
        a("s_add_u32 s%d, s%d, s%d" % (S_SOFW, S_SOFW, S_T0))
    perm = getattr(c, "perm", 0)
    if perm:
        a("s_mov_b32 s40, s%d" % S_SOFA); a("s_mov_b32 s41, s%d" % S_SOFW)
        if c.halo: a("s_mov_b32 s42, s%d" % S_SOFH)
        a("s_mul_i32 s43, s%d, %d" % (S_IR, c.permr)); a("s_mul_i32 s%d, s%d, %d" % (S_T0, S_IC, c.permc)); a("s_add_u32 s43, s43, s%d" % S_T0)
        a("s_mov_b32 s%d, 0" % S_KS)
    wait_ptrs(a, c)
    srd(a, S_SRDA, *c.A); srd(a, S_SRDW, *c.W)
    if c.lprio: a("s_setprio %d" % c.lprio)

    def issue():
        cur = None
        if perm:
            a("s_add_u32 s%d, s%d, s43" % (S_WA, S_KS)); a("s_and_b32 s%d, s%d, %d" % (S_WA, S_WA, perm - 1))
            a("s_andn2_b32 s%d, s%d, %d" % (S_WW, S_KS, perm - 1)); a("s_or_b32 s%d, s%d, s%d" % (S_WA, S_WA, S_WW))
            a("s_mul_i32 s%d, s%d, %d" % (S_WW, S_WA, 64 * c.ldb)); a("s_lshl_b32 s%d, s%d, 7" % (S_WA, S_WA))
            a("s_add_u32 s%d, s40, s%d" % (S_SOFA, S_WA)); a("s_add_u32 s%d, s41, s%d" % (S_SOFW, S_WW))
            if c.halo: a("s_add_u32 s%d, s42, s%d" % (S_SOFH, S_WA))
            a("s_add_u32 s%d, s%d, 1" % (S_KS, S_KS))
        for d in dmas:
            if c.nodma: break
            if d["g"] != cur:
                cur = d["g"]
                a("s_add_u32 m0, s%d, s%d" % (S_SLOT, S_G + cur))
                if d["half"]: a("s_mov_b32 exec_hi, 0")
                else: a("s_nop 0")
            a("buffer_load_dwordx4 v%d, s[%d:%d], s%d offen offset:%d %s lds" % (d["v"], d["srd"], d["srd"] + 3, d["soff"], d["imm"], d["fl"]))
            if d["half"]: a("s_mov_b32 exec_hi, -1")
        if getattr(c, "rot", None):
            a("s_add_u32 s%d, s%d, 1" % (S_KS, S_KS))
            a("s_cmp_eq_u32 s%d, %d" % (S_KS, NST))
            a("s_cselect_b32 s%d, 0, s%d" % (S_KS, S_KS))
            a("s_mov_b32 s%d, 128" % S_WA); a("s_mov_b32 s%d, %d" % (S_WW, 64 * c.ldb))
            a("s_cselect_b32 s%d, %d, s%d" % (S_WA, (128 - 128 * NST) & 0xffffffff, S_WA))
            a("s_cselect_b32 s%d, %d, s%d" % (S_WW, (64 * c.ldb * (1 - NST)) & 0xffffffff, S_WW))
            a("s_add_u32 s%d, s%d, s%d" % (S_SOFA, S_SOFA, S_WA))
            if c.halo: a("s_add_u32 s%d, s%d, s%d" % (S_SOFH, S_SOFH, S_WA))
            a("s_add_u32 s%d, s%d, s%d" % (S_SOFW, S_SOFW, S_WW))
        elif not perm:
            a("s_add_u32 s%d, s%d, 128" % (S_SOFA, S_SOFA))
            if c.halo: a("s_add_u32 s%d, s%d, 128" % (S_SOFH, S_SOFH))
            a("s_add_u32 s%d, s%d, %d" % (S_SOFW, S_SOFW, 64 * c.ldb))
        a("s_add_u32 s%d, s%d, %d" % (S_SLOT, S_SLOT, SL))
        a("s_cmp_eq_u32 s%d, %d" % (S_SLOT, NS * SL))
        a("s_cselect_b32 s%d, 0, s%d" % (S_SLOT, S_SLOT))

    issued = min(c.pre_stages, NS)
    for i in range(issued): issue()
    c.hook("loader_pre", a, c, issued * n)
    lex = getattr(c, "lextra", 0)
    steps = []
    for s in range(NST):
        allowed = NS - 1 if s == 0 else min(s - 1 + NS, NST - 1)
        allowed = min(allowed, NST - 1)
        k = max(0, min(c.ramp, allowed + 1 - issued))
        steps.append((issued - 1 - s, k))
        issued += k
    i = 0
    while i < NST:
        j = i
        while j + 1 < NST and steps[j + 1] == steps[i] and not (lex and i <= c.pre_stages): j += 1
        w, k = steps[i]
        cnt = j - i + 1
        extra = lex if i < c.pre_stages else 0
        def body():
            a("s_waitcnt vmcnt(%d)" % min(63, w * n + extra))
            a("s_barrier")
            for q in range(k): issue()
            c.hook("loader_stage", a, c)
        if cnt >= 2:
            L = a.newlabel("Lld")
            a("s_mov_b32 s%d, %d" % (S_CNT, cnt))
            a.label(L)
            body()
            a("s_sub_u32 s%d, s%d, 1" % (S_CNT, S_CNT)); a("s_cmp_lg_u32 s%d, 0" % S_CNT); a("s_cbranch_scc1 %s" % L)
        else:
            body()
        if lex and i == c.pre_stages: c.hook("loader_mid", a, c)
        i = j + 1
    a("s_barrier")
    c.hook("loader_post", a, c)

V_ADDR = 2
V_ACC = 16

def compute_setup(a, c):
    a("v_and_b32 v1, 63, v0")
    a("v_and_b32 v10, 15, v1")
    a("v_lshrrev_b32 v11, 4, v1")
    a("v_bfe_u32 v12, v10, 1, 3")
    a("v_xor_b32 v12, v12, v11")
    a("s_mul_i32 s%d, s%d, %d" % (S_T0, S_WR, c.rowstep * 128))
    a("v_lshlrev_b32 v13, 7, v10")
    a("v_add_u32 v13, s%d, v13" % S_T0)
    a("v_lshl_add_u32 v%d, v12, 4, v13" % (V_ADDR))
    a("v_xor_b32 v%d, 64, v%d" % (V_ADDR + 1, V_ADDR))
    a("v_bfe_u32 v12, v1, 2, 2")
    a("v_lshl_add_u32 v12, v11, 3, v12")
    a("v_bfe_u32 v13, v1, 1, 1")
    a("v_and_b32 v14, 1, v1"); a("v_lshlrev_b32 v14, 3, v14")
    a("v_bfe_u32 v15, v1, 3, 2"); a("v_lshlrev_b32 v15, 1, v15"); a("v_xor_b32 v15, v15, v13")
    a("v_lshl_add_u32 v15, v15, 4, v14")
    a("v_lshl_add_u32 v15, v12, 7, v15")
    if 32 in c.segw:
        a("v_bfe_u32 v10, v1, 4, 1"); a("v_lshlrev_b32 v10, 1, v10"); a("v_xor_b32 v10, v10, v13")
        a("v_lshl_add_u32 v10, v10, 4, v14")
        a("v_lshl_add_u32 v10, v12, 6, v10")
    so = segoffs(c)
    for i, (seg, segwc, pc, pwc) in enumerate(c.wregs):
        src = 15 if c.segw[seg] == 64 else 10
        d = V_ADDR + 2 + i
        if pwc:
            a("s_mul_i32 s%d, s%d, %d" % (S_T0, S_WC, pwc * 32))
            if pc: a("s_add_u32 s%d, s%d, %d" % (S_T0, S_T0, pc * 32))
            a("v_xor_b32 v%d, s%d, v%d" % (d, S_T0, src))
        else:
            a("v_xor_b32 v%d, %d, v%d" % (d, pc * 32, src))
        if segwc:
            a("s_mul_i32 s%d, s%d, %d" % (S_T0, S_WC, segwc * 8192)); a("s_add_u32 s%d, s%d, %d" % (S_T0, S_T0, so[seg]))
            a("v_add_u32 v%d, s%d, v%d" % (d, S_T0, d))
        else:
            a("v_add_u32 v%d, %d, v%d" % (d, so[seg], d))
    c.naddr = 2 + len(c.wregs)

def frag_regs(c):
    MB = len(c.mblk); NB = len(c.nblk)
    kpb = 2 // c.bps
    per = (MB + NB) * 4 * kpb
    def fa(s, kk, mb): return s * per + (kk * (MB + NB) + mb) * 4
    def fw(s, kk, nb): return s * per + (kk * (MB + NB) + MB + nb) * 4
    return fa, fw, 2 * per

def reads(c, s, kabs_list):
    fa, fw, _ = frag_regs(c)
    out = []
    for kk, kabs in kabs_list:
        for mb, row in enumerate(c.mblk):
            out.append("ds_read_b128 %s, v%d offset:%d" % (ar(fa(s, kk, mb), 4), V_ADDR + kabs, row * 128))
        for nb, (wreg, immseg, rs) in enumerate(c.nblk):
            for h in range(2):
                out.append("ds_read_b64_tr_b16 %s, v%d offset:%d" % (ar(fw(s, kk, nb) + 2 * h, 2), V_ADDR + 2 + wreg, immseg + (32 * kabs + 4 * h) * rs))
    return [] if c.noread else out

def mfmas(c, s):
    fa, fw, _ = frag_regs(c)
    out = []
    for kk in range(2 // c.bps):
        for i, (mb, nb, swap) in enumerate(c.mf):
            acc = vr(V_ACC + 4 * i, 4)
            A, B = ar(fw(s, kk, nb), 4), ar(fa(s, kk, mb), 4)
            if swap: A, B = B, A
            out.append("v_mfma_f32_16x16x32_bf16 %s, %s, %s, %s" % (acc, A, B, acc))
    return [] if c.nomfma else out

def weave(main, first, rest, rpm, start=0):
    out = []; q = list(first); r = list(rest)
    for i, m in enumerate(main):
        out.append(m)
        if i < start: continue
        if q:
            for _ in range(rpm):
                if q: out.append(q.pop(0))
        elif r:
            out.append(r.pop(0))
    return out + q + r

def compute(a, c):
    NST = nst(c); SL = slotbytes(c); NS = c.NS
    compute_setup(a, c)
    wait_ptrs(a, c)
    stamp_w0(a, c, 0)
    c.hook("compute_pre", a, c)
    for i in range(len(c.mf) * 4): a("v_mov_b32 v%d, 0" % (V_ACC + i))
    a("s_mov_b32 s%d, 0" % S_SLOT)
    a("s_mov_b32 s%d, %d" % (S_T2, SL))
    a("s_mov_b32 s%d, %d" % (S_T3, (-(NS - 1) * SL) & 0xffffffff))
    if c.prio: a("s_setprio %d" % c.prio)
    adv_s = ["s_add_u32 s%d, s%d, %d" % (S_SLOT, S_SLOT, SL), "s_cmp_eq_u32 s%d, %d" % (S_SLOT, NS * SL),
             "s_cselect_b32 s%d, s%d, s%d" % (S_DELTA, S_T3, S_T2), "s_cselect_b32 s%d, 0, s%d" % (S_SLOT, S_SLOT)]
    adv_v = ["v_add_u32 v%d, s%d, v%d" % (V_ADDR + i, S_DELTA, V_ADDR + i) for i in range(c.naddr)]
    cnt = ["s_sub_u32 s%d, s%d, 1" % (S_CNT, S_CNT), "s_cmp_lg_u32 s%d, 0" % S_CNT]
    def emit(l):
        for x in l: a(x)
    stamp_w0(a, c, 1)
    a("s_barrier")
    stamp_w0(a, c, 2)
    L = a.newlabel("Lc")
    if c.bps == 2:
        emit(reads(c, 0, [(0, 0)]))
        a("s_mov_b32 s%d, %d" % (S_CNT, NST))
        a.label(L)
        a("s_waitcnt lgkmcnt(0)")
        emit(weave(mfmas(c, 0), reads(c, 1, [(0, 1)]), adv_s + adv_v, c.rpm, c.read_start))
        a("s_waitcnt lgkmcnt(0)")
        a("s_barrier")
        emit(weave(mfmas(c, 1), reads(c, 0, [(0, 0)]), cnt, c.rpm, c.read_start))
        a("s_cbranch_scc1 %s" % L)
    else:
        emit(reads(c, 0, [(0, 0), (1, 1)]))
        emit(adv_s + adv_v)
        a("s_mov_b32 s%d, %d" % (S_CNT, NST // 2))
        a.label(L)
        for s in range(2):
            a("s_waitcnt lgkmcnt(0)")
            a("s_barrier")
            ex = c.hook("compute_loop", c, s) or []
            emit(weave(mfmas(c, s), reads(c, 1 - s, [(0, 0), (1, 1)]), adv_s + adv_v + ex + (cnt if s == 1 else []), c.rpm, c.read_start))
        a("s_cbranch_scc1 %s" % L)
    a("s_waitcnt lgkmcnt(0)")
    if c.prio: a("s_setprio 0")
    a("s_nop 7")
    stamp_w0(a, c, 3)

def gemm_kernel(c):
    a = Asm(); a.lbl = c.kidx * 1000
    a.lines.append(kernel_header(c.name).rstrip())
    a("s_cmp_ge_u32 s2, 256")
    a("s_cbranch_scc1 %s_end" % c.name)
    a("s_load_dwordx16 s[76:91], s[0:1], 0")
    a("s_load_dwordx2 s[92:93], s[0:1], 64")
    a("v_lshrrev_b32 v1, 6, v0")
    tile_map(a, c)
    a("v_readfirstlane_b32 s%d, v1" % S_WAVE)
    a("s_cmp_ge_u32 s%d, 4" % S_WAVE)
    a("s_cbranch_scc1 %s_loader" % c.name)
    a("s_lshr_b32 s%d, s%d, %d" % (S_WR, S_WAVE, c.wc_bits))
    a("s_and_b32 s%d, s%d, %d" % (S_WC, S_WAVE, (1 << c.wc_bits) - 1))
    compute(a, c)
    c.epilogue(a, c)
    if c.stamps: a("s_waitcnt vmcnt(0)")
    stamp_w0(a, c, 4)
    a("s_endpgm")
    a.label("%s_loader" % c.name)
    (loader_el if getattr(c, "late", 0) else loader)(a, c)
    a.label("%s_end" % c.name)
    a("s_endpgm")
    return a.text()

def pack_pair(a, x, y, t):
    a("v_cvt_pk_bf16_f32 v%d, v%d, v%d" % (t, x, x + 1)); a("v_cvt_pk_bf16_f32 v%d, v%d, v%d" % (t + 1, x + 2, x + 3))
    a("v_cvt_pk_bf16_f32 v%d, v%d, v%d" % (t + 2, y, y + 1)); a("v_cvt_pk_bf16_f32 v%d, v%d, v%d" % (t + 3, y + 2, y + 3))
def swap_pair(a, t):
    a("v_permlane32_swap_b32 v%d, v%d" % (t, t + 2)); a("v_permlane32_swap_b32 v%d, v%d" % (t + 1, t + 3))
    a("s_nop 0")
    a("v_permlane16_swap_b32 v%d, v%d" % (t, t + 2)); a("v_permlane16_swap_b32 v%d, v%d" % (t + 1, t + 3))
def acc_of(c, mb, nb):
    for i, (m, n, s) in enumerate(c.mf):
        if m == mb and n == nb: return V_ACC + 4 * i
    raise KeyError

def build(kernels, path):
    hdr = ""
    for c, text, vg, acc, lds, blk, grid in kernels:
        hdr += "; @launch kernel=%s grid=(%d,1,1) block=(%d,1,1) lds=%d\n" % (c.name, grid, blk, lds)
    s = hdr + '.amdgcn_target "amdgcn-amd-amdhsa--gfx950"\n.text\n'
    for c, text, vg, acc, lds, blk, grid in kernels: s += text
    s += '.section .rodata,"a"\n'
    for c, text, vg, acc, lds, blk, grid in kernels: s += kernel_desc(c.name, vg, acc)
    open(path, "w").write(s)

def loader_el(a, c):
    NS = c.NS; NST = nst(c); SL = slotbytes(c); AB = abytes(c)
    E = NS - 1; Ld = c.late
    W = S_LW
    SRD0, SRD5 = 100 - 4 - 0, None
    a("s_sub_u32 s%d, s%d, 4" % (W, S_WAVE))
    a("v_and_b32 v1, 63, v0")
    a("v_lshrrev_b32 v2, 3, v1"); a("v_and_b32 v3, 7, v1"); a("v_lshrrev_b32 v4, 4, v1")
    a("v_xor_b32 v5, v4, v3"); a("v_mul_u32_u24 v6, %d, v2" % c.lda); a("v_lshl_add_u32 v6, v5, 4, v6")
    a("v_and_b32 v5, 1, v4"); a("v_lshlrev_b32 v5, 1, v5"); a("v_xor_b32 v5, v5, v3")
    a("v_mul_u32_u24 v7, %d, v2" % c.ldb); a("v_lshl_add_u32 v7, v5, 4, v7")
    BA, BW = 44, 45
    a("s_mul_i32 s%d, s%d, %d" % (BA, S_MT, 128 * c.lda)); a("s_mul_i32 s%d, s%d, %d" % (BW, S_NT, c.cstep * 2))
    P = S_T0
    def slot_fixed(i, typ):
        ld, pat, reg = (c.lda, 6, 0) if typ == "A" else (c.ldb, 7, AB)
        a("s_and_b32 s%d, s%d, 1" % (S_T1, P)); a("s_lshl_b32 s%d, s%d, 6" % (S_T1, S_T1))
        a("s_mul_i32 s%d, s%d, %d" % (S_T2, P, 8 * ld))
        a("v_xor_b32 v%d, s%d, v%d" % (8 + i, S_T1, pat)); a("v_add_u32 v%d, s%d, v%d" % (8 + i, S_T2, 8 + i))
        a("s_lshl_b32 s%d, s%d, 10" % (S_G + i, P))
        if reg: a("s_add_u32 s%d, s%d, %d" % (S_G + i, S_G + i, reg))
    def skip(q_reg, lead_reg):
        a("s_lshl_b32 s%d, s%d, 1" % (S_T1, lead_reg)); a("s_add_u32 s%d, s%d, 2" % (S_T2, q_reg))
        a("s_cmp_lt_u32 s%d, s%d" % (q_reg, S_T1)); a("s_cselect_b32 s%d, s%d, s%d" % (P, q_reg, S_T2))
    if (c.xa, c.xb) == (4, 8):
        for i in range(3):
            a("s_mul_i32 s%d, s%d, 3" % (S_T3, W))
            if i: a("s_add_u32 s%d, s%d, %d" % (S_T3, S_T3, i))
            skip(S_T3, S_IC); slot_fixed(1 + i, "A")
        skip(W, S_IR); slot_fixed(4, "W")
        Lw = a.newlabel("Lelw"); Lj = a.newlabel("Lelj")
        wait_ptrs(a, c)
        srd(a, S_SRDA, *c.A); srd(a, S_SRDW, *c.W)
        a("s_cmp_ge_u32 s%d, 2" % W); a("s_cbranch_scc1 %s" % Lw)
        a("s_lshl_b32 s%d, s%d, 1" % (P, S_IC)); a("s_add_u32 s%d, s%d, s%d" % (P, P, W)); slot_fixed(0, "A")
        a("s_add_u32 s%d, s%d, 4" % (S_T3, W)); skip(S_T3, S_IR); slot_fixed(5, "W")
        srd(a, S_SRDX, *c.A); srd(a, S_SRDY, *c.W)
        a("s_mov_b32 s40, s%d" % BA); a("s_mov_b32 s41, 128"); a("s_mov_b32 s42, s%d" % BW); a("s_mov_b32 s43, %d" % (64 * c.ldb))
        a("s_branch %s" % Lj)
        a.label(Lw)
        a("s_lshl_b32 s%d, s%d, 1" % (P, S_IR)); a("s_add_u32 s%d, s%d, s%d" % (P, P, W)); a("s_sub_u32 s%d, s%d, 2" % (P, P)); slot_fixed(0, "W")
        a("s_add_u32 s%d, s%d, 10" % (S_T3, W)); skip(S_T3, S_IC); slot_fixed(5, "A")
        srd(a, S_SRDX, *c.W); srd(a, S_SRDY, *c.A)
        a("s_mov_b32 s40, s%d" % BW); a("s_mov_b32 s41, %d" % (64 * c.ldb)); a("s_mov_b32 s42, s%d" % BA); a("s_mov_b32 s43, 128")
        a.label(Lj)
        types = [None, "A", "A", "A", "W", None]
    else:
        assert (c.xa, c.xb) == (2, 16)
        for i in range(4):
            a("s_lshl_b32 s%d, s%d, 2" % (P, W))
            if i: a("s_add_u32 s%d, s%d, %d" % (P, P, i))
            slot_fixed(1 + i, "A")
        a("s_lshl_b32 s%d, s%d, 2" % (P, S_IR)); a("s_add_u32 s%d, s%d, s%d" % (P, P, W)); slot_fixed(0, "W")
        a("s_xor_b32 s%d, s%d, 4" % (P, P)); slot_fixed(5, "W")
        wait_ptrs(a, c)
        srd(a, S_SRDA, *c.A); srd(a, S_SRDW, *c.W); srd(a, S_SRDX, *c.W); srd(a, S_SRDY, *c.W)
        a("s_mov_b32 s40, s%d" % BW); a("s_mov_b32 s41, %d" % (64 * c.ldb)); a("s_mov_b32 s42, s%d" % BW); a("s_mov_b32 s43, %d" % (64 * c.ldb))
        types = [None, "A", "A", "A", "A", None]
    a("s_mov_b32 s%d, s%d" % (S_SOFA, BA)); a("s_mov_b32 s%d, s%d" % (S_SOFW, BW))
    a("s_mov_b32 s%d, 0" % S_SLOT); a("s_mov_b32 s%d, 0" % S_RSLOT)
    if c.lprio: a("s_setprio %d" % c.lprio)
    def dma(i, ring, srd_, soff):
        if c.nodma: return
        a("s_add_u32 m0, s%d, s%d" % (ring, S_G + i)); a("s_nop 0")
        a("buffer_load_dwordx4 v%d, s[%d:%d], s%d offen lds" % (8 + i, srd_, srd_ + 3, soff))
    def ringadv(r):
        a("s_add_u32 s%d, s%d, %d" % (r, r, SL)); a("s_cmp_eq_u32 s%d, %d" % (r, NS * SL)); a("s_cselect_b32 s%d, 0, s%d" % (r, r))
    def late():
        for i in range(1, 5):
            dma(i, S_SLOT, S_SRDA if types[i] == "A" else S_SRDW, S_SOFA if types[i] == "A" else S_SOFW)
        dma(5, S_SLOT, S_SRDY, 42)
        a("s_add_u32 s%d, s%d, 128" % (S_SOFA, S_SOFA)); a("s_add_u32 s%d, s%d, %d" % (S_SOFW, S_SOFW, 64 * c.ldb)); a("s_add_u32 s42, s42, s43")
        ringadv(S_SLOT)
    def early():
        dma(0, S_RSLOT, S_SRDX, 40)
        a("s_add_u32 s40, s40, s41")
        ringadv(S_RSLOT)
    order = []
    def do(kind, st):
        order.append((kind, st)); (late if kind == "L" else early)()
    def cnt_after(st):
        idx = max(i for i, (k, s) in enumerate(order) if s == st)
        return sum(5 if k == "L" else 1 for k, s in order[idx + 1:])
    for st in range(Ld): do("E", st); do("L", st)
    for st in range(Ld, NS): do("E", st)
    plan = []
    sim = list(order)
    def cnt_sim(st):
        idx = max(i for i, (k, s) in enumerate(sim) if s == st)
        return sum(5 if k == "L" else 1 for k, s in sim[idx + 1:])
    for s in range(NST):
        w = cnt_sim(s)
        acts = []
        if s + Ld < NST: acts.append("L"); sim.append(("L", s + Ld))
        if s >= 1 and s + E < NST: acts.append("E"); sim.append(("E", s + E))
        plan.append((w, tuple(acts)))
    i = 0
    while i < NST:
        j = i
        while j + 1 < NST and plan[j + 1] == plan[i]: j += 1
        w, acts = plan[i]
        def body():
            a("s_waitcnt vmcnt(%d)" % w); a("s_barrier")
            for k in acts: (late if k == "L" else early)()
        if j > i:
            L = a.newlabel("Lld"); a("s_mov_b32 s%d, %d" % (S_CNT, j - i + 1)); a.label(L)
            body()
            a("s_sub_u32 s%d, s%d, 1" % (S_CNT, S_CNT)); a("s_cmp_lg_u32 s%d, 0" % S_CNT); a("s_cbranch_scc1 %s" % L)
        else: body()
        i = j + 1
    a("s_barrier")
    c.hook("loader_post", a, c)
```

```python
from g2 import *

RD_W = 24; RD_H = 25; RD_A = 26
CSA = 28
RSA = 36
BUF = 48

def side_setup(a, c):
    so = segoffs(c)
    a("v_bfe_u32 v46, v1, 4, 1"); a("v_lshlrev_b32 v46, 3, v46")
    a("v_bfe_u32 v47, v1, 5, 1"); a("v_lshl_add_u32 v46, v47, 2, v46")
    a("v_bfe_u32 v47, v1, 2, 2"); a("v_add_u32 v46, v46, v47")
    a("v_bfe_u32 v47, v1, 3, 2"); a("v_lshlrev_b32 v47, 1, v47")
    a("v_bfe_u32 v48, v1, 1, 1"); a("v_xor_b32 v47, v47, v48")
    a("v_and_b32 v49, 1, v1"); a("v_lshlrev_b32 v49, 3, v49")
    a("v_lshl_add_u32 v47, v47, 4, v49"); a("v_lshl_add_u32 v47, v46, 7, v47")
    a("s_lshl_b32 s%d, s%d, 5" % (S_T0, S_LW))
    a("v_xor_b32 v%d, s%d, v47" % (RD_W, S_T0)); a("v_add_u32 v%d, %d, v%d" % (RD_W, so[0], RD_W))
    regs = [RD_W]
    if 32 in c.segw:
        a("v_bfe_u32 v47, v1, 4, 1"); a("v_lshlrev_b32 v47, 1, v47"); a("v_xor_b32 v47, v47, v48")
        a("v_lshl_add_u32 v47, v47, 4, v49"); a("v_lshl_add_u32 v47, v46, 6, v47")
        a("s_and_b32 s%d, s%d, 32" % (S_T0, S_T0))
        a("v_xor_b32 v%d, s%d, v47" % (RD_H, S_T0)); a("v_add_u32 v%d, %d, v%d" % (RD_H, so[3], RD_H))
        regs.append(RD_H)
    if c.rowstats:
        a("s_lshl_b32 s%d, s%d, 12" % (S_T0, S_LW)); a("s_add_u32 s%d, s%d, %d" % (S_T0, S_T0, c.halo * 128))
        a("v_lshlrev_b32 v47, 4, v1"); a("v_add_u32 v%d, s%d, v47" % (RD_A, S_T0))
        a("s_lshl_b32 s%d, s%d, 9" % (S_T0, S_LW)); a("v_add_u32 v%d, s%d, v47" % (RD_A + 1, S_T0))
        regs += [RD_A, RD_A + 1]
    c.side_regs = regs
    for r in range(CSA, RSA + 10): a("v_mov_b32 v%d, 0" % r)
    a("s_mov_b32 s%d, 0" % S_RSLOT)
    a("s_mov_b32 s70, 0x3f803f80")

def side_stage(a, c):
    SL = slotbytes(c)
    rd = []; ops = []
    b = BUF
    if c.rowstats:
        for j in range(5):
            rd.append("ds_read_b128 v[%d:%d], v%d offset:%d" % (b, b + 3, RD_A if j < 4 else RD_A + 1, 1024 * j if j < 4 else 0))
            o = []
            for d in range(4):
                o.append("v_dot2c_f32_bf16 v%d, s70, v%d" % (RSA + 2 * j, b + d))
                o.append("v_dot2c_f32_bf16 v%d, v%d, v%d" % (RSA + 2 * j + 1, b + d, b + d))
            ops.append(o); b += 4
    for q in range(4):
        for s, w in enumerate(c.segw):
            if w == 64: rd.append("ds_read_b64_tr_b16 v[%d:%d], v%d offset:%d" % (b, b + 1, RD_W, s * 8192 + q * 2048))
            else: rd.append("ds_read_b64_tr_b16 v[%d:%d], v%d offset:%d" % (b, b + 1, RD_H, q * 1024))
            ops.append(["v_dot2c_f32_bf16 v%d, s70, v%d" % (CSA + 2 * s + d, b + d) for d in range(2)])
            b += 2
    for r in rd: a(r)
    a("s_add_u32 s%d, s%d, %d" % (S_RSLOT, S_RSLOT, SL)); a("s_cmp_eq_u32 s%d, %d" % (S_RSLOT, c.NS * SL))
    a("s_cselect_b32 s%d, %d, %d" % (S_RD, 0, 0) if False else "s_mov_b32 s%d, %d" % (S_RD, SL))
    a("s_cselect_b32 s%d, %d, s%d" % (S_RD, (-(c.NS - 1) * SL) & 0xffffffff, S_RD))
    a("s_cselect_b32 s%d, 0, s%d" % (S_RSLOT, S_RSLOT))
    for r in c.side_regs: a("v_add_u32 v%d, s%d, v%d" % (r, S_RD, r))
    n = len(rd); grp = 5 if c.rowstats else 4
    i = 0
    while i < n:
        j = min(n, i + grp)
        a("s_waitcnt lgkmcnt(%d)" % min(15, n - j))
        m = max(len(ops[t]) for t in range(i, j))
        for e in range(m):
            for t in range(i, j):
                if e < len(ops[t]): a(ops[t][e])
        i = j; grp = len(c.segw) * 2

def finish_stats(a, s, q, t):
    a("s_mov_b32 s70, 0x%x" % f2u(1.0 / 1024)); a("s_mov_b32 s71, 0x%x" % f2u(1e-5))
    a("v_mul_f32 v%d, s70, v%d" % (s, s)); a("v_mul_f32 v%d, s70, v%d" % (q, q))
    a("v_fma_f32 v%d, -v%d, v%d, v%d" % (q, s, s, q)); a("v_max_f32 v%d, 0, v%d" % (q, q))
    a("v_cvt_pk_bf16_f32 v%d, v%d, v%d" % (t, s, q))
    a("v_lshlrev_b32 v%d, 16, v%d" % (t + 1, t)); a("v_and_b32 v%d, 0xffff0000, v%d" % (q, t))
    a("v_add_f32 v%d, s71, v%d" % (q, q)); a("v_cvt_pk_bf16_f32 v%d, v%d, v%d" % (t, q, q)); a("v_and_b32 v%d, 0xffff0000, v%d" % (q, t))
    a("v_sqrt_f32 v%d, v%d" % (q, q)); a("s_nop 0"); a("v_cvt_pk_bf16_f32 v%d, v%d, v%d" % (t, q, q)); a("v_and_b32 v%d, 0xffff0000, v%d" % (q, t))
    a("v_rcp_f32 v%d, v%d" % (s, q)); a("v_sub_f32 v%d, 0, v%d" % (q, t + 1))

AUX_A = 0; AUX_NM = 1024; AUX_CS = 2048

def side_post(a, c):
    base = auxbase(c)
    a("s_nop 2")
    nb = len(c.segw)
    for s in range(nb): a("v_add_f32 v%d, v%d, v%d" % (CSA + 2 * s, CSA + 2 * s, CSA + 2 * s + 1))
    X = [CSA, CSA + 2, CSA + 4, CSA + 6]
    a("s_nop 1")
    a("v_permlane32_swap_b32 v%d, v%d" % (X[0], X[2])); a("v_permlane32_swap_b32 v%d, v%d" % (X[1], X[3])); a("s_nop 0")
    a("v_add_f32 v%d, v%d, v%d" % (X[0], X[0], X[2])); a("v_add_f32 v%d, v%d, v%d" % (X[1], X[1], X[3])); a("s_nop 1")
    a("v_permlane16_swap_b32 v%d, v%d" % (X[0], X[1])); a("s_nop 0")
    a("v_add_f32 v%d, v%d, v%d" % (X[0], X[0], X[1]))
    a("v_lshrrev_b32 v46, 4, v1"); a("v_and_b32 v47, 15, v1"); a("v_lshl_add_u32 v47, v46, 6, v47")
    a("s_lshl_b32 s%d, s%d, 4" % (S_T0, S_LW)); a("s_and_b32 s%d, s%d, 16" % (S_T1, S_T0))
    a("v_mov_b32 v48, s%d" % S_T0); a("v_mov_b32 v49, s%d" % S_T1)
    a("v_cmp_eq_u32 vcc, 3, v46"); a("s_nop 1"); a("v_cndmask_b32 v48, v48, v49, vcc")
    a("v_add_u32 v47, v47, v48"); a("v_lshlrev_b32 v47, 2, v47")
    a("ds_write_b32 v47, v%d offset:%d" % (X[0], base + AUX_CS - (base + AUX_CS) // 65536 * 0) if base + AUX_CS < 65536 else
      "v_add_u32 v47, %d, v47\nds_write_b32 v47, v%d" % (base + AUX_CS, X[0]))
    if c.rowstats:
        for dpp in ("quad_perm:[1,0,3,2]", "quad_perm:[2,3,0,1]", "row_half_mirror"):
            for r in range(RSA, RSA + 10): a("v_add_f32_dpp v%d, v%d, v%d %s row_mask:0xf bank_mask:0xf" % (r, r, r, dpp))
        for j in range(1, 5):
            a("v_cmp_eq_u32 vcc, %d, v3" % j); a("s_nop 1")
            a("v_cndmask_b32 v%d, v%d, v%d, vcc" % (RSA, RSA, RSA + 2 * j)); a("v_cndmask_b32 v%d, v%d, v%d, vcc" % (RSA + 1, RSA + 1, RSA + 2 * j + 1))
        finish_stats(a, RSA, RSA + 1, 46)
        a("s_lshl_b32 s%d, s%d, 5" % (S_T0, S_LW)); a("s_add_u32 s%d, s%d, %d" % (S_T0, S_T0, c.halo))
        a("v_lshl_add_u32 v46, v3, 3, v2"); a("v_add_u32 v46, s%d, v46" % S_T0)
        a("s_lshl_b32 s%d, s%d, 2" % (S_T0, S_LW)); a("v_add_u32 v47, s%d, v2" % S_T0)
        a("v_cndmask_b32 v46, v46, v47, vcc")
        a("v_lshlrev_b32 v46, 2, v46"); a("v_add_u32 v46, %d, v46" % base)
        a("v_lshrrev_b32 v47, 5, v1"); a("v_cndmask_b32 v47, 0, v47, vcc"); a("v_add_u32 v47, v47, v3")
        a("v_cmp_gt_u32 vcc, 5, v47")
        a("s_and_saveexec_b64 s[%d:%d], vcc" % (S_EXEC, S_EXEC + 1))
        a("ds_write_b32 v46, v%d offset:%d" % (RSA, AUX_A)); a("ds_write_b32 v46, v%d offset:%d" % (RSA + 1, AUX_NM))
        a("s_mov_b64 exec, s[%d:%d]" % (S_EXEC, S_EXEC + 1))
    a("s_waitcnt lgkmcnt(0)")
    a("s_barrier")

def touches(a, c, s0, s1, vt=160):
    S = s1 - s0
    RA = 128 // c.xb; RW = 64 // c.xa
    nl = len(c.segw)
    jobs = []
    nA = RA * S; nW = RW * S * nl
    lra = int(math.log2(RA)); lrw = int(math.log2(RW))
    a("s_lshl_b32 s%d, s%d, 6" % (S_T0, S_WAVE)); a("v_add_u32 v%d, s%d, v1" % (vt, S_T0))
    a("s_lshl_b32 s%d, s%d, 7" % (S_T0, S_MT)); a("s_lshl_b32 s%d, s%d, %d" % (S_T1, S_IC, lra)); a("s_add_u32 s%d, s%d, s%d" % (S_T0, S_T0, S_T1))
    a("s_mul_i32 s%d, s%d, %d" % (S_T0, S_T0, c.lda)); a("s_add_u32 s%d, s%d, %d" % (S_T0, S_T0, s0 * 128))
    a("v_and_b32 v%d, %d, v%d" % (vt + 1, RA - 1, vt)); a("v_mul_u32_u24 v%d, %d, v%d" % (vt + 1, c.lda, vt + 1))
    a("v_lshrrev_b32 v%d, %d, v%d" % (vt + 2, lra, vt)); a("v_lshl_add_u32 v%d, v%d, 7, v%d" % (vt + 1, vt + 2, vt + 1))
    stepA = (256 // RA) * 128
    a("s_lshl_b32 s%d, s%d, %d" % (S_T1, S_IR, lrw)); a("s_add_u32 s%d, s%d, %d" % (S_T1, S_T1, s0 * 64)); a("s_mul_i32 s%d, s%d, %d" % (S_T1, S_T1, c.ldb))
    a("s_mul_i32 s%d, s%d, %d" % (S_T2, S_NT, c.cstep * 2)); a("s_add_u32 s%d, s%d, s%d" % (S_T1, S_T1, S_T2))
    a("v_and_b32 v%d, %d, v%d" % (vt + 2, RW - 1, vt)); a("v_lshrrev_b32 v%d, %d, v%d" % (vt + 3, lrw, vt))
    a("v_lshl_add_u32 v%d, v%d, 6, v%d" % (vt + 2, vt + 3, vt + 2)); a("v_mul_u32_u24 v%d, %d, v%d" % (vt + 2, c.ldb, vt + 2))
    stepW = (256 // RW) * 64 * c.ldb
    ra = -(-nA // 256); rw = -(-(RW * S) // 256)
    for t in range(max(ra, rw)):
        if t < ra:
            a("buffer_load_dword v%d, v%d, s[%d:%d], s%d offen" % (vt + 3, vt + 1, S_SRDA, S_SRDA + 3, S_T0))
            a("s_add_u32 s%d, s%d, %d" % (S_T0, S_T0, stepA))
        if t < rw:
            for s in range(nl):
                off = c.col0[s] * 2 + (32 * 2 - 4 if (c.segw[s] == 32) else 0)
                if off < 4096: a("buffer_load_dword v%d, v%d, s[%d:%d], s%d offen offset:%d" % (vt + 3, vt + 2, S_SRDW, S_SRDW + 3, S_T1, off))
                else:
                    a("s_add_u32 s%d, s%d, %d" % (S_T2, S_T1, off))
                    a("buffer_load_dword v%d, v%d, s[%d:%d], s%d offen" % (vt + 3, vt + 2, S_SRDW, S_SRDW + 3, S_T2))
            a("s_add_u32 s%d, s%d, %d" % (S_T1, S_T1, stepW))

def flat_touch(a, c, ptr, nbytes, vt, part=(0, 1)):
    srd(a, S_SRDP, ptr, 0, nbytes)
    per = nbytes // 1024 // part[1]
    n = -(-per // 8192)
    a("s_and_b32 s%d, s%d, 3" % (S_T0, S_WAVE)); a("s_lshl_b32 s%d, s2, 2" % S_T1); a("s_add_u32 s%d, s%d, s%d" % (S_T0, S_T0, S_T1))
    a("s_mul_i32 s%d, s%d, %d" % (S_T0, S_T0, per))
    if part[0]: a("s_add_u32 s%d, s%d, %d" % (S_T0, S_T0, part[0] * (nbytes // part[1])))
    a("v_lshlrev_b32 v%d, 7, v1" % vt)
    lanes = min(64, per // 128)
    if lanes < 64:
        m = (1 << lanes) - 1
        a("s_mov_b32 exec_lo, 0x%x" % (m & 0xffffffff)); a("s_mov_b32 exec_hi, 0x%x" % (m >> 32))
    for t in range(n):
        a("buffer_load_dword v%d, v%d, s[%d:%d], s%d offen" % (vt + 1, vt, S_SRDP, S_SRDP + 3, S_T0))
        if t < n - 1: a("s_add_u32 s%d, s%d, 8192" % (S_T0, S_T0))
    if lanes < 64: a("s_mov_b64 exec, -1")
    return n

def cfg_k1(**kw):
    c = Cfg(name="k1_kernel", K=1024, lda=2048, ldb=6144, halo=16,
            A=("x", 0, 4 << 20), W=("wqkv", 0, 1024 * 6144), O=("ws", WS_O, 4 << 20),
            segw=[64, 64, 64], col0=[0, 1024, 2048], cstep=64,
            wc_bits=1, rowstep=64, mblk=[0, 16, 32, 48, 64],
            wregs=[(0, 0, 0, 2), (0, 0, 1, 2)],
            nblk=[(0, 0, 128), (1, 0, 128), (0, 8192, 128), (1, 8192, 128), (0, 16384, 128), (1, 16384, 128)],
            xa=8, xb=4, NS=3, bps=2, ldo=2048, rowstats=True, touch=(3, 16), tail_pf=[])
    c.mf = ([(mb, nb, False) for nb in (0, 1) for mb in range(1, 5)] +
            [(mb, nb, False) for nb in (2, 3) for mb in range(5)] +
            [(mb, nb, True) for nb in (4, 5) for mb in range(5)])
    c.epilogue = epi_k1; c.compute_pre = pre_k1
    c.loader_pre = lambda a, c, n: side_setup(a, c)
    c.loader_stage = side_stage; c.loader_post = post_with_pf
    c.__dict__.update(kw)
    return c

def post_with_pf(a, c):
    for (ptr, nb) in c.tail_pf: flat_touch(a, c, ptr, nb, 92)
    if getattr(c, "side_regs", None): side_post(a, c)

BIAS = 148
def pre_k1(a, c):
    srd(a, S_SRDA, *c.A); srd(a, S_SRDW, *c.W); srd(a, S_SRDO, *c.O)
    if c.touch: touches(a, c, *c.touch)
    for (ptr, nb) in getattr(c, "head_pf", []): flat_touch(a, c, ptr, nb, 160)
    a("v_and_b32 v12, 15, v1"); a("v_lshrrev_b32 v13, 4, v1")
    a("v_lshlrev_b32 v14, 2, v13"); a("v_sub_u32 v14, v12, v14")
    a("s_mov_b32 s%d, 0x%x" % (S_T0, f2u(-1e30)))
    a("v_mov_b32 v12, s%d" % S_T0)
    for half in range(2):
        for r in range(4):
            off = (16 if half == 0 else 0) - r
            a("v_add_u32 v13, %d, v14" % off); a("v_and_b32 v13, 0xfffffff1, v13")
            a("v_cmp_ne_u32 vcc, 0, v13"); a("s_nop 1")
            a("v_cndmask_b32 v%d, 0, v12, vcc" % (BIAS + 4 * half + r))
    a("s_or_b32 s%d, s%d, s%d" % (S_T1, S_MT, S_WR)); a("s_cmp_eq_u32 s%d, 0" % S_T1)
    a("s_cselect_b32 s%d, s%d, 0" % (S_T1, S_T0))
    for r in range(4): a("v_add_f32 v%d, s%d, v%d" % (BIAS + 8 + r, S_T1, BIAS + r))

def pk(x): return "v[%d:%d]" % (x, x + 1)

def epi_k1(a, c):
    base = auxbase(c)
    a("v_and_b32 v2, 15, v1"); a("v_lshrrev_b32 v3, 4, v1")
    a("s_lshl_b32 s%d, s%d, 8" % (S_T0, S_WR)); a("s_add_u32 s%d, s%d, %d" % (S_T0, S_T0, base))
    a("v_lshlrev_b32 v4, 2, v2"); a("v_add_u32 v4, s%d, v4" % S_T0)
    a("v_lshlrev_b32 v5, 4, v3"); a("v_add_u32 v5, s%d, v5" % S_T0)
    a("s_lshl_b32 s%d, s%d, 7" % (S_T0, S_WC)); a("s_add_u32 s%d, s%d, %d" % (S_T0, S_T0, base + AUX_CS))
    a("v_lshlrev_b32 v6, 4, v3"); a("v_add_u32 v6, s%d, v6" % S_T0)
    a("v_lshlrev_b32 v7, 2, v2"); a("v_add_u32 v7, s%d, v7" % S_T0)
    a("s_waitcnt vmcnt(0)")
    a("s_barrier")
    AN = 128
    CSQ = 138
    for mb in range(5):
        a("ds_read_b32 v%d, v4 offset:%d" % (AN + 2 * mb, AUX_A + 64 * mb)); a("ds_read_b32 v%d, v4 offset:%d" % (AN + 2 * mb + 1, AUX_NM + 64 * mb))
    CQ = 140; CK = 160
    for h in range(2): a("ds_read_b128 v[%d:%d], v6 offset:%d" % (CQ + 4 * h, CQ + 4 * h + 3, 64 * h))
    for h in range(2): a("ds_read_b128 v[%d:%d], v6 offset:%d" % (CK + 4 * h, CK + 4 * h + 3, 256 + 64 * h))
    CV = 138
    for cc in range(2): a("ds_read_b32 v%d, v7 offset:%d" % (CV + cc, 512 + 64 * cc))
    VA = [8, 12]
    def norm_rowlane(x, an, cs):
        for p in range(2):
            a("v_pk_fma_f32 %s, %s, %s, %s op_sel:[0,1,0] op_sel_hi:[1,1,1]" % (pk(x + 2 * p), pk(cs + 2 * p), pk(an), pk(x + 2 * p)))
        for p in range(2):
            a("v_pk_mul_f32 %s, %s, %s op_sel_hi:[1,0]" % (pk(x + 2 * p), pk(x + 2 * p), pk(an)))
    a("ds_read_b128 v[8:11], v5 offset:%d" % AUX_A); a("ds_read_b128 v[12:15], v5 offset:%d" % AUX_NM)
    a("s_waitcnt lgkmcnt(2)")
    def packqk(b, nb0, cs, dst):
        x0, x1 = acc_of(c, b, nb0), acc_of(c, b, nb0 + 1)
        norm_rowlane(x0, AN + 2 * b, cs); norm_rowlane(x1, AN + 2 * b, cs + 4)
        pack_pair(a, x0, x1, dst)
    QP = {b: acc_of(c, b, 0) for b in range(1, 5)}
    KP = {b: acc_of(c, b, 2) for b in range(5)}
    for b in range(1, 5): packqk(b, 0, CQ, QP[b])
    for b in range(5): packqk(b, 2, CK, KP[b])
    S0 = {b: acc_of(c, b, 1) for b in range(1, 5)}
    S1 = {b: acc_of(c, b - 1, 3) for b in range(1, 5)}
    a("s_nop 0")
    for b in range(1, 5):
        a("v_mfma_f32_16x16x32_bf16 %s, %s, %s, 0" % (vr(S0[b], 4), vr(KP[b - 1], 4), vr(QP[b], 4)))
        a("v_mfma_f32_16x16x32_bf16 %s, %s, %s, 0" % (vr(S1[b], 4), vr(KP[b], 4), vr(QP[b], 4)))
    VP = [128, 84]
    k14 = acc_of(c, 4, 3)
    v0 = acc_of(c, 0, 4)
    VP = [128, v0]
    for b in range(5):
        a("s_waitcnt lgkmcnt(0)")
        xs = [acc_of(c, b, 4), acc_of(c, b, 5)]
        for cc in range(2):
            for p in range(2):
                sel = "op_sel_hi:[1,0,1]" if cc == 0 else "op_sel:[0,1,0] op_sel_hi:[1,1,1]"
                a("v_pk_fma_f32 %s, %s, %s, %s %s" % (pk(xs[cc] + 2 * p), pk(12 + 2 * p), pk(CV), pk(xs[cc] + 2 * p), sel))
        for cc in range(2):
            for p in range(2):
                a("v_pk_mul_f32 %s, %s, %s" % (pk(xs[cc] + 2 * p), pk(xs[cc] + 2 * p), pk(8 + 2 * p)))
        if b < 4:
            a("ds_read_b128 v[8:11], v5 offset:%d" % (AUX_A + 64 * (b + 1))); a("ds_read_b128 v[12:15], v5 offset:%d" % (AUX_NM + 64 * (b + 1)))
        for cc in range(2):
            a("v_cvt_pk_bf16_f32 v%d, v%d, v%d" % (VP[cc] + 2 * b, xs[cc], xs[cc] + 1))
            a("v_cvt_pk_bf16_f32 v%d, v%d, v%d" % (VP[cc] + 2 * b + 1, xs[cc] + 2, xs[cc] + 3))
    a("s_mov_b32 s64, 0x%x" % f2u(32 ** -0.5 * LOG2E)); a("s_mov_b32 s65, s64")
    for b in range(1, 5):
        for h, s in enumerate((S0[b], S1[b])):
            bias = BIAS + 8 if (b == 1 and h == 0) else BIAS + 4 * h
            for p in range(2): a("v_pk_fma_f32 %s, %s, s[64:65], %s" % (pk(s + 2 * p), pk(s + 2 * p), pk(bias + 2 * p)))
    M, T = 140, 144
    for b in range(1, 5):
        s, u = S0[b], S1[b]; m = M + b - 1
        a("v_max3_f32 v%d, v%d, v%d, v%d" % (m, s, s + 1, s + 2)); a("v_max3_f32 v%d, v%d, v%d, v%d" % (m, m, s + 3, u))
        a("v_max3_f32 v%d, v%d, v%d, v%d" % (m, m, u + 1, u + 2)); a("v_max_f32 v%d, v%d, v%d" % (m, m, u + 3))
    def xreduce(op):
        for sw in ("v_permlane16_swap_b32", "v_permlane32_swap_b32"):
            for b in range(4): a("v_mov_b32 v%d, v%d" % (T + b, M + b))
            for b in range(4): a("%s v%d, v%d" % (sw, M + b, T + b))
            for b in range(4): a("%s v%d, v%d, v%d" % (op, M + b, M + b, T + b))
    xreduce("v_max_f32")
    def bsel(b):
        m = M + b - 1
        return (pk(m & ~1), "op_sel:[0,1] op_sel_hi:[1,1]" if m & 1 else "op_sel_hi:[1,0]")
    for b in range(1, 5):
        r, sel = bsel(b)
        for s in (S0[b], S1[b]):
            for p in range(2): a("v_pk_add_f32 %s, %s, %s %s neg_lo:[0,1] neg_hi:[0,1]" % (pk(s + 2 * p), pk(s + 2 * p), r, sel))
    for b in range(1, 5):
        for s in (S0[b], S1[b]):
            for j in range(4): a("v_exp_f32 v%d, v%d" % (s + j, s + j))
    for b in range(1, 5):
        s, u = S0[b], S1[b]
        a("v_pk_add_f32 %s, %s, %s" % (pk(160), pk(s), pk(s + 2))); a("v_pk_add_f32 %s, %s, %s" % (pk(162), pk(u), pk(u + 2)))
        a("v_pk_add_f32 %s, %s, %s" % (pk(160), pk(160), pk(162))); a("v_add_f32 v%d, v160, v161" % (M + b - 1))
    xreduce("v_add_f32")
    for b in range(4): a("v_rcp_f32 v%d, v%d" % (M + b, M + b))
    P = {b: QP[b] for b in range(1, 5)}
    for b in range(1, 5):
        r, sel = bsel(b)
        for s in (S0[b], S1[b]):
            for p in range(2): a("v_pk_mul_f32 %s, %s, %s %s" % (pk(s + 2 * p), pk(s + 2 * p), r, sel))
        pack_pair(a, S0[b], S1[b], P[b])
    a("s_nop 1")
    for b in range(1, 5):
        for cc, o in enumerate((S0[b], S1[b])):
            a("v_mfma_f32_16x16x32_bf16 %s, %s, %s, 0" % (vr(o, 4), vr(VP[cc] + 2 * (b - 1), 4), vr(P[b], 4)))
    a("s_lshl_b32 s%d, s%d, 7" % (S_T0, S_MT)); a("s_lshl_b32 s%d, s%d, 6" % (S_T1, S_WR))
    a("s_add_u32 s%d, s%d, s%d" % (S_T0, S_T0, S_T1)); a("s_lshl_b32 s%d, s%d, 11" % (S_T0, S_T0))
    a("s_lshl_b32 s%d, s%d, 7" % (S_T1, S_NT)); a("s_add_u32 s%d, s%d, s%d" % (S_T0, S_T0, S_T1))
    a("s_lshl_b32 s%d, s%d, 6" % (S_T1, S_WC)); a("s_add_u32 s%d, s%d, s%d" % (S_T0, S_T0, S_T1))
    a("v_lshlrev_b32 v4, 11, v2"); a("v_lshl_add_u32 v4, v3, 4, v4")
    for b in range(1, 5):
        pack_pair(a, S0[b], S1[b], KP[b])
    for b in range(1, 5):
        swap_pair(a, KP[b])
        a("buffer_store_dwordx4 v[%d:%d], v4, s[%d:%d], s%d offen %s" % (KP[b], KP[b] + 3, S_SRDO, S_SRDO + 3, S_T0, c.stfl))
        if b < 4: a("s_add_u32 s%d, s%d, %d" % (S_T0, S_T0, 16 * 2048))

RES = 64
def res_pre(a, c):
    srd(a, S_SRDO, *c.O); srd(a, S_SRDX, *c.R)
    if c.dostats: srd(a, S_SRDY, "ws", WS_STATS, 16 * 2 * 8192)
    if c.touch:
        srd(a, S_SRDA, *c.A); srd(a, S_SRDW, *c.W)
        touches(a, c, *c.touch, vt=110)
    for (ptr, nb) in getattr(c, "head_pf", []): flat_touch(a, c, ptr, nb, 110)
    a("v_and_b32 v80, 15, v1"); a("v_lshrrev_b32 v81, 4, v1")
    a("s_lshl_b32 s%d, s%d, 7" % (S_T0, S_MT)); a("s_lshl_b32 s%d, s%d, 5" % (S_T1, S_WR))
    a("s_add_u32 s%d, s%d, s%d" % (S_T0, S_T0, S_T1)); a("s_lshl_b32 s%d, s%d, 11" % (S_T0, S_T0))
    a("s_lshl_b32 s%d, s%d, 7" % (S_T1, S_NT)); a("s_add_u32 s64, s%d, s%d" % (S_T0, S_T1))
    a("s_add_u32 s65, s64, %d" % (16 * 2048))
    a("v_lshlrev_b32 v82, 11, v80")
    a("v_lshl_add_u32 v83, v81, 3, v82"); a("v_lshl_add_u32 v84, v81, 4, v82")
    for mb in range(2):
        for nb in range(4):
            r = RES + (mb * 4 + nb) * 2
            a("buffer_load_dwordx2 v[%d:%d], v83, s[%d:%d], s%d offen offset:%d" % (r, r + 1, S_SRDX, S_SRDX + 3, 64 + mb, 32 * nb))

def epi_res(a, c):
    a("s_waitcnt vmcnt(0)")
    for mb in range(2):
        for nb in range(4):
            r = RES + (mb * 4 + nb) * 2; x = acc_of(c, mb, nb)
            for d in range(2):
                t = 86 + 2 * d
                a("v_lshlrev_b32 v%d, 16, v%d" % (t, r + d)); a("v_and_b32 v%d, 0xffff0000, v%d" % (t + 1, r + d))
            for d in range(2): a("v_pk_add_f32 %s, %s, %s" % (pk(x + 2 * d), pk(x + 2 * d), pk(86 + 2 * d)))
    T = 92
    for mb in range(2):
        for p in range(2): pack_pair(a, acc_of(c, mb, 2 * p), acc_of(c, mb, 2 * p + 1), T + (mb * 2 + p) * 4)
    if c.dostats:
        a("s_mov_b32 s%d, 0x3f803f80" % S_T0)
        for r in range(108, 112): a("v_mov_b32 v%d, 0" % r)
        for j in range(8):
            for mb in range(2):
                d = T + mb * 8 + j
                a("v_dot2c_f32_bf16 v%d, s%d, v%d" % (108 + 2 * mb, S_T0, d)); a("v_dot2c_f32_bf16 v%d, v%d, v%d" % (109 + 2 * mb, d, d))
    for mb in range(2):
        for p in range(2):
            t = T + (mb * 2 + p) * 4
            swap_pair(a, t)
            a("buffer_store_dwordx4 v[%d:%d], v84, s[%d:%d], s%d offen offset:%d %s" % (t, t + 3, S_SRDO, S_SRDO + 3, 64 + mb, 64 * p, c.stfl))
    if c.dostats:
        a("v_permlane32_swap_b32 v108, v109"); a("v_permlane32_swap_b32 v110, v111"); a("s_nop 0")
        a("v_add_f32 v108, v108, v109"); a("v_add_f32 v110, v110, v111"); a("s_nop 1")
        a("v_permlane16_swap_b32 v108, v110"); a("s_nop 0")
        a("v_add_f32 v108, v108, v110")
        a("v_and_b32 v109, 31, v1"); a("v_lshlrev_b32 v109, 2, v109"); a("v_lshrrev_b32 v110, 5, v1")
        a("v_lshl_add_u32 v109, v110, 13, v109")
        a("s_lshl_b32 s%d, s%d, 14" % (S_T0, S_NT)); a("s_lshl_b32 s%d, s%d, 9" % (S_T1, S_MT)); a("s_add_u32 s%d, s%d, s%d" % (S_T0, S_T0, S_T1))
        a("s_lshl_b32 s%d, s%d, 7" % (S_T1, S_WR)); a("s_add_u32 s%d, s%d, s%d" % (S_T0, S_T0, S_T1))
        a("buffer_store_dword v108, v109, s[%d:%d], s%d offen %s" % (S_SRDY, S_SRDY + 3, S_T0, c.stfl))

def cfg_k24(**kw):
    c = Cfg(segw=[64], col0=[0], cstep=64, wc_bits=0, rowstep=32, mblk=[0, 16],
            wregs=[(0, 0, 0, 0), (0, 0, 1, 0), (0, 0, 2, 0), (0, 0, 3, 0)],
            nblk=[(0, 0, 128), (1, 0, 128), (2, 0, 128), (3, 0, 128)],
            xa=4, xb=8, NS=6, bps=1, ldo=2048, rpm=2, tail_pf=[], touch=None)
    c.mf = [(mb, nb, False) for nb in range(4) for mb in range(2)]
    c.compute_pre = res_pre; c.epilogue = epi_res; c.loader_post = post_with_pf
    c.__dict__.update(kw)
    return c
def cfg_k2(**kw):
    return cfg_k24(name="k2_kernel", K=1024, lda=2048, ldb=2048, A=("ws", WS_O, 4 << 20), W=("wo", 0, 2 << 20),
                   O=("ws", WS_H, 4 << 20), R=("x", 0, 4 << 20), dostats=True, **kw)
def cfg_k4(**kw):
    return cfg_k24(name="k4_kernel", K=3584, lda=7168, ldb=2048, A=("ws", WS_H1, 2048 * 7168), W=("w2", 0, 3584 * 2048),
                   O=("out", 0, 4 << 20), R=("ws", WS_H, 4 << 20), dostats=False, **kw)

def k3_loader_pre(a, c, nout):
    srd(a, S_SRDY, "ws", WS_STATS, 16 * 2 * 8192)
    a("v_and_b32 v100, 31, v1"); a("v_lshlrev_b32 v100, 2, v100"); a("v_lshrrev_b32 v101, 5, v1")
    a("v_lshl_add_u32 v100, v101, 17, v100")
    a("s_lshl_b32 s70, s%d, 9" % S_MT); a("s_lshl_b32 s71, s%d, 7" % S_LW); a("s_add_u32 s70, s70, s71")
    for j in range(8):
        for kind in range(2):
            a("buffer_load_dword v%d, v100, s[%d:%d], s70 offen" % (104 + 2 * j + kind, S_SRDY, S_SRDY + 3))
            if j < 7 or kind == 0: a("s_add_u32 s70, s70, 8192")
    side_setup(a, c)

def k3_loader_mid(a, c):
    for j in range(1, 8):
        a("v_add_f32 v104, v104, v%d" % (104 + 2 * j)); a("v_add_f32 v105, v105, v%d" % (105 + 2 * j))
    a("v_mov_b32 v106, v104"); a("v_mov_b32 v107, v105"); a("s_nop 0")
    a("v_permlane32_swap_b32 v104, v106"); a("v_permlane32_swap_b32 v105, v107"); a("s_nop 0")
    a("v_add_f32 v104, v104, v106"); a("v_add_f32 v105, v105, v107")
    finish_stats(a, 104, 105, 106)
    a("s_mov_b32 s70, 0x3f803f80")
    a("v_and_b32 v100, 31, v1"); a("v_lshlrev_b32 v100, 3, v100"); a("s_lshl_b32 s71, s%d, 8" % S_LW); a("s_add_u32 s71, s71, %d" % auxbase(c))
    a("v_add_u32 v100, s71, v100")
    a("ds_write_b64 v100, v[104:105]")

def pre_k3(a, c):
    srd(a, S_SRDO, *c.O)
    if c.touch:
        srd(a, S_SRDA, *c.A); srd(a, S_SRDW, *c.W)
        touches(a, c, *c.touch)
    for (ptr, nb) in getattr(c, "head_pf", []): flat_touch(a, c, ptr, nb, 160)

def epi_k3(a, c):
    base = auxbase(c)
    AB = 128; CS = 136; E = 8
    a("v_and_b32 v2, 15, v1"); a("v_lshrrev_b32 v3, 4, v1")
    a("s_lshl_b32 s%d, s%d, 9" % (S_T0, S_WR)); a("s_add_u32 s%d, s%d, %d" % (S_T0, S_T0, base))
    a("v_lshlrev_b32 v4, 3, v2"); a("v_add_u32 v4, s%d, v4" % S_T0)
    a("v_lshlrev_b32 v5, 4, v3"); a("v_add_u32 v5, %d, v5" % (base + AUX_CS))
    a("s_lshl_b32 s%d, s%d, 8" % (S_T0, S_WC)); a("v_add_u32 v6, s%d, v5" % S_T0)
    a("s_lshl_b32 s%d, s%d, 7" % (S_T0, S_WC)); a("v_add_u32 v7, s%d, v5" % S_T0)
    a("s_lshl_b32 s%d, s%d, 6" % (S_T0, S_WC)); a("v_add_u32 v8, s%d, v5" % S_T0)
    a("s_waitcnt vmcnt(0)")
    a("s_barrier")
    for mb in range(4): a("ds_read_b64 v[%d:%d], v4 offset:%d" % (AB + 2 * mb, AB + 1 + 2 * mb, 128 * mb))
    for t in range(4): a("ds_read_b128 v[%d:%d], v6 offset:%d" % (CS + 4 * t, CS + 4 * t + 3, 64 * t))
    for t in range(2): a("ds_read_b128 v[%d:%d], v7 offset:%d" % (CS + 16 + 4 * t, CS + 19 + 4 * t, 512 + 64 * t))
    a("ds_read_b128 v[%d:%d], v8 offset:%d" % (CS + 24, CS + 27, 768))
    a("s_lshl_b32 s%d, s%d, 7" % (S_T0, S_MT)); a("s_lshl_b32 s%d, s%d, 6" % (S_T1, S_WR))
    a("s_add_u32 s%d, s%d, s%d" % (S_T0, S_T0, S_T1)); a("s_mul_i32 s%d, s%d, %d" % (S_T0, S_T0, c.ldo))
    a("s_mul_i32 s%d, s%d, 448" % (S_T1, S_NT)); a("s_add_u32 s%d, s%d, s%d" % (S_T0, S_T0, S_T1))
    a("v_mul_u32_u24 v4, %d, v2" % c.ldo); a("v_add_u32 v4, s%d, v4" % S_T0)
    a("v_lshl_add_u32 v9, v3, 4, v4")
    a("s_lshl_b32 s%d, s%d, 7" % (S_T2, S_WC)); a("v_add_u32 v5, s%d, v9" % S_T2)
    a("s_lshl_b32 s%d, s%d, 6" % (S_T2, S_WC)); a("s_add_u32 s%d, s%d, 256" % (S_T2, S_T2)); a("v_add_u32 v6, s%d, v9" % S_T2)
    a("v_and_b32 v7, 1, v3"); a("v_lshl_add_u32 v7, v7, 4, v4"); a("v_lshrrev_b32 v9, 1, v3")
    a("v_mul_u32_u24 v9, %d, v9" % (16 * c.ldo)); a("v_add_u32 v7, v7, v9")
    a("s_lshl_b32 s%d, s%d, 5" % (S_T2, S_WC)); a("s_add_u32 s%d, s%d, 384" % (S_T2, S_T2)); a("v_add_u32 v7, s%d, v7" % S_T2)
    for mb in range(4): a("s_mov_b32 s%d, %d" % (64 + mb, mb * 16 * c.ldo))
    a("s_mov_b32 s68, 0x%x" % f2u(-LOG2E)); a("s_mov_b32 s69, s68")
    a("s_waitcnt lgkmcnt(0)")
    jobs = []
    for mb in range(4):
        jobs.append(((mb, 0), (mb, 1), 5, mb, 0)); jobs.append(((mb, 2), (mb, 3), 5, mb, 64)); jobs.append(((mb, 4), (mb, 5), 6, mb, 0))
    jobs.append(((0, 6), (1, 6), 7, 0, 0)); jobs.append(((2, 6), (3, 6), 7, 2, 0))
    for i, (X, Y, v, mb, imm) in enumerate(jobs):
        prs = []
        for (m, t) in (X, Y):
            x = acc_of(c, m, t)
            for p in range(2): prs.append((x + 2 * p, AB + 2 * m, CS + 4 * t + 2 * p))
        for (x, ab, cs) in prs: a("v_pk_fma_f32 %s, %s, %s, %s op_sel:[0,1,0] op_sel_hi:[1,1,1]" % (pk(x), pk(cs), pk(ab), pk(x)))
        for (x, ab, cs) in prs: a("v_pk_mul_f32 %s, %s, %s op_sel_hi:[1,0]" % (pk(x), pk(x), pk(ab)))
        for j, (x, ab, cs) in enumerate(prs): a("v_pk_mul_f32 %s, %s, s[68:69]" % (pk(E + 2 * j), pk(x)))
        for j in range(8): a("v_exp_f32 v%d, v%d" % (E + j, E + j))
        for j in range(4): a("v_pk_add_f32 %s, %s, 1.0 op_sel_hi:[1,0]" % (pk(E + 2 * j), pk(E + 2 * j)))
        for j in range(8): a("v_rcp_f32 v%d, v%d" % (E + j, E + j))
        for j, (x, ab, cs) in enumerate(prs): a("v_pk_mul_f32 %s, %s, %s" % (pk(x), pk(x), pk(E + 2 * j)))
        t = prs[0][0]
        pack_pair(a, prs[0][0], prs[2][0], t)
        a("s_nop 1")
        swap_pair(a, t)
        a("buffer_store_dwordx4 v[%d:%d], v%d, s[%d:%d], s%d offen offset:%d %s" % (t, t + 3, v, S_SRDO, S_SRDO + 3, 64 + mb, imm, c.stfl))

def cfg_k3(**kw):
    c = Cfg(name="k3_kernel", K=1024, lda=2048, ldb=7168,
            A=("ws", WS_H, 4 << 20), W=("w1", 0, 1024 * 7168), O=("ws", WS_H1, 2048 * 7168),
            segw=[64, 64, 64, 32], col0=[0, 64, 128, 192], cstep=224,
            wc_bits=1, rowstep=64, mblk=[0, 16, 32, 48],
            wregs=[(0, 1, 0, 0), (0, 1, 1, 0), (0, 1, 2, 0), (0, 1, 3, 0), (2, 0, 0, 2), (2, 0, 1, 2), (3, 0, 0, 1)],
            nblk=[(0, 0, 128), (1, 0, 128), (2, 0, 128), (3, 0, 128), (4, 0, 128), (5, 0, 128), (6, 0, 64)],
            xa=8, xb=4, NS=3, bps=2, ldo=7168, rowstats=False, lextra=16, touch=(3, 16), tail_pf=[])
    c.mf = [(mb, nb, False) for nb in range(7) for mb in range(4)]
    c.loader_pre = k3_loader_pre; c.loader_mid = k3_loader_mid; c.loader_stage = side_stage; c.loader_post = post_with_pf
    c.compute_pre = pre_k3; c.epilogue = epi_k3
    c.__dict__.update(kw)
    return c

def pipeline(path, stamps=False, all={}, k1={}, k2={}, k3={}, k4={}):
    d = dict(stamps=stamps); d.update(all)
    c1 = cfg_k1(kidx=0, **{**d, **k1}); c2 = cfg_k2(kidx=1, **{**d, **k2}); c3 = cfg_k3(kidx=2, **{**d, **k3}); c4 = cfg_k4(kidx=3, **{**d, **k4})
    ks = [(c1, gemm_kernel(c1), 256, 168, auxbase(c1) + 4096, 512, 256),
          (c2, gemm_kernel(c2), 256, 160 if not stamps else 160, auxbase(c2), 512, 256),
          (c3, gemm_kernel(c3), 256, 168, auxbase(c3) + 4096, 512, 256),
          (c4, gemm_kernel(c4), 256, 160, auxbase(c4), 512, 256)]
    build(ks, path)

def spf_setup(a, c, nout):
    RA = 128 // c.xb // 4; RW = 64 // c.xa // 4
    NST = nst(c)
    pa, pw = PTR[c.A[0]], PTR[c.W[0]]
    a("s_lshl_b32 s40, s%d, 7" % S_MT); a("s_mul_i32 s41, s%d, %d" % (S_IC, 4 * RA)); a("s_add_u32 s40, s40, s41")
    a("s_mul_i32 s41, s%d, %d" % (S_LW, RA)); a("s_add_u32 s40, s40, s41"); a("s_mul_i32 s40, s40, %d" % c.lda)
    a("s_add_u32 s40, s40, %d" % (c.A[1] + c.spf0 * 128))
    a("s_add_u32 s40, s%d, s40" % pa); a("s_addc_u32 s41, s%d, 0" % (pa + 1))
    a("s_mul_i32 s42, s%d, %d" % (S_IR, 4 * RW)); a("s_mul_i32 s43, s%d, %d" % (S_LW, RW)); a("s_add_u32 s42, s42, s43")
    a("s_add_u32 s42, s42, %d" % (c.spf0 * 64)); a("s_mul_i32 s42, s42, %d" % c.ldb)
    a("s_mul_i32 s43, s%d, %d" % (S_NT, c.cstep * 2)); a("s_add_u32 s42, s42, s43")
    if c.W[1]: a("s_add_u32 s42, s42, %d" % c.W[1])
    a("s_add_u32 s42, s%d, s42" % pw); a("s_addc_u32 s43, s%d, 0" % (pw + 1))
    a("s_mov_b32 s44, %d" % (NST - c.spf0))
    for i in range(c.spfD - c.spf0): spf_stage(a, c)

def spf_stage(a, c):
    RA = 128 // c.xb // 4; RW = 64 // c.xa // 4
    L = a.newlabel("Lspf")
    a("s_cmp_eq_u32 s44, 0"); a("s_cbranch_scc1 %s" % L)
    lines = [0] if len(c.segw) == 1 else ([x * 2 for x in c.col0[:3]] + ([444 & ~3] if len(c.segw) > 3 else []))
    for h in range(c.spfh):
        for r in range(RA): a("s_load_dword s46, s[40:41], %d" % (r * c.lda + 64 * h))
        for r in range(RW):
            for l in lines: a("s_load_dword s46, s[42:43], %d" % (r * c.ldb + l + (64 * h if l < 440 else -64 * h)))
    a("s_add_u32 s40, s40, 128"); a("s_addc_u32 s41, s41, 0")
    a("s_add_u32 s42, s42, %d" % (64 * c.ldb)); a("s_addc_u32 s43, s43, 0")
    a("s_sub_u32 s44, s44, 1")
    a.label(L)
```

```python
from k2 import *
P4 = dict(perm=4, permr=1, permc=1)
pipeline("p10_sc1.s", all=dict(touch=None, **P4), k2=dict(NS=4), k4=dict(NS=4))
pipeline("p10_plain.s", all=dict(touch=None, stfl="", **P4), k2=dict(NS=4), k4=dict(NS=4))
pipeline("p10_k3nt.s", all=dict(touch=None, **P4), k2=dict(NS=4), k3=dict(stfl="nt"), k4=dict(NS=4))
pipeline("p10_lock.s", all=dict(touch=None), k2=dict(NS=4), k4=dict(NS=4))
MB = 1 << 20
pipeline("p10_pf.s", all=dict(touch=None, **P4), k1=dict(tail_pf=[("wo", 2*MB), ("w1", 7*MB)]), k2=dict(NS=4, tail_pf=[("w2", 7*MB)]), k4=dict(NS=4))
```

```python
from asmlib import *
import math, struct
def f2u(x): return struct.unpack("<I", struct.pack("<f", x))[0]
LOG2E = 1.4426950408889634

WS_O = 4 << 20; WS_H = 8 << 20; WS_H1 = 12 << 20
WS_STATS = 28 << 20
WS_RSP = 29 << 20
WS_CSP = 30 << 20
WS_CS1 = 31 << 20
WS_FLAG = 32 << 20
WS_STAMP = 0xF000000

S_SRDA = 4; S_SRDW = 8; S_SRDO = 12; S_SRDX = 16; S_SRDY = 20
S_WAVE = 24; S_MT = 25; S_NT = 26; S_WR = 27; S_WC = 28
S_SOFA = 29; S_SOFW = 30; S_CNT = 31; S_SLOT = 32; S_DELTA = 33
S_T0 = 34; S_T1 = 35; S_T2 = 36; S_T3 = 37; S_SOFH = 38; S_IR = 39
S_BA = 40; S_BW = 41; S_BH = 42; S_PHI = 43
S_KH = 3
S_STAMP = 50
S_IC = 54; S_LW = 55
S_SRDS = 56
S_EXEC = 60
S_FIT = 62; S_DN = 63
S_G = 64
S_SRDP = 72
PTR = dict(x=76, wqkv=78, wo=80, w1=84, w2=86, out=88, dbg=90, ws=92)
S_KS = 94; S_WA = 95; S_WW = 96; S_TAB = 100; S_HM = 27; S_SIG = 28

class Cfg:
    def __init__(self, **kw):
        self.halo = 0; self.NS = 3; self.bps = 2; self.K = 1024
        self.nodma = self.nomfma = self.noread = False
        self.stamps = False; self.kidx = 0; self.trace = False
        self.xa = 8; self.xb = 4; self.splitk = False
        self.fla = ""; self.flw = ""
        self.prio = 0; self.lprio = 2
        self.rpm = 1; self.read_start = 0
        self.ramp = None
        self.stfl = "sc1"
        self.rot = False; self.perm = 0; self.permoff = 2; self.permr = 1; self.permc = 1
        self.special = {}
        self.fused = False; self.dep = None; self.sig = None
        self.flagiter = None
        self.flagshift = 2; self.pollsleep = 2; self.ldsflag = 124000; self.xbar = False; self.sub = 1; self.order = None; self.ones = False
        self.__dict__.update(kw)
    def hook(self, name, *args):
        f = getattr(self, name, None)
        if f: return f(*args)

def srd(a, d, ptr, off, size):
    p = PTR[ptr]
    if off:
        a("s_add_u32 s%d, s%d, 0x%x" % (d, p, off)); a("s_addc_u32 s%d, s%d, 0" % (d + 1, p + 1))
    else:
        a("s_mov_b32 s%d, s%d" % (d, p)); a("s_mov_b32 s%d, s%d" % (d + 1, p + 1))
    a("s_mov_b32 s%d, 0x%x" % (d + 2, size)); a("s_mov_b32 s%d, 0x20000" % (d + 3))

def stamp_w0(a, c, idx, t=128):
    if not c.stamps: return
    L = a.newlabel("Lst")
    a("s_cmp_lg_u32 s%d, 0" % S_WAVE); a("s_cbranch_scc1 %s" % L)
    a("s_memrealtime s[%d:%d]" % (S_STAMP, S_STAMP + 1)); a("s_memtime s[%d:%d]" % (S_STAMP + 2, S_STAMP + 3))
    a("s_waitcnt lgkmcnt(0)")
    for i in range(4): a("v_mov_b32 v%d, s%d" % (t + i, S_STAMP + i))
    a("s_lshl_b32 s%d, s2, 7" % S_STAMP); a("s_add_u32 s%d, s%d, %d" % (S_STAMP, S_STAMP, c.kidx * 512 * 128 + idx * 8))
    a("v_mov_b32 v%d, s%d" % (t + 4, S_STAMP))
    a("s_mov_b64 exec, 1")
    a("buffer_store_dwordx2 v[%d:%d], v%d, s[%d:%d], 0 offen" % (t, t + 1, t + 4, S_SRDS, S_SRDS + 3))
    a("buffer_store_dwordx2 v[%d:%d], v%d, s[%d:%d], 0 offen offset:64" % (t + 2, t + 3, t + 4, S_SRDS, S_SRDS + 3))
    a("s_mov_b64 exec, -1")
    a.label(L)

def trace(a, c):
    if not c.trace: return
    a("s_memtime s[98:99]"); a("s_waitcnt lgkmcnt(0)")
    a("s_mov_b32 m0, s97"); a("v_writelane_b32 v120, s98, m0"); a("s_add_u32 s97, s97, 1"); a("s_min_u32 s97, s97, 63")

def tile_map(a, c):
    xa, xb = c.xa, c.xb
    la, lb = int(math.log2(xa)), int(math.log2(xb))
    a("s_and_b32 s%d, s2, 7" % S_T0); a("s_lshr_b32 s%d, s2, 3" % S_T1)
    a("s_lshr_b32 s%d, s%d, %d" % (S_IR, S_T1, lb)); a("s_and_b32 s%d, s%d, %d" % (S_IC, S_T1, xb - 1))
    if c.splitk:
        a("s_and_b32 s%d, s%d, 1" % (S_KH, S_T0)); a("s_lshr_b32 s%d, s%d, 1" % (S_T0, S_T0))
        a("s_lshl_b32 s%d, s%d, %d" % (S_MT, S_T0, la)); a("s_add_u32 s%d, s%d, s%d" % (S_MT, S_MT, S_IR))
        a("s_mov_b32 s%d, s%d" % (S_NT, S_IC))
        return
    gcols = 16 // xb; lg = int(math.log2(gcols))
    a("s_lshr_b32 s%d, s%d, %d" % (S_T2, S_T0, lg)); a("s_and_b32 s%d, s%d, %d" % (S_T3, S_T0, gcols - 1))
    a("s_lshl_b32 s%d, s%d, %d" % (S_MT, S_T2, la)); a("s_lshl_b32 s%d, s%d, %d" % (S_NT, S_T3, lb))
    a("s_add_u32 s%d, s%d, s%d" % (S_MT, S_MT, S_IR)); a("s_add_u32 s%d, s%d, s%d" % (S_NT, S_NT, S_IC))

def abytes(c): return (128 + c.halo) * 128
def wbytes(c): return sum(64 * w * 2 for w in c.segw)
def subbytes(c): return abytes(c) + wbytes(c)
def slotbytes(c): return c.sub * subbytes(c)
def nst(c): return c.K // 64 // c.sub
def auxbase(c): return c.NS * slotbytes(c)
def segoffs(c):
    o = abytes(c); r = []
    for w in c.segw:
        r.append(o); o += 64 * w * 2
    return r

def record(a, fn, c):
    t = Asm(); t.lbl = a.lbl
    fn(t, c); a.lbl = t.lbl
    groups = []; cur = None
    for l in t.lines:
        s = l.strip()
        if cur is not None:
            cur.append(s)
            if s in ("s_mov_b32 exec_hi, -1", "s_mov_b64 exec, -1"): groups.append(cur); cur = None
        elif s.startswith("s_mov_b32 exec") or s.startswith("s_mov_b64 exec"):
            cur = [s]
        elif (s.startswith("s_addc") or s.startswith("s_cselect") or s.startswith("s_subb")) and groups:
            groups[-1].append(s)
        else:
            groups.append([s])
    assert cur is None
    return groups

LDSFLAG = 163840 - 4 - 16384 - 2048 + 0
def seam_wait(a, c, prev, phase):
    L1 = a.newlabel("Lsw"); L2 = a.newlabel("Lsx"); L3 = a.newlabel("Lsy")
    a("v_mov_b32 v112, %d" % c.ldsflag); a("v_mov_b32 v111, 0"); a("ds_write_b32 v112, v111")
    a("s_waitcnt lgkmcnt(0)")
    a("s_barrier")
    trace(a, c)
    a("s_cmp_lg_u32 s%d, 0" % S_LW); a("s_cbranch_scc1 %s" % L1)
    srd(a, S_SRDP, "ws", WS_FLAG, 16384)
    a("v_mov_b32 v110, 0"); a("v_mov_b32 v111, 1")
    a("s_mov_b64 exec, 1")
    a("buffer_store_dword v111, v110, s[%d:%d], s%d offen sc1" % (S_SRDP, S_SRDP + 3, S_SIG))
    a("s_mov_b64 exec, -1")
    a("s_lshl_b32 s%d, s%d, 8" % (S_T0, S_MT)); a("s_add_u32 s%d, s%d, %d" % (S_T0, S_T0, phase * 4096))
    a("v_and_b32 v110, 15, v1"); a("v_lshlrev_b32 v110, %d, v110" % c.flagshift)
    spin(a, "v111", "v110", S_T0, c.pollsleep)
    a("v_mov_b32 v111, 1"); a("ds_write_b32 v112, v111")
    a("s_branch %s" % L2)
    a.label(L1)
    a("s_mov_b32 s%d, %d" % (S_DN, SPIN * 4))
    a.label(L3)
    a("ds_read_b32 v111, v112"); a("s_sub_u32 s%d, s%d, 1" % (S_DN, S_DN)); a("s_cbranch_scc1 %s" % L2)
    a("s_waitcnt lgkmcnt(0)")
    a("v_cmp_eq_u32 vcc, 0, v111")
    a("s_cbranch_vccnz %s" % L3)
    a.label(L2)

SPIN = 1 << 18
def spin(a, vd, va, soff, sleep=0):
    L = a.newlabel("Lpf"); Le = a.newlabel("Lpe")
    a("s_mov_b32 s%d, %d" % (S_DN, SPIN))
    a.label(L)
    if sleep: a("s_sleep %d" % sleep)
    a("buffer_load_dword %s, %s, s[%d:%d], s%d offen sc1" % (vd, va, S_SRDP, S_SRDP + 3, soff))
    a("s_sub_u32 s%d, s%d, 1" % (S_DN, S_DN))
    a("s_cbranch_scc1 %s" % Le)
    a("s_waitcnt vmcnt(0)")
    a("v_cmp_eq_u32 vcc, 0, %s" % vd)
    a("s_cbranch_vccnz %s" % L)
    a.label(Le)

def loader_setup(a, c):
    W = S_LW
    dmas = []
    a("v_xor_b32 v5, v4, v3"); a("v_mul_u32_u24 v6, %d, v2" % c.lda); a("v_lshl_add_u32 v8, v5, 4, v6")
    a("v_xor_b32 v9, 64, v8"); a("v_add_u32 v9, %d, v9" % (8 * c.lda - 1024))
    a("v_add_u32 v10, %d, v8" % (16 * c.lda - 2048)); a("v_add_u32 v11, %d, v9" % (16 * c.lda - 2048))
    for j in range(4):
        dmas.append(dict(t="A", v=8 + j, srd=S_SRDA, soff=S_SOFA, m0c=c.halo * 128, m0w=4096, imm=1024 * j, half=False, fl=c.fla))
    vn = 12
    a("s_lshl_b32 s%d, s%d, 2" % (S_T0, S_MT)); a("s_add_u32 s%d, s%d, s%d" % (S_T0, S_T0, W))
    a("s_mul_i32 s%d, s%d, %d" % (S_SOFA, S_T0, 32 * c.lda))
    if c.halo:
        a("s_lshl_b32 s%d, s%d, 1" % (S_T1, W))
        a("v_add_u32 v5, s%d, v4" % S_T1); a("v_xor_b32 v5, v5, v3"); a("v_and_b32 v5, 7, v5")
        a("v_lshl_add_u32 v%d, v5, 4, v6" % vn)
        a("s_lshl_b32 s%d, s%d, 5" % (S_T0, S_MT)); a("s_add_u32 s%d, s%d, s%d" % (S_T0, S_T0, W))
        a("s_sub_i32 s%d, s%d, 4" % (S_T0, S_T0)); a("s_max_i32 s%d, s%d, 0" % (S_T0, S_T0))
        a("s_mul_i32 s%d, s%d, %d" % (S_SOFH, S_T0, 4 * c.lda))
        dmas.append(dict(t="A", v=vn, srd=S_SRDA, soff=S_SOFH, m0c=0, m0w=512, imm=0, half=True, fl=c.fla))
        vn += 1
    a("v_and_b32 v5, 1, v4"); a("v_lshlrev_b32 v5, 1, v5"); a("v_xor_b32 v5, v5, v3")
    a("v_mul_u32_u24 v6, %d, v2" % c.ldb); a("v_lshl_add_u32 v6, v5, 4, v6")
    a("v_xor_b32 v7, 64, v6"); a("v_add_u32 v7, %d, v7" % (8 * c.ldb - 1024))
    so = segoffs(c)
    for s, w in enumerate(c.segw):
        if w == 64:
            for j in range(2):
                if c.col0[s] == 0: v = 6 + j
                else:
                    v = vn; vn += 1
                    a("v_add_u32 v%d, %d, v%d" % (v, c.col0[s] * 2, 6 + j))
                dmas.append(dict(t="W", v=v, srd=S_SRDW, soff=S_SOFW, m0c=so[s], m0w=2048, imm=1024 * j, half=False, fl=c.flw))
        else:
            a("v_lshrrev_b32 v5, 2, v1"); a("v_mul_u32_u24 v5, %d, v5" % c.ldb)
            a("v_lshrrev_b32 v%d, 5, v1" % vn); a("v_lshlrev_b32 v%d, 1, v%d" % (vn, vn)); a("v_xor_b32 v%d, v%d, v1" % (vn, vn))
            a("v_and_b32 v%d, 3, v%d" % (vn, vn)); a("v_lshl_add_u32 v%d, v%d, 4, v5" % (vn, vn))
            a("v_add_u32 v%d, %d, v%d" % (vn, c.col0[s] * 2, vn))
            dmas.append(dict(t="W", v=vn, srd=S_SRDW, soff=S_SOFW, m0c=so[s], m0w=1024, imm=0, half=False, fl=c.flw))
            vn += 1
    a("s_mul_i32 s%d, s%d, %d" % (S_SOFW, W, 16 * c.ldb))
    a("s_mul_i32 s%d, s%d, %d" % (S_T0, S_NT, c.cstep * 2)); a("s_add_u32 s%d, s%d, s%d" % (S_SOFW, S_SOFW, S_T0))
    if c.splitk:
        a("s_mul_i32 s%d, s%d, %d" % (S_T0, S_KH, c.K * 2)); a("s_add_u32 s%d, s%d, s%d" % (S_SOFA, S_SOFA, S_T0))
        a("s_mul_i32 s%d, s%d, %d" % (S_T0, S_KH, c.K * c.ldb)); a("s_add_u32 s%d, s%d, s%d" % (S_SOFW, S_SOFW, S_T0))
    if c.sub == 2:
        ex = []
        for d in dmas:
            e = dict(d); e["v"] = vn; vn += 1; e["m0c"] = d["m0c"] + subbytes(c)
            a("v_add_u32 v%d, %d, v%d" % (e["v"], 128 if d["t"] == "A" else 64 * c.ldb, d["v"]))
            ex.append(e)
        dmas += ex
    assert vn <= 24
    groups = []
    for d in dmas:
        key = (d["m0c"], d["m0w"])
        if key not in groups: groups.append(key)
        d["g"] = groups.index(key)
    assert len(groups) <= 6
    for g, (m0c, m0w) in enumerate(groups):
        a("s_mul_i32 s%d, s%d, %d" % (S_G + g, W, m0w))
        if m0c: a("s_add_u32 s%d, s%d, %d" % (S_G + g, S_G + g, m0c))
    a("s_mov_b32 s%d, s%d" % (S_BA, S_SOFA)); a("s_mov_b32 s%d, s%d" % (S_BW, S_SOFW))
    if c.halo:
        a("s_mov_b32 s%d, s%d" % (S_BH, S_SOFH))
        if c.ones:
            a("s_cmp_eq_u32 s%d, 0" % W); a("s_cselect_b32 s%d, 0xffffff00, -1" % S_HM)
    if c.order == "rot": a("s_add_u32 s%d, s%d, s%d" % (S_PHI, S_MT, S_NT))
    elif c.order == "class":
        a("s_add_u32 s%d, s%d, s%d" % (S_PHI, S_IR, S_IC)); a("s_and_b32 s%d, s%d, 3" % (S_PHI, S_PHI))
        for cl in range(4):
            tb = class_table(nst(c), c.permoff, cl)
            if cl == 0:
                a("s_mov_b32 s%d, 0x%x" % (S_TAB, tb & 0xffffffff)); a("s_mov_b32 s%d, 0x%x" % (S_TAB + 1, tb >> 32))
            else:
                a("s_cmp_eq_u32 s%d, %d" % (S_PHI, cl))
                a("s_cselect_b32 s%d, 0x%x, s%d" % (S_TAB, tb & 0xffffffff, S_TAB)); a("s_cselect_b32 s%d, 0x%x, s%d" % (S_TAB + 1, tb >> 32, S_TAB + 1))
    c.dmas = dmas; c.ndma = len(dmas)

def class_table(N, po, cl):
    M = N - po
    key = lambda X: X - 4.5 if (X % 4 == cl and X >= 4) else X
    seq = list(range(po)) + [po + X for X in sorted(range(M), key=key)]
    tb = 0
    for p, s in enumerate(seq):
        code = {-1: 0, 0: 1, 3: 2, 4: 3}[s - p]
        tb |= code << (2 * p)
    assert sorted(seq) == list(range(N)) and tb < (1 << 64)
    return tb

def loader_run(a, c):
    NS = c.NS; NST = nst(c); SL = slotbytes(c); dmas = c.dmas; n = len(dmas)
    ka, kw = 128 * c.sub, 64 * c.sub * c.ldb
    def head(lock=False):
        if c.order == "rot":
            a("s_add_u32 s%d, s%d, s%d" % (S_WA, S_KS, S_PHI)); a("s_and_b32 s%d, s%d, %d" % (S_WA, S_WA, NST - 1))
        elif c.order == "class" and not lock:
            a("s_and_b32 s%d, s%d, 1" % (S_WA, S_TAB)); a("s_and_b32 s%d, s%d, 2" % (S_WW, S_TAB)); a("s_lshl1_add_u32 s%d, s%d, s%d" % (S_WA, S_WW, S_WA))
            a("s_add_u32 s%d, s%d, s%d" % (S_WA, S_WA, S_KS)); a("s_sub_u32 s%d, s%d, 1" % (S_WA, S_WA))
            a("s_lshr_b64 s[%d:%d], s[%d:%d], 2" % (S_TAB, S_TAB + 1, S_TAB, S_TAB + 1))
        else:
            a("s_mov_b32 s%d, s%d" % (S_WA, S_KS))
        a("s_mul_i32 s%d, s%d, %d" % (S_WW, S_WA, kw)); a("s_mul_i32 s%d, s%d, %d" % (S_WA, S_WA, ka))
        a("s_add_u32 s%d, s%d, s%d" % (S_SOFA, S_BA, S_WA)); a("s_add_u32 s%d, s%d, s%d" % (S_SOFW, S_BW, S_WW))
        if c.halo: a("s_add_u32 s%d, s%d, s%d" % (S_SOFH, S_BH, S_WA))
        a("s_add_u32 s%d, s%d, 1" % (S_KS, S_KS))
    def tail():
        a("s_add_u32 s%d, s%d, %d" % (S_SLOT, S_SLOT, SL)); a("s_cmp_eq_u32 s%d, %d" % (S_SLOT, NS * SL)); a("s_cselect_b32 s%d, 0, s%d" % (S_SLOT, S_SLOT))
    def setm0(d): a("s_add_u32 m0, s%d, s%d" % (S_SLOT, S_G + d["g"]))
    def one(d, cur):
        if c.nodma: return d["g"]
        if d["g"] != cur:
            setm0(d)
            if not d["half"]: a("s_nop 0")
        if d["half"]:
            a("s_mov_b32 exec_hi, 0")
            if c.ones: a("s_mov_b32 exec_lo, s%d" % S_HM)
        a("buffer_load_dwordx4 v%d, s[%d:%d], s%d offen offset:%d %s lds" % (d["v"], d["srd"], d["srd"] + 3, d["soff"], d["imm"], d["fl"]))
        if d["half"]: a("s_mov_b64 exec, -1")
        return d["g"]
    def emit(i0, i1, fill=(), m0ok=True):
        fill = list(fill); k = i1 - i0
        cur = dmas[i0 % n]["g"] if m0ok else None
        for t, i in enumerate(range(i0, i1)):
            j = i % n
            cur = one(dmas[j], cur)
            if j == n - 1:
                tail(); head(); cur = None
            take = -(-len(fill) // (k - t))
            for g in fill[:take]:
                for l in g: a(l)
            fill = fill[take:]
        if dmas[i1 % n]["g"] != cur: setm0(dmas[i1 % n])
    ops = []
    a("s_mov_b32 s%d, 0" % S_SLOT); a("s_mov_b32 s%d, 0" % S_KS)
    if c.dep is None:
        ramp = c.ramp or [2 * n]
        pos = ramp[0]
        head(); emit(0, pos, m0ok=False)
        ops = [(i // n, 1) for i in range(pos)]
    else:
        P = 2
        for typ in ("W", "A"):
            if typ == "A":
                c.hook("loader_wait", a, c)
                c.dep(a, c)
                trace(a, c)
                a("s_mov_b32 s%d, 0" % S_SLOT); a("s_mov_b32 s%d, 0" % S_KS)
            for st in range(P):
                head(lock=(typ == "W")); cur = None
                for d in dmas:
                    if d["t"] == typ:
                        cur = one(d, cur)
                        if typ == "A": ops.append((st, 1))
                tail()
        head(); setm0(dmas[0])
        pos = P * n; ramp = [pos]
    m0dirty = False
    for (when, fn, nvm) in c.special.get(-1, []):
        fn(a, c); ops.append((None, nvm))
    plan = []
    for s in range(NST):
        idx = max(i for i, (st, k) in enumerate(ops) if st == s)
        w = sum(k for st, k in ops[idx + 1:])
        limit = min((NS - 1 if s == 0 else s - 1 + NS) + 1, NST) * n
        want = ramp[s + 1] if s + 1 < len(ramp) else (n if NS == 3 else 2 * n)
        k = max(0, min(want, limit - pos))
        sp = c.special.get(s, [])
        for (when, fn, nvm) in sp:
            if when != "post": ops.append((None, nvm))
        for i in range(pos, pos + k): ops.append((i // n, 1))
        for (when, fn, nvm) in sp:
            if when == "post": ops.append((None, nvm))
        plan.append((min(w, 63), pos % n, k, s if sp else None))
        pos += k
    i = 0
    while i < NST:
        j = i
        while j + 1 < NST and plan[j + 1] == plan[i] and plan[i][2] % n == 0: j += 1
        w, p0, k, sp = plan[i]
        def body(loopctl=()):
            trace(a, c)
            a("s_waitcnt vmcnt(%d)" % w)
            trace(a, c)
            a("s_barrier")
            trace(a, c)
            acts = c.special.get(sp, [])
            for (when, fn, nvm) in acts:
                if when == "pre": fn(a, c)
            fill = []
            for (when, fn, nvm) in acts:
                if when == "weave": fill += record(a, fn, c)
            if k: emit(p0, p0 + k, fill, m0ok=not c.trace)
            else:
                for g in fill:
                    for l in g: a(l)
            for (when, fn, nvm) in acts:
                if when == "post": fn(a, c)
        if j > i:
            L = a.newlabel("Lld"); a("s_mov_b32 s%d, %d" % (S_CNT, j - i + 1)); a.label(L)
            body()
            a("s_sub_u32 s%d, s%d, 1" % (S_CNT, S_CNT)); a("s_cmp_lg_u32 s%d, 0" % S_CNT); a("s_cbranch_scc1 %s" % L)
        else: body()
        i = j + 1
    trace(a, c)
    a("s_barrier")
    trace(a, c)

def trace_dump(a, c):
    if not c.trace: return
    trace(a, c)
    srd(a, S_SRDS, "ws", WS_STAMP + (1 << 20), 1 << 20)
    a("s_lshl_b32 s97, s2, 2"); a("s_add_u32 s97, s97, s%d" % S_LW); a("s_lshl_b32 s97, s97, 8"); a("s_add_u32 s97, s97, %d" % (c.kidx << 18))
    a("v_lshlrev_b32 v121, 2, v1")
    a("buffer_store_dword v120, v121, s[%d:%d], s97 offen" % (S_SRDS, S_SRDS + 3))
    a("s_mov_b32 s97, 0")

V_ADDR = 2
V_ACC = 16

def compute_setup(a, c):
    a("v_and_b32 v10, 15, v1"); a("v_lshrrev_b32 v11, 4, v1")
    a("v_bfe_u32 v12, v10, 1, 3"); a("v_xor_b32 v12, v12, v11"); a("v_lshlrev_b32 v12, 4, v12")
    a("v_lshl_add_u32 v13, v10, 7, v12")
    for i, fn in enumerate(c.aregs):
        fn(a, S_T0)
        a("v_add_u32 v%d, s%d, v13" % (V_ADDR + 2 * i, S_T0)); a("v_xor_b32 v%d, 64, v%d" % (V_ADDR + 2 * i + 1, V_ADDR + 2 * i))
    nA = 2 * len(c.aregs)
    a("v_bfe_u32 v12, v1, 2, 2"); a("v_lshl_add_u32 v12, v11, 3, v12")
    a("v_bfe_u32 v13, v1, 1, 1"); a("v_and_b32 v14, 1, v1"); a("v_lshlrev_b32 v14, 3, v14")
    a("v_bfe_u32 v15, v1, 3, 2"); a("v_lshlrev_b32 v15, 1, v15"); a("v_xor_b32 v15, v15, v13")
    a("v_lshl_add_u32 v15, v15, 4, v14"); a("v_lshl_add_u32 v15, v12, 7, v15")
    if 32 in c.segw:
        a("v_bfe_u32 v11, v1, 4, 1"); a("v_lshlrev_b32 v11, 1, v11"); a("v_xor_b32 v11, v11, v13")
        a("v_lshl_add_u32 v11, v11, 4, v14"); a("v_lshl_add_u32 v11, v12, 6, v11")
    so = segoffs(c)
    for i, (seg, segwc, pc, pwc) in enumerate(c.wregs):
        src = 15 if c.segw[seg] == 64 else 11
        d = V_ADDR + nA + i
        assert d < 11 or (d == 11 and i == len(c.wregs) - 1), d
        if callable(pwc):
            pwc(a, S_T0); a("v_xor_b32 v%d, s%d, v%d" % (d, S_T0, src))
        elif pwc:
            a("s_mul_i32 s%d, s%d, %d" % (S_T0, S_WC, pwc * 32))
            if pc: a("s_add_u32 s%d, s%d, %d" % (S_T0, S_T0, pc * 32))
            a("v_xor_b32 v%d, s%d, v%d" % (d, S_T0, src))
        else: a("v_xor_b32 v%d, %d, v%d" % (d, pc * 32, src))
        if segwc:
            a("s_mul_i32 s%d, s%d, %d" % (S_T0, S_WC, segwc * 8192)); a("s_add_u32 s%d, s%d, %d" % (S_T0, S_T0, so[seg]))
            a("v_add_u32 v%d, s%d, v%d" % (d, S_T0, d))
        else: a("v_add_u32 v%d, %d, v%d" % (d, so[seg], d))
    c.nA = nA; c.naddr = nA + len(c.wregs)

def frag_regs(c):
    MB = len(c.mblk); NB = len(c.nblk); kpb = c.sub
    per = (MB + NB) * 4 * kpb
    return (lambda s, kk, mb: s * per + (kk * (MB + NB) + mb) * 4), (lambda s, kk, nb: s * per + (kk * (MB + NB) + MB + nb) * 4), 2 * per

def fr(i, n):
    return ar(i, n) if i < 88 else vr(140 + i - 88, n)

def reads(c, s, blk):
    fa, fw, _ = frag_regs(c); out = []
    lst = [(0, blk, 0)] if c.sub == 1 else [(0, 0, blk * subbytes(c)), (1, 1, blk * subbytes(c))]
    for kk, kabs, so in lst:
        for mb, (ap, row) in enumerate(c.mblk):
            out.append("ds_read_b128 %s, v%d offset:%d" % (fr(fa(s, kk, mb), 4), V_ADDR + 2 * ap + kabs, so + row * 128))
        for nb, (wreg, immseg, rs) in enumerate(c.nblk):
            for h in range(2):
                out.append("ds_read_b64_tr_b16 %s, v%d offset:%d" % (fr(fw(s, kk, nb) + 2 * h, 2), V_ADDR + c.nA + wreg, so + immseg + (32 * kabs + 4 * h) * rs))
    return [] if c.noread else out

def mfmas(c, s):
    fa, fw, _ = frag_regs(c); out = []
    for kk in range(c.sub):
        for i, (mb, nb, swap) in enumerate(c.mf):
            acc = vr(V_ACC + 4 * i, 4)
            A, B = fr(fw(s, kk, nb), 4), fr(fa(s, kk, mb), 4)
            if swap: A, B = B, A
            out.append("v_mfma_f32_16x16x32_bf16 %s, %s, %s, %s" % (acc, A, B, acc))
    return [] if c.nomfma else out

def weave(main, first, rest, rpm, start=0):
    out = []; q = list(first); r = list(rest)
    for i, m in enumerate(main):
        out.append(m)
        if i < start: continue
        if q:
            for _ in range(rpm):
                if q: out.append(q.pop(0))
        elif r: out.append(r.pop(0))
    return out + q + r

def compute_loop(a, c):
    NST = nst(c); SL = slotbytes(c); NS = c.NS
    for i in range(0, len(c.mf) * 4, 2): a("v_mov_b64 v[%d:%d], 0" % (V_ACC + i, V_ACC + i + 1))
    a("s_mov_b32 s%d, 0" % S_SLOT); a("s_mov_b32 s%d, %d" % (S_T2, SL)); a("s_mov_b32 s%d, %d" % (S_T3, (-(NS - 1) * SL) & 0xffffffff))
    if c.prio: a("s_setprio %d" % c.prio)
    adv_s = ["s_add_u32 s%d, s%d, %d" % (S_SLOT, S_SLOT, SL), "s_cmp_eq_u32 s%d, %d" % (S_SLOT, NS * SL),
             "s_cselect_b32 s%d, s%d, s%d" % (S_DELTA, S_T3, S_T2), "s_cselect_b32 s%d, 0, s%d" % (S_SLOT, S_SLOT)]
    adv_v = ["v_add_u32 v%d, s%d, v%d" % (V_ADDR + i, S_DELTA, V_ADDR + i) for i in range(c.naddr)]
    cnt = ["s_sub_u32 s%d, s%d, 1" % (S_CNT, S_CNT), "s_cmp_lg_u32 s%d, 0" % S_CNT]
    L = a.newlabel("Lc")
    flag = []
    if c.flagiter:
        Lf, Lb = a.newlabel("Lfg"), a.newlabel("Lfb")
        a("s_mov_b32 s%d, %d" % (S_FIT, c.flagiter[0]))
        flag = ["s_cmp_eq_u32 s%d, s%d\ns_cbranch_scc1 %s\n%s:" % (S_CNT, S_FIT, Lf, Lb)]
    def emit(l):
        for x in l: a(x)
    stamp_w0(a, c, 1)
    a("s_barrier")
    stamp_w0(a, c, 2)
    emit(reads(c, 0, 0))
    a("s_mov_b32 s%d, %d" % (S_CNT, NST))
    a.label(L)
    a("s_waitcnt lgkmcnt(0)")
    emit(weave(mfmas(c, 0), reads(c, 1, 1), adv_s + adv_v, c.rpm, c.read_start))
    a("s_waitcnt lgkmcnt(0)"); a("s_barrier")
    emit(weave(mfmas(c, 1), reads(c, 0, 0), flag + cnt, c.rpm, c.read_start))
    a("s_cbranch_scc1 %s" % L)
    a("s_waitcnt lgkmcnt(0)")
    if c.prio: a("s_setprio 0")
    if c.xbar and not getattr(c, "own_xbar", False): a("s_barrier")
    a("s_nop 7")
    stamp_w0(a, c, 3)
    if c.flagiter:
        c.outofline = (Lf, Lb)

def out_of_line(a, c):
    if c.flagiter:
        Lf, Lb = c.outofline
        a.label(Lf); c.flagiter[1](a, c); a("s_branch %s" % Lb)

def signal(a, c):
    a("s_waitcnt vmcnt(0)")
    if c.sig is not None: a("s_barrier")

def sig_addr(a, c):
    a("s_lshl_b32 s%d, s%d, 8" % (S_SIG, S_MT)); a("s_lshl_b32 s%d, s%d, %d" % (S_T0, S_NT, c.flagshift)); a("s_add_u32 s%d, s%d, s%d" % (S_SIG, S_SIG, S_T0))
    a("s_add_u32 s%d, s%d, %d" % (S_SIG, S_SIG, c.sig * 4096))

def emit_kernel(name, phases):
    a = Asm(); a.lbl = phases[0].kidx * 1000
    a.lines.append(kernel_header(name).rstrip())
    a("s_cmp_ge_u32 s2, 256"); a("s_cbranch_scc1 %s_end" % name)
    a("s_load_dwordx16 s[76:91], s[0:1], 0"); a("s_load_dwordx2 s[92:93], s[0:1], 64")
    a("v_lshrrev_b32 v1, 6, v0")
    tile_map(a, phases[0])
    a("v_readfirstlane_b32 s%d, v1" % S_WAVE)
    a("v_and_b32 v1, 63, v0")
    a("s_cmp_ge_u32 s%d, 4" % S_WAVE); a("s_cbranch_scc1 %s_loader" % name)
    for i, c in enumerate(phases):
        a.label("%s_c" % c.name)
        if i: tile_map(a, c)
        a("s_lshr_b32 s%d, s%d, %d" % (S_WR, S_WAVE, c.wc_bits)); a("s_and_b32 s%d, s%d, %d" % (S_WC, S_WAVE, (1 << c.wc_bits) - 1))
        compute_setup(a, c)
        if i == 0:
            a("s_waitcnt lgkmcnt(0)")
            if c.stamps: srd(a, S_SRDS, "ws", WS_STAMP, 1 << 20)
        stamp_w0(a, c, 0)
        c.hook("compute_pre", a, c)
        compute_loop(a, c)
        a.label("%s_epi" % c.name)
        c.epilogue(a, c)
        if c.stamps:
            a("s_waitcnt vmcnt(0)"); stamp_w0(a, c, 4)
        if c.sig is not None: signal(a, c)
    a("s_endpgm")
    for c in phases: out_of_line(a, c)
    a.label("%s_loader" % name)
    a("s_sub_u32 s%d, s%d, 4" % (S_LW, S_WAVE))
    a("v_lshrrev_b32 v2, 3, v1"); a("v_and_b32 v3, 7, v1"); a("v_lshrrev_b32 v4, 4, v1")
    for i, c in enumerate(phases):
        a.label("%s_l" % c.name)
        if i:
            sig_addr(a, phases[i - 1]); tile_map(a, c)
        if c.trace:
            a("s_mov_b32 s97, 0"); a("v_mov_b32 v120, 0"); trace(a, c)
        loader_setup(a, c)
        if i == 0:
            a("s_waitcnt lgkmcnt(0)")
            if c.lprio: a("s_setprio %d" % c.lprio)
        srd(a, S_SRDA, *c.A); srd(a, S_SRDW, *c.W)
        if i and phases[i - 1].xbar: a("s_barrier")
        loader_run(a, c)
        if i == len(phases) - 1:
            if c.xbar: a("s_barrier")
            c.hook("loader_post", a, c)
        trace_dump(a, c)
    a.label("%s_end" % name)
    a("s_endpgm")
    a.label("%s_last" % name)
    return a.text()

def code_touch(a, start, end, vt, maxbytes):
    L = a.newlabel("Lpc")
    a("s_getpc_b64 s[48:49]")
    a.label(L)
    a("s_sub_u32 s48, s48, %s-%s" % (L, start)); a("s_subb_u32 s49, s49, 0")
    n = -(-maxbytes // 8192)
    for t in range(n):
        a("v_lshlrev_b32 v%d, 7, v1" % vt)
        if t: a("v_add_u32 v%d, %d, v%d" % (vt, 8192 * t, vt))
        a("v_min_u32 v%d, %s-%s-4, v%d" % (vt, end, start, vt))
        a("global_load_dword v%d, v%d, s[48:49]" % (vt + 1, vt))
    return n

def pk(x): return "v[%d:%d]" % (x, x + 1)
def pack_pair(a, x, y, t):
    a("v_cvt_pk_bf16_f32 v%d, v%d, v%d" % (t, x, x + 1)); a("v_cvt_pk_bf16_f32 v%d, v%d, v%d" % (t + 1, x + 2, x + 3))
    a("v_cvt_pk_bf16_f32 v%d, v%d, v%d" % (t + 2, y, y + 1)); a("v_cvt_pk_bf16_f32 v%d, v%d, v%d" % (t + 3, y + 2, y + 3))
def swap_pair(a, t):
    a("v_permlane32_swap_b32 v%d, v%d" % (t, t + 2)); a("v_permlane32_swap_b32 v%d, v%d" % (t + 1, t + 3))
    a("s_nop 0")
    a("v_permlane16_swap_b32 v%d, v%d" % (t, t + 2)); a("v_permlane16_swap_b32 v%d, v%d" % (t + 1, t + 3))
def acc_of(c, mb, nb):
    for i, (m, n, s) in enumerate(c.mf):
        if m == mb and n == nb: return V_ACC + 4 * i
    raise KeyError

def build(kernels, path):
    hdr = "".join("; @launch kernel=%s grid=(256,1,1) block=(512,1,1) lds=%d\n" % (k[0], k[4]) for k in kernels)
    if len(kernels) == 1 and kernels[0][0].startswith("sequential"):
        hdr = "; @launch grid=(256,1,1) block=(512,1,1) lds=%d\n" % kernels[0][4]
    s = hdr + '.amdgcn_target "amdgcn-amd-amdhsa--gfx950"\n.text\n'
    for k in kernels: s += k[1]
    s += '.section .rodata,"a"\n'
    for k in kernels: s += kernel_desc(k[0], k[2], k[3])
    open(path, "w").write(s)
```

```python
from g6 import *

def rows_wr(mult, add=0):
    def f(a, d):
        a("s_mul_i32 s%d, s%d, %d" % (d, S_WR, mult * 128))
        if add: a("s_add_u32 s%d, s%d, %d" % (d, d, add * 128))
    return f
def rows_zero(a, d): a("s_mov_b32 s%d, 0" % d)

def trlane(a, d, t):
    a("v_bfe_u32 v%d, v1, 4, 1" % t); a("v_lshlrev_b32 v%d, 3, v%d" % (t, t))
    a("v_bfe_u32 v%d, v1, 5, 1" % (t + 1)); a("v_lshl_add_u32 v%d, v%d, 2, v%d" % (t, t + 1, t))
    a("v_bfe_u32 v%d, v1, 2, 2" % (t + 1)); a("v_add_u32 v%d, v%d, v%d" % (t, t, t + 1))
    a("v_bfe_u32 v%d, v1, 3, 2" % (t + 1)); a("v_lshlrev_b32 v%d, 1, v%d" % (t + 1, t + 1))
    a("v_bfe_u32 v%d, v1, 1, 1" % (t + 2)); a("v_xor_b32 v%d, v%d, v%d" % (t + 1, t + 1, t + 2))
    a("v_and_b32 v%d, 1, v1" % (t + 2)); a("v_lshlrev_b32 v%d, 3, v%d" % (t + 2, t + 2))
    a("v_lshl_add_u32 v%d, v%d, 4, v%d" % (t + 1, t + 1, t + 2)); a("v_lshl_add_u32 v%d, v%d, 7, v%d" % (d, t, t + 1))

def reduce4(a, X):
    a("s_nop 1")
    a("v_permlane32_swap_b32 v%d, v%d" % (X[0], X[2])); a("v_permlane32_swap_b32 v%d, v%d" % (X[1], X[3])); a("s_nop 0")
    a("v_add_f32 v%d, v%d, v%d" % (X[0], X[0], X[2])); a("v_add_f32 v%d, v%d, v%d" % (X[1], X[1], X[3])); a("s_nop 1")
    a("v_permlane16_swap_b32 v%d, v%d" % (X[0], X[1])); a("s_nop 0")
    a("v_add_f32 v%d, v%d, v%d" % (X[0], X[0], X[1]))

def finish_stats(a, s, q, t):
    a("v_mul_f32 v%d, 0x%x, v%d" % (s, f2u(1.0 / 1024), s)); a("v_mul_f32 v%d, 0x%x, v%d" % (q, f2u(1.0 / 1024), q))
    a("v_fma_f32 v%d, -v%d, v%d, v%d" % (q, s, s, q)); a("v_max_f32 v%d, 0, v%d" % (q, q))
    a("v_cvt_pk_bf16_f32 v%d, v%d, v%d" % (t, s, q))
    a("v_lshlrev_b32 v%d, 16, v%d" % (t + 1, t)); a("v_and_b32 v%d, 0xffff0000, v%d" % (q, t))
    a("v_add_f32 v%d, 0x%x, v%d" % (q, f2u(1e-5), q)); a("v_cvt_pk_bf16_f32 v%d, v%d, v%d" % (t, q, q)); a("v_and_b32 v%d, 0xffff0000, v%d" % (q, t))
    a("v_sqrt_f32 v%d, v%d" % (q, q)); a("s_nop 0"); a("v_cvt_pk_bf16_f32 v%d, v%d, v%d" % (t, q, q)); a("v_and_b32 v%d, 0xffff0000, v%d" % (q, t))
    a("v_rcp_f32 v%d, v%d" % (s, q)); a("v_sub_f32 v%d, 0, v%d" % (q, t + 1))

def flat_touch(a, c, ptr, nbytes, vt):
    srd(a, S_SRDP, ptr, 0, nbytes)
    per = nbytes // 1024
    a("s_lshl_b32 s%d, s2, 2" % S_T0); a("s_add_u32 s%d, s%d, s%d" % (S_T0, S_T0, S_LW)); a("s_mul_i32 s%d, s%d, %d" % (S_T0, S_T0, per))
    a("v_min_u32 v%d, %d, v1" % (vt, per // 128 - 1)); a("v_lshlrev_b32 v%d, 7, v%d" % (vt, vt))
    a("buffer_load_dword v%d, v%d, s[%d:%d], s%d offen" % (vt + 1, vt, S_SRDP, S_SRDP + 3, S_T0))
def tail_pf(a, c):
    for (ptr, nb) in c.tail_pf: flat_touch(a, c, ptr, nb, 98)
    for cp in c.codepf: code_touch(a, *cp)
def n_tail(c): return len(c.tail_pf) + sum(-(-cp[3] // 8192) for cp in c.codepf)

def cnt_add(a, word, sreg):
    a("s_mov_b32 s%d, 1" % sreg)
    a("s_atomic_add s%d, s[%d:%d], %d" % (sreg, PTR["dbg"], PTR["dbg"] + 1, 4 * word))
def cnt_poll(word, v=44):
    def f(a, c):
        srd(a, S_SRDP, "dbg", 0, 256)
        a("v_mov_b32 v%d, %d" % (v + 2, 4 * word))
        a("buffer_load_dword v%d, v%d, s[%d:%d], 0 offen sc1" % (v, v + 2, S_SRDP, S_SRDP + 3))
    return f
def cnt_check(a, v=44):
    L = a.newlabel("Lpo"); Ld = a.newlabel("Lpd")
    a("s_mov_b32 s%d, %d" % (S_DN, SPIN))
    a.label(L)
    a("v_cmp_gt_u32 vcc, 0x100, v%d" % v)
    a("s_cbranch_vccz %s" % Ld)
    a("s_sub_u32 s%d, s%d, 1" % (S_DN, S_DN)); a("s_cbranch_scc1 %s" % Ld)
    a("s_sleep 4")
    a("buffer_load_dword v%d, v%d, s[%d:%d], 0 offen sc1" % (v, v + 2, S_SRDP, S_SRDP + 3))
    a("s_waitcnt vmcnt(0)")
    a("s_branch %s" % L)
    a.label(Ld)

AUX1_W1 = 2048
XCH = 98304
def k1_setup(a, c):
    srd(a, S_SRDX, "ws", WS_RSP, 2048 * 8)
    a("v_mov_b32 v46, 0x3f803f80"); a("v_and_b32 v47, 31, v1"); a("v_lshlrev_b32 v47, 2, v47")
    a("ds_write_b32 v47, v46"); a("ds_write_b32 v47, v46 offset:%d" % slotbytes(c))
    a("v_add_u32 v47, %d, v47" % (2 * slotbytes(c))); a("ds_write_b32 v47, v46")
    a("s_waitcnt lgkmcnt(0)")
def rows_load(a, c):
    srd(a, S_SRDX, "x", 0, 4 << 20)
    a("s_lshl_b32 s40, s2, 2"); a("s_add_u32 s40, s40, s%d" % S_WAVE); a("s_lshl_b32 s41, s40, 12"); a("s_lshl_b32 s40, s40, 4")
    a("v_lshlrev_b32 v47, 4, v1")
    for i in range(4): a("buffer_load_dwordx4 v[%d:%d], v47, s[%d:%d], s41 offen offset:%d" % (48 + 4 * i, 51 + 4 * i, S_SRDX, S_SRDX + 3, 1024 * i))
    a("s_mov_b32 s42, s40")
def rows_pub(a, c):
    a("s_waitcnt vmcnt(0)")
    for r in range(2):
        S, Q = 28 + 8 * r, 32 + 8 * r
        for d in range(8):
            x = 48 + 8 * r + d; t = 64 + 2 * (d & 3); e = 2 * (d & 1)
            a("v_lshlrev_b32 v%d, 16, v%d" % (t, x)); a("v_and_b32 v%d, 0xffff0000, v%d" % (t + 1, x))
            if d < 2:
                a("v_mov_b64 %s, %s" % (pk(S + e), pk(t))); a("v_pk_mul_f32 %s, %s, %s" % (pk(Q + e), pk(t), pk(t)))
            else:
                a("v_pk_add_f32 %s, %s, %s" % (pk(S + e), pk(S + e), pk(t))); a("v_pk_fma_f32 %s, %s, %s, %s" % (pk(Q + e), pk(t), pk(t), pk(Q + e)))
    for S in (28, 32, 36, 40): a("v_pk_add_f32 %s, %s, %s" % (pk(S), pk(S), pk(S + 2)))
    for S in (28, 36, 32, 40): a("v_add_f32 v%d, v%d, v%d" % (S, S, S + 1))
    srd(a, S_SRDX, "ws", WS_RSP, 2048 * 8)
    a("v_permlane32_swap_b32 v28, v36"); a("v_permlane32_swap_b32 v32, v40"); a("s_nop 0")
    a("v_add_f32 v28, v28, v36"); a("v_add_f32 v29, v32, v40"); a("s_nop 0")
    a("v_mov_b32 v30, v28"); a("v_mov_b32 v31, v29"); a("s_nop 1")
    a("v_permlane16_swap_b32 v28, v30"); a("v_permlane16_swap_b32 v29, v31"); a("s_nop 0")
    a("v_add_f32 v28, v28, v30"); a("v_add_f32 v29, v29, v31")
    for sh in ("row_ror:1", "row_ror:2", "row_ror:4", "row_ror:8"):
        a("s_nop 1")
        a("v_add_f32_dpp v28, v28, v28 %s row_mask:0xf bank_mask:0xf" % sh); a("v_add_f32_dpp v29, v29, v29 %s row_mask:0xf bank_mask:0xf" % sh)
    finish_stats(a, 28, 29, 30)
    a("v_lshrrev_b32 v30, 5, v1"); a("v_lshlrev_b32 v30, 3, v30")
    a("s_mov_b32 exec_lo, 1"); a("s_mov_b32 exec_hi, 1")
    a("buffer_store_dwordx2 v[28:29], v30, s[%d:%d], s42 offen sc1" % (S_SRDX, S_SRDX + 3))
    if c.fused:
        srd(a, S_SRDP, "ws", WS_FLAG, 16384)
        a("s_mov_b64 exec, 15")
        a("v_mov_b32 v31, 0"); a("v_lshlrev_b32 v30, 2, v1")
        a("buffer_store_dword v31, v30, s[%d:%d], s42 offen sc1" % (S_SRDP, S_SRDP + 3))
    a("s_mov_b64 exec, -1")
def k1_drain(a, c): a("s_waitcnt vmcnt(0)")
def lw0_cnt(word):
    def f(a, c):
        L = a.newlabel("Lc1f")
        a("s_cmp_lg_u32 s%d, 0" % S_LW); a("s_cbranch_scc1 %s" % L)
        cnt_add(a, word, S_T0)
        a.label(L)
    return f
def k1_prep(a, c):
    trlane(a, 24, 64)
    a("s_mul_i32 s%d, s%d, 36" % (S_T0, S_LW)); a("v_add_u32 v33, s%d, v1" % S_T0)
    a("s_lshl_b32 s%d, s%d, 7" % (S_T1, S_MT)); a("s_sub_i32 s%d, s%d, 16" % (S_T1, S_T1))
    a("v_add_u32 v34, s%d, v33" % S_T1); a("v_max_i32 v34, 0, v34"); a("v_lshlrev_b32 v34, 3, v34")
    a("v_lshlrev_b32 v33, 2, v33"); a("v_add_u32 v33, %d, v33" % auxbase(c))
    a("s_lshl_b32 s%d, s2, 2" % S_T0); a("s_add_u32 s%d, s%d, s%d" % (S_T0, S_T0, S_LW))
    a("s_mul_hi_u32 s46, s%d, %d" % (S_T0, (1 << 32) // 56 + 1)); a("s_mul_i32 s%d, s46, 56" % S_T1); a("s_sub_u32 s47, s%d, s%d" % (S_T0, S_T1))
    a("s_mul_i32 s44, s46, %d" % (64 * 7168)); a("s_lshl_b32 s%d, s47, 7" % S_T1); a("s_add_u32 s44, s44, s%d" % S_T1)
    a("v_and_b32 v96, 1, v4"); a("v_lshlrev_b32 v96, 1, v96"); a("v_xor_b32 v96, v96, v3")
    a("v_mul_u32_u24 v97, 7168, v2"); a("v_lshl_add_u32 v96, v96, 4, v97"); a("v_xor_b32 v97, 64, v96")
def k1_tail(a, c):
    cnt_check(a)
    a("buffer_load_dwordx2 v[36:37], v34, s[%d:%d], 0 offen sc1" % (S_SRDX, S_SRDX + 3))
    srd(a, S_SRDW, "w1", 0, 1024 * 7168)
    a("s_lshl_b32 s%d, s%d, 13" % (S_T1, S_LW)); a("s_add_u32 s%d, s%d, %d" % (S_T1, S_T1, auxbase(c) + AUX1_W1))
    for i in range(8):
        a("s_mov_b32 m0, s%d" % S_T1); a("s_add_u32 s%d, s%d, 1024" % (S_T1, S_T1))
        a("buffer_load_dwordx4 v%d, s[%d:%d], s44 offen lds" % (96 + (i & 1), S_SRDW, S_SRDW + 3))
        if i < 7: a("s_add_u32 s44, s44, %d" % (8 * 7168))
    tail_pf(a, c)
def k1_fin(a, c):
    a("s_waitcnt vmcnt(%d)" % (8 + n_tail(c)))
    a("s_mov_b32 exec_hi, 15")
    a("ds_write_b32 v33, v36 offset:%d" % c.aux[0]); a("ds_write_b32 v33, v37 offset:%d" % c.aux[1])
    a("s_mov_b32 exec_hi, -1")
    a("s_waitcnt lgkmcnt(0)")
def k1_post_f(base, nafter):
    def f(a, c):
        srd(a, S_SRDY, "ws", WS_CS1, 16 * 3584 * 4)
        a("s_lshl_b32 s%d, s%d, 13" % (S_T1, S_LW)); a("s_add_u32 s%d, s%d, %d" % (S_T1, S_T1, base + AUX1_W1))
        for p in range(4):
            a("v_xor_b32 v%d, %d, v24" % (28 + p, 32 * p)); a("v_add_u32 v%d, s%d, v%d" % (28 + p, S_T1, 28 + p))
        for r in range(32, 40): a("v_mov_b32 v%d, 0" % r)
        a("s_mov_b32 s70, 0x3f803f80")
        a("s_waitcnt vmcnt(%d)" % nafter(c))
        for q in range(4):
            for p in range(4): a("ds_read_b64_tr_b16 v[%d:%d], v%d offset:%d" % (48 + 8 * q + 2 * p, 49 + 8 * q + 2 * p, 28 + p, 2048 * q))
        a("s_waitcnt lgkmcnt(0)")
        for q in range(4):
            for p in range(4):
                for d in range(2): a("v_dot2c_f32_bf16 v%d, s70, v%d" % (32 + 2 * p + d, 48 + 8 * q + 2 * p + d))
        a("s_nop 2")
        for p in range(4): a("v_add_f32 v%d, v%d, v%d" % (32 + 2 * p, 32 + 2 * p, 33 + 2 * p))
        reduce4(a, [32, 34, 36, 38])
        a("s_mul_i32 s%d, s46, %d" % (S_T0, 3584 * 4)); a("s_lshl_b32 s%d, s47, 8" % S_T1); a("s_add_u32 s%d, s%d, s%d" % (S_T0, S_T0, S_T1))
        a("v_lshlrev_b32 v28, 2, v1")
        a("buffer_store_dword v32, v28, s[%d:%d], s%d offen sc1" % (S_SRDY, S_SRDY + 3, S_T0))
    return f

BIAS = 148
def pre_k1(a, c):
    rows_load(a, c)
    srd(a, S_SRDO, *c.O)
    a("v_and_b32 v12, 15, v1"); a("v_lshrrev_b32 v13, 4, v1")
    a("v_lshlrev_b32 v14, 2, v13"); a("v_sub_u32 v14, v12, v14")
    a("s_mov_b32 s%d, 0x%x" % (S_T0, f2u(-1e30))); a("v_mov_b32 v12, s%d" % S_T0)
    for half in range(2):
        for r in range(4):
            a("v_add_u32 v13, %d, v14" % ((16 if half == 0 else 0) - r)); a("v_and_b32 v13, 0xfffffff1, v13")
            a("v_cmp_ne_u32 vcc, 0, v13"); a("s_nop 1")
            a("v_cndmask_b32 v%d, 0, v12, vcc" % (BIAS + 4 * half + r))
    a("s_or_b32 s%d, s%d, s%d" % (S_T1, S_MT, S_WR)); a("s_cmp_eq_u32 s%d, 0" % S_T1); a("s_cselect_b32 s%d, s%d, 0" % (S_T1, S_T0))
    for r in range(4): a("v_add_f32 v%d, s%d, v%d" % (BIAS + 8 + r, S_T1, BIAS + r))
    base = auxbase(c); CSB = base + c.aux[2]
    a("v_lshlrev_b32 v12, 4, v1")
    a("s_mul_i32 s%d, s%d, 6144" % (S_T0, S_WAVE)); a("s_add_u32 s%d, s%d, %d" % (S_T0, S_T0, XCH))
    a("s_xor_b32 s%d, s%d, 2" % (S_T1, S_WAVE)); a("s_mul_i32 s%d, s%d, 6144" % (S_T1, S_T1)); a("s_add_u32 s%d, s%d, %d" % (S_T1, S_T1, XCH))
    a("v_add_u32 v160, s%d, v12" % S_T0)
    a("s_cmp_eq_u32 s%d, 0" % S_WR)
    for i, (own, s0, s1) in enumerate(((True, 0, 3), (False, 0, 2), (True, 1, 5), (False, 1, 4))):
        a("s_add_u32 s40, s%d, %d" % (S_T0 if own else S_T1, 1024 * s0)); a("s_add_u32 s41, s%d, %d" % (S_T1, 1024 * s1))
        a("s_cmp_eq_u32 s%d, 0" % S_WR); a("s_cselect_b32 s40, s40, s41")
        a("v_add_u32 v%d, s40, v12" % (161 + i))
    a("s_lshl_b32 s%d, s%d, 7" % (S_T0, S_WC)); a("s_lshl_b32 s%d, s%d, 6" % (S_T1, S_WR)); a("s_add_u32 s%d, s%d, s%d" % (S_T0, S_T0, S_T1)); a("s_add_u32 s%d, s%d, %d" % (S_T0, S_T0, CSB))
    a("v_lshrrev_b32 v13, 4, v1"); a("v_lshlrev_b32 v13, 4, v13"); a("v_add_u32 v165, s%d, v13" % S_T0)
    a("v_and_b32 v13, 15, v1"); a("v_lshlrev_b32 v13, 2, v13"); a("v_add_u32 v166, s%d, v13" % S_T0)
    rows_pub(a, c)

def epi_k1(a, c):
    base = auxbase(c); AUX_A, AUX_NM, AUX_CS = c.aux
    assert (base + AUX_CS) % 128 == 0
    hq, hk, hv = acc_of(c, 0, 0), acc_of(c, 0, 2), acc_of(c, 0, 4)
    A = lambda b, nb: (acc_of(c, b, nb) if b else {2: hk, 3: hq, 4: hv, 5: V_ACC + 108}[nb])
    for i, r in enumerate((hk, hv, A(4, 2), A(4, 3), A(4, 4), A(4, 5))): a("ds_write_b128 v160, v[%d:%d] offset:%d" % (r, r + 3, 1024 * i))
    a("s_mov_b32 exec_lo, 0x10001"); a("s_mov_b32 exec_hi, 0x10001")
    a("ds_write_b128 v165, v[%d:%d]" % (hq, hq + 3)); a("ds_write_b128 v165, v[%d:%d] offset:256" % (hk, hk + 3))
    a("s_mov_b64 exec, 0xffff")
    a("ds_write_b32 v166, v%d offset:512" % hv)
    a("s_mov_b64 exec, -1")
    a("v_and_b32 v2, 15, v1"); a("v_lshrrev_b32 v3, 4, v1")
    a("s_lshl_b32 s%d, s%d, 8" % (S_T0, S_WR)); a("s_add_u32 s%d, s%d, %d" % (S_T0, S_T0, base))
    a("v_lshlrev_b32 v4, 2, v2"); a("v_add_u32 v4, s%d, v4" % S_T0)
    a("v_lshlrev_b32 v5, 4, v3"); a("v_add_u32 v5, s%d, v5" % S_T0)
    a("v_xor_b32 v6, 64, v165"); a("v_xor_b32 v7, 64, v166")
    AN = 128; CQ = 140; CK = 160; CV = 138
    for mb in (1, 2, 3, 4, 0): a("ds_read2_b32 %s, v4 offset0:%d offset1:%d" % (pk(AN + 2 * mb), AUX_A // 4 + 16 * mb, AUX_NM // 4 + 16 * mb))
    a("ds_read_b128 v[8:11], v5 offset:%d" % AUX_A); a("ds_read_b128 v[12:15], v5 offset:%d" % AUX_NM)
    a("s_waitcnt lgkmcnt(7)")
    a("s_barrier")
    a("ds_read_b128 v[%d:%d], v165" % (CQ, CQ + 3)); a("ds_read_b128 v[%d:%d], v6" % (CQ + 4, CQ + 7))
    for i, nb in enumerate((2, 3, 4, 5)): a("ds_read_b128 v[%d:%d], v%d" % (A(0, nb), A(0, nb) + 3, 161 + i))
    a("ds_read_b32 v%d, v166 offset:512" % CV); a("ds_read_b32 v%d, v7 offset:512" % (CV + 1))
    a("ds_read_b128 v[%d:%d], v165 offset:256" % (CK, CK + 3)); a("ds_read_b128 v[%d:%d], v6 offset:256" % (CK + 4, CK + 7))
    def norm_rowlane(x, an, cs):
        for p in range(2): a("v_pk_fma_f32 %s, %s, %s, %s op_sel:[0,1,0] op_sel_hi:[1,1,1]" % (pk(x + 2 * p), pk(cs + 2 * p), pk(an), pk(x + 2 * p)))
    def scale_rowlane(x, an):
        for p in range(2): a("v_pk_mul_f32 %s, %s, %s op_sel_hi:[1,0]" % (pk(x + 2 * p), pk(x + 2 * p), pk(an)))
    def packqk(b, nb0, cs):
        x0, x1 = A(b, nb0), A(b, nb0 + 1)
        norm_rowlane(x0, AN + 2 * b, cs); norm_rowlane(x1, AN + 2 * b, cs + 4); scale_rowlane(x0, AN + 2 * b); scale_rowlane(x1, AN + 2 * b)
        pack_pair(a, x0, x1, x0)
    QP = {b: A(b, 0) for b in range(1, 5)}; KP = {b: A(b, 2) for b in range(5)}
    a("s_waitcnt lgkmcnt(8)")
    for b in range(1, 5): packqk(b, 0, CQ)
    a("s_waitcnt lgkmcnt(0)")
    for b in (1, 2, 3, 4, 0): packqk(b, 2, CK)
    S0 = {b: A(b, 1) for b in range(1, 5)}; S1 = {b: A(b, 3) for b in range(1, 5)}
    for b in (2, 3, 4, 1):
        a("v_mfma_f32_16x16x32_bf16 %s, %s, %s, 0" % (vr(S1[b], 4), vr(KP[b], 4), vr(QP[b], 4)))
        a("v_mfma_f32_16x16x32_bf16 %s, %s, %s, 0" % (vr(S0[b], 4), vr(KP[b - 1], 4), vr(QP[b], 4)))
    VP = [128, 158]
    VP = [128, 160 - 2]
    VB = [(8, 12), (140, 144)]
    a("s_mov_b32 s64, 0x%x" % f2u(32 ** -0.5 * LOG2E)); a("s_mov_b32 s65, s64")
    def vblock(b):
        va, vn = VB[b & 1]
        if b < 4:
            na, nn = VB[(b + 1) & 1]
            a("ds_read_b128 v[%d:%d], v5 offset:%d" % (na, na + 3, AUX_A + 64 * (b + 1))); a("ds_read_b128 v[%d:%d], v5 offset:%d" % (nn, nn + 3, AUX_NM + 64 * (b + 1)))
        a("s_waitcnt lgkmcnt(%d)" % (2 if b < 4 else 0))
        xs = [A(b, 4), A(b, 5)]
        for cc in range(2):
            for p in range(2):
                sel = "op_sel_hi:[1,0,1]" if cc == 0 else "op_sel:[0,1,0] op_sel_hi:[1,1,1]"
                a("v_pk_fma_f32 %s, %s, %s, %s %s" % (pk(xs[cc] + 2 * p), pk(vn + 2 * p), pk(CV), pk(xs[cc] + 2 * p), sel))
        for cc in range(2):
            for p in range(2): a("v_pk_mul_f32 %s, %s, %s" % (pk(xs[cc] + 2 * p), pk(xs[cc] + 2 * p), pk(va + 2 * p)))
    def vpack(b):
        xs = [A(b, 4), A(b, 5)]
        for cc in range(2):
            a("v_cvt_pk_bf16_f32 v%d, v%d, v%d" % (VP[cc] + 2 * b, xs[cc], xs[cc] + 1))
            a("v_cvt_pk_bf16_f32 v%d, v%d, v%d" % (VP[cc] + 2 * b + 1, xs[cc] + 2, xs[cc] + 3))
    vblock(0)
    for b in (1, 2, 3, 4):
        vblock(b); vpack(b)
    for b in range(1, 5):
        for h, s in enumerate((S0[b], S1[b])):
            bias = BIAS + 8 if (b == 1 and h == 0) else BIAS + 4 * h
            for p in range(2): a("v_pk_fma_f32 %s, %s, s[64:65], %s" % (pk(s + 2 * p), pk(s + 2 * p), pk(bias + 2 * p)))
    vpack(0)
    M, T = 8, 12
    for st in range(4):
        for b in range(1, 5):
            s, u = S0[b], S1[b]; m = M + b - 1
            a(["v_max3_f32 v%d, v%d, v%d, v%d" % (m, s, s + 1, s + 2), "v_max3_f32 v%d, v%d, v%d, v%d" % (m, m, s + 3, u),
               "v_max3_f32 v%d, v%d, v%d, v%d" % (m, m, u + 1, u + 2), "v_max_f32 v%d, v%d, v%d" % (m, m, u + 3)][st])
    def xreduce(op):
        for sw in ("v_permlane16_swap_b32", "v_permlane32_swap_b32"):
            for b in range(4): a("v_mov_b32 v%d, v%d" % (T + b, M + b))
            for b in range(4): a("%s v%d, v%d" % (sw, M + b, T + b))
            for b in range(4): a("%s v%d, v%d, v%d" % (op, M + b, M + b, T + b))
    xreduce("v_max_f32")
    def bsel(b):
        m = M + b - 1
        return (pk(m & ~1), "op_sel:[0,1] op_sel_hi:[1,1]" if m & 1 else "op_sel_hi:[1,0]")
    for b in range(1, 5):
        r, sel = bsel(b)
        for s in (S0[b], S1[b]):
            for p in range(2): a("v_pk_add_f32 %s, %s, %s %s neg_lo:[0,1] neg_hi:[0,1]" % (pk(s + 2 * p), pk(s + 2 * p), r, sel))
    for b in range(1, 5):
        for s in (S0[b], S1[b]):
            for j in range(4): a("v_exp_f32 v%d, v%d" % (s + j, s + j))
    U = 136
    for b in range(1, 5): a("v_pk_add_f32 %s, %s, %s" % (pk(U + 4 * b), pk(S0[b]), pk(S0[b] + 2)))
    for b in range(1, 5): a("v_pk_add_f32 %s, %s, %s" % (pk(U + 2 + 4 * b), pk(S1[b]), pk(S1[b] + 2)))
    for b in range(1, 5): a("v_pk_add_f32 %s, %s, %s" % (pk(U + 4 * b), pk(U + 4 * b), pk(U + 2 + 4 * b)))
    for b in range(1, 5): a("v_add_f32 v%d, v%d, v%d" % (M + b - 1, U + 4 * b, U + 1 + 4 * b))
    xreduce("v_add_f32")
    for b in range(4): a("v_rcp_f32 v%d, v%d" % (M + b, M + b))
    a("s_lshl_b32 s%d, s%d, 7" % (S_T0, S_MT)); a("s_lshl_b32 s%d, s%d, 6" % (S_T1, S_WR))
    for b in range(1, 5):
        r, sel = bsel(b)
        for s in (S0[b], S1[b]):
            for p in range(2): a("v_pk_mul_f32 %s, %s, %s %s" % (pk(s + 2 * p), pk(s + 2 * p), r, sel))
        pack_pair(a, S0[b], S1[b], QP[b])
    a("s_add_u32 s%d, s%d, s%d" % (S_T0, S_T0, S_T1)); a("s_lshl_b32 s%d, s%d, 11" % (S_T0, S_T0))
    for b in range(1, 5):
        for cc, o in enumerate((S0[b], S1[b])):
            a("v_mfma_f32_16x16x32_bf16 %s, %s, %s, 0" % (vr(o, 4), vr(VP[cc] + 2 * (b - 1), 4), vr(QP[b], 4)))
    a("s_lshl_b32 s%d, s%d, 7" % (S_T1, S_NT)); a("s_add_u32 s%d, s%d, s%d" % (S_T0, S_T0, S_T1))
    a("s_lshl_b32 s%d, s%d, 6" % (S_T1, S_WC)); a("s_add_u32 s%d, s%d, s%d" % (S_T0, S_T0, S_T1))
    a("s_lshl_b32 s%d, s%d, 1" % (S_T1, S_WR)); a("v_xor_b32 v3, s%d, v3" % S_T1)
    a("v_lshlrev_b32 v4, 11, v2"); a("v_lshl_add_u32 v4, v3, 4, v4")
    for b in range(1, 5): pack_pair(a, S0[b], S1[b], KP[b])
    for b in range(1, 5):
        swap_pair(a, KP[b])
        a("buffer_store_dwordx4 v[%d:%d], v4, s[%d:%d], s%d offen %s" % (KP[b], KP[b] + 3, S_SRDO, S_SRDO + 3, S_T0, c.stfl))
        if b < 4: a("s_add_u32 s%d, s%d, %d" % (S_T0, S_T0, 16 * 2048))

def pairAB(flip):
    def f(a, d):
        a("s_lshl_b32 s%d, s%d, 1" % (d, S_WC)); a("s_add_u32 s%d, s%d, s%d" % (d, d, S_WR))
        if flip: a("s_xor_b32 s%d, s%d, 1" % (d, d))
        a("s_lshl_b32 s%d, s%d, 5" % (d, d))
    return f
def cfg_p1(**kw):
    c = Cfg(name="p1", K=1024, lda=2048, ldb=6144, halo=16, ones=True,
            A=("x", 0, 4 << 20), W=("wqkv", 0, 1024 * 6144), O=("ws", WS_O, 4 << 20),
            segw=[64, 64, 64], col0=[0, 1024, 2048], cstep=64, wc_bits=1,
            aregs=[rows_wr(64, 16), rows_zero], mblk=[(1, 0), (0, 0), (0, 16), (0, 32), (0, 48)],
            wregs=[(0, 0, 0, pairAB(0)), (0, 0, 0, pairAB(1))],
            nblk=[(0, 0, 128), (1, 0, 128), (0, 8192, 128), (1, 8192, 128), (0, 16384, 128), (1, 16384, 128)],
            xa=8, xb=4, NS=3, order="rot", aux=(0, 576, 1152), own_xbar=True,
            tail_pf=[("wo", 2 << 20)], codepf=[], ramp=[17, 12, 12, 12, 13])
    c.mf = []
    for base, sw in ((0, False), (2, False), (4, True)):
        c.mf += [(mb, base, sw) for mb in range(5)] + [(mb, base + 1, sw) for mb in range(1, 5)]
    c.epilogue = epi_k1; c.compute_pre = pre_k1
    c.__dict__.update(kw)
    c.xbar = True
    c.special = {-1: [("post", k1_setup, 0)], 4: [("post", lw0_cnt(0), 0)], 5: [("weave", k1_prep, 0)], 12: [("pre", cnt_poll(0), 1)],
                 14: [("post", k1_tail, 9 + n_tail(c))], 15: [("post", k1_fin, 0)]}
    c.flagiter = (16 - 2, k1_drain)
    return c

RESB = 147456
def res_tail(a, c):
    srd(a, S_SRDX, *c.R)
    a("v_xor_b32 v5, v4, v3"); a("v_lshlrev_b32 v30, 11, v2"); a("v_lshl_add_u32 v30, v5, 4, v30")
    a("v_xor_b32 v31, 64, v30"); a("v_add_u32 v31, %d, v31" % (8 * 2048 - 1024))
    a("v_add_u32 v32, %d, v30" % (16 * 2048 - 2048)); a("v_add_u32 v33, %d, v31" % (16 * 2048 - 2048))
    a("s_lshl_b32 s%d, s%d, 2" % (S_T0, S_MT)); a("s_add_u32 s%d, s%d, s%d" % (S_T0, S_T0, S_LW)); a("s_lshl_b32 s%d, s%d, 16" % (S_T0, S_T0))
    a("s_lshl_b32 s%d, s%d, 7" % (S_T1, S_NT)); a("s_add_u32 s%d, s%d, s%d" % (S_T0, S_T0, S_T1))
    a("s_lshl_b32 s%d, s%d, 12" % (S_T1, S_LW)); a("s_add_u32 m0, s%d, %d" % (S_T1, RESB)); a("s_nop 0")
    for j in range(4): a("buffer_load_dwordx4 v%d, s[%d:%d], s%d offen offset:%d %s lds" % (30 + j, S_SRDX, S_SRDX + 3, S_T0, 1024 * j, c.flr))
    tail_pf(a, c)
def res_fin(a, c): a("s_waitcnt vmcnt(%d)" % n_tail(c))
def pre_k24(a, c):
    srd(a, S_SRDO, *c.O)
    if c.dostats: srd(a, S_SRDY, "ws", WS_STATS, 16 * 2048 * 8)
    a("v_and_b32 v80, 15, v1"); a("v_lshrrev_b32 v81, 4, v1")
    a("s_lshl_b32 s%d, s%d, 7" % (S_T0, S_MT)); a("s_lshl_b32 s%d, s%d, 5" % (S_T1, S_WR))
    a("s_add_u32 s%d, s%d, s%d" % (S_T0, S_T0, S_T1)); a("s_lshl_b32 s%d, s%d, 11" % (S_T0, S_T0))
    a("s_lshl_b32 s%d, s%d, 7" % (S_T1, S_NT)); a("s_add_u32 s64, s%d, s%d" % (S_T0, S_T1)); a("s_add_u32 s65, s64, %d" % (16 * 2048))
    a("v_lshlrev_b32 v82, 11, v80"); a("v_lshl_add_u32 v84, v81, 4, v82")
    a("v_bfe_u32 v82, v80, 1, 3"); a("v_lshrrev_b32 v83, 1, v81"); a("v_xor_b32 v82, v82, v83"); a("v_lshlrev_b32 v82, 4, v82")
    a("v_and_b32 v83, 1, v81"); a("v_lshl_add_u32 v82, v83, 3, v82"); a("v_lshl_add_u32 v82, v80, 7, v82")
    a("s_lshl_b32 s%d, s%d, 12" % (S_T0, S_WR)); a("s_add_u32 s%d, s%d, %d" % (S_T0, S_T0, RESB))
    for nb in range(4):
        a("v_xor_b32 v%d, %d, v82" % (48 + nb, 32 * nb)); a("v_add_u32 v%d, s%d, v%d" % (48 + nb, S_T0, 48 + nb))
    if c.dostats:
        a("v_and_b32 v113, 31, v1"); a("v_lshlrev_b32 v113, 3, v113"); a("v_lshrrev_b32 v114, 5, v1"); a("v_lshl_add_u32 v116, v114, 2, v113")
        a("s_lshl_b32 s%d, s%d, 14" % (S_T0, S_NT)); a("s_lshl_b32 s%d, s%d, 10" % (S_T1, S_MT)); a("s_add_u32 s%d, s%d, s%d" % (S_T0, S_T0, S_T1))
        a("s_lshl_b32 s%d, s%d, 8" % (S_T1, S_WR)); a("s_add_u32 s66, s%d, s%d" % (S_T0, S_T1))
def epi_k24(a, c):
    RES = 64; T = 96
    for mb in range(2):
        for nb in range(4): a("ds_read_b64 %s, v%d offset:%d" % (pk(RES + (mb * 4 + nb) * 2), 48 + nb, 2048 * mb))
    if c.dostats:
        a("s_mov_b32 s%d, 0x3f803f80" % S_T0)
        for r in range(112, 116): a("v_mov_b32 v%d, 0" % r)
    for mb in range(2):
        a("s_waitcnt lgkmcnt(%d)" % (4 - 4 * mb))
        for nb in range(4):
            r = RES + (mb * 4 + nb) * 2; x = acc_of(c, mb, nb); t = 86 + 4 * (nb & 1)
            for d in range(2):
                a("v_lshlrev_b32 v%d, 16, v%d" % (t + 2 * d, r + d)); a("v_and_b32 v%d, 0xffff0000, v%d" % (t + 2 * d + 1, r + d))
            for d in range(2): a("v_pk_add_f32 %s, %s, %s" % (pk(x + 2 * d), pk(x + 2 * d), pk(t + 2 * d)))
        for p in range(2): pack_pair(a, acc_of(c, mb, 2 * p), acc_of(c, mb, 2 * p + 1), T + (mb * 2 + p) * 4)
        if c.dostats:
            for j in range(8):
                d = T + mb * 8 + j
                a("v_dot2c_f32_bf16 v%d, s%d, v%d" % (112 + 2 * mb, S_T0, d)); a("v_dot2c_f32_bf16 v%d, v%d, v%d" % (113 + 2 * mb, d, d))
        else: a("s_nop 1")
        for p in range(2):
            t = T + (mb * 2 + p) * 4
            swap_pair(a, t)
            a("buffer_store_dwordx4 v[%d:%d], v84, s[%d:%d], s%d offen offset:%d %s" % (t, t + 3, S_SRDO, S_SRDO + 3, 64 + mb, 64 * p, c.stfl))
    if c.dostats:
        a("v_permlane32_swap_b32 v112, v113"); a("v_permlane32_swap_b32 v114, v115"); a("s_nop 0")
        a("v_add_f32 v112, v112, v113"); a("v_add_f32 v114, v114, v115"); a("s_nop 1")
        a("v_permlane16_swap_b32 v112, v114"); a("s_nop 0")
        a("v_add_f32 v112, v112, v114")
        a("buffer_store_dword v112, v116, s[%d:%d], s66 offen sc1" % (S_SRDY, S_SRDY + 3))

def cfg_p24(**kw):
    c = Cfg(segw=[64], col0=[0], cstep=64, wc_bits=0, aregs=[rows_wr(32)], mblk=[(0, 0), (0, 16)],
            wregs=[(0, 0, 0, 0), (0, 0, 1, 0), (0, 0, 2, 0), (0, 0, 3, 0)],
            nblk=[(0, 0, 128), (1, 0, 128), (2, 0, 128), (3, 0, 128)],
            xa=4, xb=8, NS=3, sub=2, rpm=2, order="class", tail_pf=[], codepf=[], ramp=[20], flr="")
    c.mf = [(mb, nb, False) for nb in range(4) for mb in range(2)]
    c.compute_pre = pre_k24; c.epilogue = epi_k24
    c.__dict__.update(kw)
    N = nst(c)
    c.special = {N - 2: [("post", res_tail, 4 + n_tail(c))], N - 1: [("post", res_fin, 0)]}
    return c
def cfg_p2(**kw):
    return cfg_p24(name="p2", K=1024, lda=2048, ldb=2048, A=("ws", WS_O, 4 << 20), W=("wo", 0, 2 << 20), O=("ws", WS_H, 4 << 20), R=("x", 0, 4 << 20), dostats=True, **kw)
def cfg_p4(**kw):
    return cfg_p24(name="p4", K=3584, lda=7168, ldb=2048, A=("ws", WS_H1, 2048 * 7168), W=("w2", 0, 3584 * 2048), O=("out", 0, 4 << 20), R=("ws", WS_H, 4 << 20), dostats=False, **kw)

def pre_k3(a, c):
    srd(a, S_SRDO, *c.O); srd(a, S_SRDX, "ws", WS_CS1, 16 * 3584 * 4)
    if c.fused:
        cnt_poll(32, 20)(a, c); a("s_waitcnt vmcnt(0)"); cnt_check(a, 20)
    a("s_mul_i32 s40, s%d, 896" % S_NT); a("s_mul_i32 s41, s%d, 224" % S_WAVE); a("s_add_u32 s40, s40, s41")
    a("v_lshlrev_b32 v16, 2, v1")
    for p in range(16):
        a("buffer_load_dword v%d, v16, s[%d:%d], s40 offen sc1" % (32 + p, S_SRDX, S_SRDX + 3))
        if p < 15: a("s_add_u32 s40, s40, %d" % (3584 * 4))
    a("s_add_u32 s41, s41, %d" % (auxbase(c) + c.aux[2])); a("v_add_u32 v17, s41, v16")
    a("s_waitcnt vmcnt(0)")
    for st in (8, 4, 2):
        for j in range(0, st, 2): a("v_pk_add_f32 %s, %s, %s" % (pk(32 + j), pk(32 + j), pk(32 + j + st)))
    a("v_add_f32 v32, v32, v33")
    a("s_mov_b32 exec_hi, 0xffffff")
    a("ds_write_b32 v17, v32")
    a("s_mov_b32 exec_hi, -1")
    a("s_waitcnt lgkmcnt(0)")
def k3_stats(a, c):
    srd(a, S_SRDY, "ws", WS_STATS, 16 * 2048 * 8)
    a("v_and_b32 v28, 31, v1"); a("v_lshlrev_b32 v29, 3, v28"); a("v_lshrrev_b32 v30, 5, v1"); a("v_lshl_add_u32 v29, v30, 17, v29")
    a("s_lshl_b32 s44, s%d, 10" % S_MT); a("s_lshl_b32 s%d, s%d, 8" % (S_T0, S_LW)); a("s_add_u32 s44, s44, s%d" % S_T0)
    for j in range(8):
        a("buffer_load_dwordx2 %s, v29, s[%d:%d], s44 offen sc1" % (pk(48 + 2 * j), S_SRDY, S_SRDY + 3))
        if j < 7: a("s_add_u32 s44, s44, 16384")
def k3_fin(a, c):
    for st in (8, 4, 2):
        for j in range(st): a("v_add_f32 v%d, v%d, v%d" % (48 + j, 48 + j, 48 + j + st))
    a("s_lshl_b32 s%d, s%d, 7" % (S_T0, S_LW)); a("s_add_u32 s%d, s%d, %d" % (S_T0, S_T0, auxbase(c)))
    a("v_mov_b32 v50, v48"); a("v_mov_b32 v51, v49")
    a("v_lshlrev_b32 v28, 2, v28"); a("v_add_u32 v28, s%d, v28" % S_T0)
    a("v_permlane32_swap_b32 v48, v50"); a("v_permlane32_swap_b32 v49, v51"); a("s_nop 0")
    a("v_add_f32 v48, v48, v50"); a("v_add_f32 v49, v49, v51")
    finish_stats(a, 48, 49, 50)
    a("ds_write_b32 v28, v49 offset:%d" % c.aux[1]); a("ds_write_b32 v28, v48 offset:%d" % c.aux[0])
def lgkm0(a, c): a("s_waitcnt lgkmcnt(0)")
def epi_k3(a, c):
    base = auxbase(c); AUX_A, AUX_NM, AUX_CS = c.aux
    AB = 128; CS = 136; E = 8; ldo = 7168
    a("v_and_b32 v2, 15, v1"); a("v_lshrrev_b32 v3, 4, v1")
    a("s_lshl_b32 s%d, s%d, 8" % (S_T0, S_WR)); a("s_add_u32 s%d, s%d, %d" % (S_T0, S_T0, base))
    a("v_lshlrev_b32 v4, 2, v2"); a("v_add_u32 v4, s%d, v4" % S_T0)
    a("v_lshlrev_b32 v5, 4, v3"); a("v_add_u32 v5, %d, v5" % (base + AUX_CS))
    a("s_lshl_b32 s%d, s%d, 8" % (S_T0, S_WC)); a("v_add_u32 v6, s%d, v5" % S_T0)
    a("s_lshl_b32 s%d, s%d, 7" % (S_T0, S_WC)); a("v_add_u32 v7, s%d, v5" % S_T0)
    a("s_lshl_b32 s%d, s%d, 6" % (S_T0, S_WC)); a("v_add_u32 v8, s%d, v5" % S_T0)
    for mb in range(4): a("ds_read2_b32 %s, v4 offset0:%d offset1:%d" % (pk(AB + 2 * mb), AUX_A // 4 + 16 * mb, AUX_NM // 4 + 16 * mb))
    for t in range(4): a("ds_read_b128 v[%d:%d], v6 offset:%d" % (CS + 4 * t, CS + 4 * t + 3, 64 * t))
    for t in range(2): a("ds_read_b128 v[%d:%d], v7 offset:%d" % (CS + 16 + 4 * t, CS + 19 + 4 * t, 512 + 64 * t))
    a("ds_read_b128 v[%d:%d], v8 offset:%d" % (CS + 24, CS + 27, 768))
    a("s_lshl_b32 s%d, s%d, 7" % (S_T0, S_MT)); a("s_lshl_b32 s%d, s%d, 6" % (S_T1, S_WR))
    a("s_add_u32 s%d, s%d, s%d" % (S_T0, S_T0, S_T1)); a("s_mul_i32 s%d, s%d, %d" % (S_T0, S_T0, ldo))
    a("s_mul_i32 s%d, s%d, 448" % (S_T1, S_NT)); a("s_add_u32 s%d, s%d, s%d" % (S_T0, S_T0, S_T1))
    a("v_mul_u32_u24 v4, %d, v2" % ldo); a("v_add_u32 v4, s%d, v4" % S_T0)
    a("v_lshl_add_u32 v9, v3, 4, v4")
    a("s_lshl_b32 s%d, s%d, 7" % (S_T2, S_WC)); a("v_add_u32 v5, s%d, v9" % S_T2)
    a("s_lshl_b32 s%d, s%d, 6" % (S_T2, S_WC)); a("s_add_u32 s%d, s%d, 256" % (S_T2, S_T2)); a("v_add_u32 v6, s%d, v9" % S_T2)
    a("v_and_b32 v7, 1, v3"); a("v_lshl_add_u32 v7, v7, 4, v4"); a("v_lshrrev_b32 v9, 1, v3")
    a("v_mul_u32_u24 v9, %d, v9" % (16 * ldo)); a("v_add_u32 v7, v7, v9")
    a("s_lshl_b32 s%d, s%d, 5" % (S_T2, S_WC)); a("s_add_u32 s%d, s%d, 384" % (S_T2, S_T2)); a("v_add_u32 v7, s%d, v7" % S_T2)
    for mb in range(4): a("s_mov_b32 s%d, %d" % (64 + mb, mb * 16 * ldo))
    a("s_mov_b32 s68, 0x%x" % f2u(-LOG2E)); a("s_mov_b32 s69, s68")
    a("s_waitcnt lgkmcnt(0)")
    jobs = []
    for mb in range(4):
        jobs.append(((mb, 0), (mb, 1), 5, mb, 0)); jobs.append(((mb, 2), (mb, 3), 5, mb, 64)); jobs.append(((mb, 4), (mb, 5), 6, mb, 0))
    jobs.append(((0, 6), (1, 6), 7, 0, 0)); jobs.append(((2, 6), (3, 6), 7, 2, 0))
    pend = None
    for i, (X, Y, v, mb, imm) in enumerate(jobs):
        prs = []
        for (m, t) in (X, Y):
            x = acc_of(c, m, t)
            for p in range(2): prs.append((x + 2 * p, AB + 2 * m, CS + 4 * t + 2 * p))
        for (x, ab, cs) in prs: a("v_pk_fma_f32 %s, %s, %s, %s op_sel:[0,1,0] op_sel_hi:[1,1,1]" % (pk(x), pk(cs), pk(ab), pk(x)))
        if pend: pend()
        for (x, ab, cs) in prs: a("v_pk_mul_f32 %s, %s, %s op_sel_hi:[1,0]" % (pk(x), pk(x), pk(ab)))
        for j, (x, ab, cs) in enumerate(prs): a("v_pk_mul_f32 %s, %s, s[68:69]" % (pk(E + 2 * j), pk(x)))
        for j in range(8): a("v_exp_f32 v%d, v%d" % (E + j, E + j))
        for j in range(4): a("v_pk_add_f32 %s, %s, 1.0 op_sel_hi:[1,0]" % (pk(E + 2 * j), pk(E + 2 * j)))
        for j in range(8): a("v_rcp_f32 v%d, v%d" % (E + j, E + j))
        for j, (x, ab, cs) in enumerate(prs): a("v_pk_mul_f32 %s, %s, %s" % (pk(x), pk(x), pk(E + 2 * j)))
        t = prs[0][0]
        pack_pair(a, prs[0][0], prs[2][0], t)
        def fin(t=t, v=v, mb=mb, imm=imm):
            swap_pair(a, t)
            a("buffer_store_dwordx4 v[%d:%d], v%d, s[%d:%d], s%d offen offset:%d %s" % (t, t + 3, v, S_SRDO, S_SRDO + 3, 64 + mb, imm, c.stfl))
        pend = fin
    a("s_nop 1"); pend()

def cfg_p3(**kw):
    c = Cfg(name="p3", K=1024, lda=2048, ldb=7168, A=("ws", WS_H, 4 << 20), W=("w1", 0, 1024 * 7168), O=("ws", WS_H1, 2048 * 7168),
            segw=[64, 64, 64, 32], col0=[0, 64, 128, 192], cstep=224, wc_bits=1,
            aregs=[rows_wr(64)], mblk=[(0, 0), (0, 16), (0, 32), (0, 48)],
            wregs=[(0, 1, 0, 0), (0, 1, 1, 0), (0, 1, 2, 0), (0, 1, 3, 0), (2, 0, 0, 2), (2, 0, 1, 2), (3, 0, 0, 1)],
            nblk=[(0, 0, 128), (1, 0, 128), (2, 0, 128), (3, 0, 128), (4, 0, 128), (5, 0, 128), (6, 0, 64)],
            xa=8, xb=4, NS=3, order="class", aux=(0, 512, 1024),
            tail_pf=[("w2", 7 << 20)], codepf=[], ramp=[19, 11, 12, 12, 12])
    c.mf = [(mb, nb, False) for nb in range(7) for mb in range(4)]
    c.compute_pre = pre_k3; c.epilogue = epi_k3
    c.__dict__.update(kw)
    c.special = {5: [("weave", k3_stats, 8)], 8: [("weave", k3_fin, 0), ("post", lgkm0, 0)], 14: [("post", tail_pf, n_tail(c))]}
    return c

KNAME = "sequential_preLN__sliding_local_dilated__dense_activation_silu__prompt_kernel"
def multi(path, stamps=False, all={}, p1={}, p2={}, p3={}, p4={}):
    d = dict(stamps=stamps); d.update(all)
    cp = lambda s, e: [(s, e, 100, 16384)]
    c1 = cfg_p1(kidx=0, **{**d, "codepf": cp("p1_epi", "k2_kernel_last"), **p1}); c2 = cfg_p2(kidx=1, **{**d, "codepf": cp("p2_epi", "k3_kernel_last"), **p2})
    c3 = cfg_p3(kidx=2, **{**d, "codepf": cp("p3_epi", "k4_kernel_last"), **p3}); c4 = cfg_p4(kidx=3, **{**d, **p4})
    c1.loader_post = k1_post_f(auxbase(c1), n_tail)
    ks = [("k1_kernel", emit_kernel("k1_kernel", [c1]), 256, 168, 163840), ("k2_kernel", emit_kernel("k2_kernel", [c2]), 256, 168, 163840),
          ("k3_kernel", emit_kernel("k3_kernel", [c3]), 256, 168, auxbase(c3) + 2048), ("k4_kernel", emit_kernel("k4_kernel", [c4]), 256, 168, 163840)]
    build(ks, path)

def fused(path, stamps=False, all={}, p1={}, p2={}, p3={}, p4={}):
    d = dict(stamps=stamps, fused=True, xbar=True); d.update(all)
    c1 = cfg_p1(kidx=0, sig=0, **{**d, "codepf": [("p1_epi", "p3_c", 100, 8192), ("p1_l", "p3_l", 100, 16384)], **p1})
    c2 = cfg_p2(kidx=1, sig=1, fla="sc1", **{**d, "codepf": [("p2_epi", "p4_c", 100, 8192), ("p2_l", "p4_l", 100, 8192)], **p2})
    c3 = cfg_p3(kidx=2, sig=2, fla="sc1", **{**d, "codepf": [("p3_epi", KNAME + "_loader", 100, 8192), ("p3_l", KNAME + "_last", 100, 8192)], **p3})
    c4 = cfg_p4(kidx=3, fla="sc1", flr="sc1", **{**d, "xbar": False, **p4})
    c2.dep = lambda a, c: seam_wait(a, c, c1, 0)
    c3.dep = lambda a, c: seam_wait(a, c, c2, 1)
    c4.dep = lambda a, c: seam_wait(a, c, c3, 2)
    c2.loader_wait = k1_post_f(auxbase(c1), lambda c: 2 * 4)
    c2.special[1] = [("post", lw0_cnt(32), 0)]
    build([(KNAME, emit_kernel(KNAME, [c1, c2, c3, c4]), 256, 168, 163840)], path)
```

```python
from k6 import *
fused("f20.s", all=dict(flagshift=4, prio=3))
fused("f20s.s", stamps=True, all=dict(flagshift=4, prio=3))
fused("f20t.s", stamps=True, all=dict(flagshift=4, prio=3, trace=True))
multi("m20.s", all=dict(prio=3))
```

```python
from asmlib import *
import math, struct
def f2u(x): return struct.unpack("<I", struct.pack("<f", x))[0]
LOG2E = 1.4426950408889634

WS_O = 4 << 20; WS_H = 8 << 20; WS_H1 = 12 << 20
WS_STATS = 28 << 20
WS_RSP = 29 << 20
WS_CSP = 30 << 20
WS_CS1 = 31 << 20
WS_FLAG = 32 << 20
WS_STAMP = 0xF000000

S_SRDA = 4; S_SRDW = 8; S_SRDO = 12; S_SRDX = 16; S_SRDY = 20
S_WAVE = 24; S_MT = 25; S_NT = 26; S_WR = 27; S_WC = 28
S_SOFA = 29; S_SOFW = 30; S_CNT = 31; S_SLOT = 32; S_DELTA = 33
S_T0 = 34; S_T1 = 35; S_T2 = 36; S_T3 = 37; S_SOFH = 38; S_IR = 39
S_BA = 40; S_BW = 41; S_BH = 42; S_PHI = 43
S_KH = 3
S_STAMP = 50
S_IC = 54; S_LW = 55
S_SRDS = 56
S_EXEC = 60
S_FIT = 62; S_DN = 63
S_G = 64
S_SRDP = 72
PTR = dict(x=76, wqkv=78, wo=80, w1=84, w2=86, out=88, dbg=90, ws=92)
S_KS = 94; S_WA = 95; S_WW = 96; S_TAB = 100; S_HM = 27; S_SIG = 28

class Cfg:
    def __init__(self, **kw):
        self.halo = 0; self.NS = 3; self.bps = 2; self.K = 1024
        self.nodma = self.nomfma = self.noread = False
        self.stamps = False; self.kidx = 0; self.trace = False
        self.xa = 8; self.xb = 4; self.splitk = False
        self.fla = ""; self.flw = ""
        self.prio = 0; self.lprio = 2
        self.rpm = 1; self.read_start = 0
        self.ramp = None
        self.stfl = "sc1"
        self.rot = False; self.perm = 0; self.permoff = 2; self.permr = 1; self.permc = 1
        self.special = {}
        self.fused = False; self.dep = None; self.sig = None
        self.flagiter = None
        self.flagshift = 2; self.pollsleep = 2; self.ldsflag = 124000; self.xbar = False; self.sub = 1; self.order = None; self.ones = False
        self.__dict__.update(kw)
    def hook(self, name, *args):
        f = getattr(self, name, None)
        if f: return f(*args)

def srd(a, d, ptr, off, size):
    p = PTR[ptr]
    if off:
        a("s_add_u32 s%d, s%d, 0x%x" % (d, p, off)); a("s_addc_u32 s%d, s%d, 0" % (d + 1, p + 1))
    else:
        a("s_mov_b32 s%d, s%d" % (d, p)); a("s_mov_b32 s%d, s%d" % (d + 1, p + 1))
    a("s_mov_b32 s%d, 0x%x" % (d + 2, size)); a("s_mov_b32 s%d, 0x20000" % (d + 3))

def stamp_w0(a, c, idx, t=128):
    if getattr(c, "dbgstamp", None) is not None:
        if idx == 1 or (idx == 0 and c.kidx): return
        word = 1 + (0 if idx == 0 else 3 * c.kidx + idx - 1)
        L = a.newlabel("Lst")
        a("s_lshl_b32 s%d, s2, 3" % S_STAMP); a("s_add_u32 s%d, s%d, s%d" % (S_STAMP, S_STAMP, S_WAVE))
        a("s_cmp_lg_u32 s%d, %d" % (S_STAMP, 8 * c.dbgstamp)); a("s_cbranch_scc1 %s" % L)
        a("s_memrealtime s[%d:%d]" % (S_STAMP, S_STAMP + 1)); a("s_waitcnt lgkmcnt(0)")
        srd(a, S_SRDS, "dbg", 0, 256)
        a("v_mov_b32 v%d, s%d" % (t, S_STAMP)); a("v_mov_b32 v%d, %d" % (t + 1, 4 * word))
        a("s_mov_b64 exec, 1")
        a("buffer_store_dword v%d, v%d, s[%d:%d], 0 offen sc1" % (t, t + 1, S_SRDS, S_SRDS + 3))
        a("s_mov_b64 exec, -1")
        a.label(L)
        return
    if not c.stamps: return
    L = a.newlabel("Lst")
    a("s_cmp_lg_u32 s%d, 0" % S_WAVE); a("s_cbranch_scc1 %s" % L)
    a("s_memrealtime s[%d:%d]" % (S_STAMP, S_STAMP + 1)); a("s_memtime s[%d:%d]" % (S_STAMP + 2, S_STAMP + 3))
    a("s_waitcnt lgkmcnt(0)")
    for i in range(4): a("v_mov_b32 v%d, s%d" % (t + i, S_STAMP + i))
    a("s_lshl_b32 s%d, s2, 7" % S_STAMP); a("s_add_u32 s%d, s%d, %d" % (S_STAMP, S_STAMP, c.kidx * 512 * 128 + idx * 8))
    a("v_mov_b32 v%d, s%d" % (t + 4, S_STAMP))
    a("s_mov_b64 exec, 1")
    a("buffer_store_dwordx2 v[%d:%d], v%d, s[%d:%d], 0 offen" % (t, t + 1, t + 4, S_SRDS, S_SRDS + 3))
    a("buffer_store_dwordx2 v[%d:%d], v%d, s[%d:%d], 0 offen offset:64" % (t + 2, t + 3, t + 4, S_SRDS, S_SRDS + 3))
    a("s_mov_b64 exec, -1")
    a.label(L)

def trace(a, c):
    if not c.trace: return
    a("s_memtime s[98:99]"); a("s_waitcnt lgkmcnt(0)")
    a("s_mov_b32 m0, s97"); a("v_writelane_b32 v120, s98, m0"); a("s_add_u32 s97, s97, 1"); a("s_min_u32 s97, s97, 63")

def tile_map(a, c):
    xa, xb = c.xa, c.xb
    la, lb = int(math.log2(xa)), int(math.log2(xb))
    a("s_and_b32 s%d, s2, 7" % S_T0); a("s_lshr_b32 s%d, s2, 3" % S_T1)
    a("s_lshr_b32 s%d, s%d, %d" % (S_IR, S_T1, lb)); a("s_and_b32 s%d, s%d, %d" % (S_IC, S_T1, xb - 1))
    if c.splitk:
        a("s_and_b32 s%d, s%d, 1" % (S_KH, S_T0)); a("s_lshr_b32 s%d, s%d, 1" % (S_T0, S_T0))
        a("s_lshl_b32 s%d, s%d, %d" % (S_MT, S_T0, la)); a("s_add_u32 s%d, s%d, s%d" % (S_MT, S_MT, S_IR))
        a("s_mov_b32 s%d, s%d" % (S_NT, S_IC))
        return
    gcols = 16 // xb; lg = int(math.log2(gcols))
    a("s_lshr_b32 s%d, s%d, %d" % (S_T2, S_T0, lg)); a("s_and_b32 s%d, s%d, %d" % (S_T3, S_T0, gcols - 1))
    a("s_lshl_b32 s%d, s%d, %d" % (S_MT, S_T2, la)); a("s_lshl_b32 s%d, s%d, %d" % (S_NT, S_T3, lb))
    a("s_add_u32 s%d, s%d, s%d" % (S_MT, S_MT, S_IR)); a("s_add_u32 s%d, s%d, s%d" % (S_NT, S_NT, S_IC))

def abytes(c): return (128 + c.halo) * 128
def wbytes(c): return sum(64 * w * 2 for w in c.segw)
def subbytes(c): return abytes(c) + wbytes(c)
def slotbytes(c): return c.sub * subbytes(c)
def nst(c): return c.K // 64 // c.sub
def auxbase(c): return c.NS * slotbytes(c)
def segoffs(c):
    o = abytes(c); r = []
    for w in c.segw:
        r.append(o); o += 64 * w * 2
    return r

def record(a, fn, c):
    t = Asm(); t.lbl = a.lbl
    fn(t, c); a.lbl = t.lbl
    groups = []; cur = None
    for l in t.lines:
        s = l.strip()
        if cur is not None:
            cur.append(s)
            if s in ("s_mov_b32 exec_hi, -1", "s_mov_b64 exec, -1"): groups.append(cur); cur = None
        elif s.startswith("s_mov_b32 exec") or s.startswith("s_mov_b64 exec"):
            cur = [s]
        elif (s.startswith("s_addc") or s.startswith("s_cselect") or s.startswith("s_subb")) and groups:
            groups[-1].append(s)
        else:
            groups.append([s])
    assert cur is None
    return groups

LDSFLAG = 163840 - 4 - 16384 - 2048 + 0
def seam_wait(a, c, prev, phase):
    L1 = a.newlabel("Lsw"); L2 = a.newlabel("Lsx"); L3 = a.newlabel("Lsy")
    a("v_mov_b32 v112, %d" % c.ldsflag); a("v_mov_b32 v111, 0"); a("ds_write_b32 v112, v111")
    a("s_waitcnt lgkmcnt(0)")
    a("s_barrier")
    trace(a, c)
    a("s_cmp_lg_u32 s%d, 0" % S_LW); a("s_cbranch_scc1 %s" % L1)
    srd(a, S_SRDP, "ws", WS_FLAG, 16384)
    a("v_mov_b32 v110, 0"); a("v_mov_b32 v111, 1")
    a("s_mov_b64 exec, 1")
    a("buffer_store_dword v111, v110, s[%d:%d], s%d offen sc1" % (S_SRDP, S_SRDP + 3, S_SIG))
    a("s_mov_b64 exec, -1")
    a("s_lshl_b32 s%d, s%d, 8" % (S_T0, S_MT)); a("s_add_u32 s%d, s%d, %d" % (S_T0, S_T0, phase * 4096))
    a("v_and_b32 v110, 15, v1"); a("v_lshlrev_b32 v110, %d, v110" % c.flagshift)
    spin(a, "v111", "v110", S_T0, c.pollsleep)
    a("v_mov_b32 v111, 1"); a("ds_write_b32 v112, v111")
    a("s_branch %s" % L2)
    a.label(L1)
    a("s_mov_b32 s%d, %d" % (S_DN, SPIN * 4))
    a.label(L3)
    a("ds_read_b32 v111, v112"); a("s_sub_u32 s%d, s%d, 1" % (S_DN, S_DN)); a("s_cbranch_scc1 %s" % L2)
    a("s_waitcnt lgkmcnt(0)")
    a("v_cmp_eq_u32 vcc, 0, v111")
    a("s_cbranch_vccnz %s" % L3)
    a.label(L2)

SPIN = 1 << 18
def spin(a, vd, va, soff, sleep=0):
    L = a.newlabel("Lpf"); Le = a.newlabel("Lpe")
    a("s_mov_b32 s%d, %d" % (S_DN, SPIN))
    a.label(L)
    if sleep: a("s_sleep %d" % sleep)
    a("buffer_load_dword %s, %s, s[%d:%d], s%d offen sc1" % (vd, va, S_SRDP, S_SRDP + 3, soff))
    a("s_sub_u32 s%d, s%d, 1" % (S_DN, S_DN))
    a("s_cbranch_scc1 %s" % Le)
    a("s_waitcnt vmcnt(0)")
    a("v_cmp_eq_u32 vcc, 0, %s" % vd)
    a("s_cbranch_vccnz %s" % L)
    a.label(Le)

def loader_setup(a, c):
    W = S_LW
    dmas = []
    a("v_xor_b32 v5, v4, v3"); a("v_mul_u32_u24 v6, %d, v2" % c.lda); a("v_lshl_add_u32 v8, v5, 4, v6")
    a("v_xor_b32 v9, 64, v8"); a("v_add_u32 v9, %d, v9" % (8 * c.lda - 1024))
    a("v_add_u32 v10, %d, v8" % (16 * c.lda - 2048)); a("v_add_u32 v11, %d, v9" % (16 * c.lda - 2048))
    for j in range(4):
        dmas.append(dict(t="A", v=8 + j, srd=S_SRDA, soff=S_SOFA, m0c=c.halo * 128, m0w=4096, imm=1024 * j, half=False, fl=c.fla))
    vn = 12
    a("s_lshl_b32 s%d, s%d, 2" % (S_T0, S_MT)); a("s_add_u32 s%d, s%d, s%d" % (S_T0, S_T0, W))
    a("s_mul_i32 s%d, s%d, %d" % (S_SOFA, S_T0, 32 * c.lda))
    if c.halo:
        a("s_lshl_b32 s%d, s%d, 1" % (S_T1, W))
        a("v_add_u32 v5, s%d, v4" % S_T1); a("v_xor_b32 v5, v5, v3"); a("v_and_b32 v5, 7, v5")
        a("v_lshl_add_u32 v%d, v5, 4, v6" % vn)
        a("s_lshl_b32 s%d, s%d, 5" % (S_T0, S_MT)); a("s_add_u32 s%d, s%d, s%d" % (S_T0, S_T0, W))
        a("s_sub_i32 s%d, s%d, 4" % (S_T0, S_T0)); a("s_max_i32 s%d, s%d, 0" % (S_T0, S_T0))
        a("s_mul_i32 s%d, s%d, %d" % (S_SOFH, S_T0, 4 * c.lda))
        dmas.append(dict(t="A", v=vn, srd=S_SRDA, soff=S_SOFH, m0c=0, m0w=512, imm=0, half=True, fl=c.fla))
        vn += 1
    a("v_and_b32 v5, 1, v4"); a("v_lshlrev_b32 v5, 1, v5"); a("v_xor_b32 v5, v5, v3")
    a("v_mul_u32_u24 v6, %d, v2" % c.ldb); a("v_lshl_add_u32 v6, v5, 4, v6")
    a("v_xor_b32 v7, 64, v6"); a("v_add_u32 v7, %d, v7" % (8 * c.ldb - 1024))
    so = segoffs(c)
    for s, w in enumerate(c.segw):
        if w == 64:
            for j in range(2):
                if c.col0[s] == 0: v = 6 + j
                else:
                    v = vn; vn += 1
                    a("v_add_u32 v%d, %d, v%d" % (v, c.col0[s] * 2, 6 + j))
                dmas.append(dict(t="W", v=v, srd=S_SRDW, soff=S_SOFW, m0c=so[s], m0w=2048, imm=1024 * j, half=False, fl=c.flw))
        else:
            a("v_lshrrev_b32 v5, 2, v1"); a("v_mul_u32_u24 v5, %d, v5" % c.ldb)
            a("v_lshrrev_b32 v%d, 5, v1" % vn); a("v_lshlrev_b32 v%d, 1, v%d" % (vn, vn)); a("v_xor_b32 v%d, v%d, v1" % (vn, vn))
            a("v_and_b32 v%d, 3, v%d" % (vn, vn)); a("v_lshl_add_u32 v%d, v%d, 4, v5" % (vn, vn))
            a("v_add_u32 v%d, %d, v%d" % (vn, c.col0[s] * 2, vn))
            dmas.append(dict(t="W", v=vn, srd=S_SRDW, soff=S_SOFW, m0c=so[s], m0w=1024, imm=0, half=False, fl=c.flw))
            vn += 1
    a("s_mul_i32 s%d, s%d, %d" % (S_SOFW, W, 16 * c.ldb))
    a("s_mul_i32 s%d, s%d, %d" % (S_T0, S_NT, c.cstep * 2)); a("s_add_u32 s%d, s%d, s%d" % (S_SOFW, S_SOFW, S_T0))
    if c.splitk:
        a("s_mul_i32 s%d, s%d, %d" % (S_T0, S_KH, c.K * 2)); a("s_add_u32 s%d, s%d, s%d" % (S_SOFA, S_SOFA, S_T0))
        a("s_mul_i32 s%d, s%d, %d" % (S_T0, S_KH, c.K * c.ldb)); a("s_add_u32 s%d, s%d, s%d" % (S_SOFW, S_SOFW, S_T0))
    if c.sub == 2:
        ex = []
        for d in dmas:
            e = dict(d); e["v"] = vn; vn += 1; e["m0c"] = d["m0c"] + subbytes(c)
            a("v_add_u32 v%d, %d, v%d" % (e["v"], 128 if d["t"] == "A" else 64 * c.ldb, d["v"]))
            ex.append(e)
        dmas += ex
    assert vn <= 24
    groups = []
    for d in dmas:
        key = (d["m0c"], d["m0w"])
        if key not in groups: groups.append(key)
        d["g"] = groups.index(key)
    assert len(groups) <= 6
    for g, (m0c, m0w) in enumerate(groups):
        a("s_mul_i32 s%d, s%d, %d" % (S_G + g, W, m0w))
        if m0c: a("s_add_u32 s%d, s%d, %d" % (S_G + g, S_G + g, m0c))
    a("s_mov_b32 s%d, s%d" % (S_BA, S_SOFA)); a("s_mov_b32 s%d, s%d" % (S_BW, S_SOFW))
    if c.halo:
        a("s_mov_b32 s%d, s%d" % (S_BH, S_SOFH))
        if c.ones:
            a("s_cmp_eq_u32 s%d, 0" % W); a("s_cselect_b32 s%d, 0xffffff00, -1" % S_HM)
    if c.order == "rot": a("s_add_u32 s%d, s%d, s%d" % (S_PHI, S_MT, S_NT))
    elif c.order == "class":
        a("s_add_u32 s%d, s%d, s%d" % (S_PHI, S_IR, S_IC)); a("s_and_b32 s%d, s%d, 3" % (S_PHI, S_PHI))
        for cl in range(4):
            tb = class_table(nst(c), c.permoff, cl)
            if cl == 0:
                a("s_mov_b32 s%d, 0x%x" % (S_TAB, tb & 0xffffffff)); a("s_mov_b32 s%d, 0x%x" % (S_TAB + 1, tb >> 32))
            else:
                a("s_cmp_eq_u32 s%d, %d" % (S_PHI, cl))
                a("s_cselect_b32 s%d, 0x%x, s%d" % (S_TAB, tb & 0xffffffff, S_TAB)); a("s_cselect_b32 s%d, 0x%x, s%d" % (S_TAB + 1, tb >> 32, S_TAB + 1))
    c.dmas = dmas; c.ndma = len(dmas)

def class_table(N, po, cl):
    M = N - po
    key = lambda X: X - 4.5 if (X % 4 == cl and X >= 4) else X
    seq = list(range(po)) + [po + X for X in sorted(range(M), key=key)]
    tb = 0
    for p, s in enumerate(seq):
        code = {-1: 0, 0: 1, 3: 2, 4: 3}[s - p]
        tb |= code << (2 * p)
    assert sorted(seq) == list(range(N)) and tb < (1 << 64)
    return tb

def loader_run(a, c):
    NS = c.NS; NST = nst(c); SL = slotbytes(c); dmas = c.dmas; n = len(dmas)
    ka, kw = 128 * c.sub, 64 * c.sub * c.ldb
    def head(lock=False):
        if c.order == "rot":
            a("s_add_u32 s%d, s%d, s%d" % (S_WA, S_KS, S_PHI)); a("s_and_b32 s%d, s%d, %d" % (S_WA, S_WA, NST - 1))
        elif c.order == "class" and not lock:
            a("s_and_b32 s%d, s%d, 1" % (S_WA, S_TAB)); a("s_and_b32 s%d, s%d, 2" % (S_WW, S_TAB)); a("s_lshl1_add_u32 s%d, s%d, s%d" % (S_WA, S_WW, S_WA))
            a("s_add_u32 s%d, s%d, s%d" % (S_WA, S_WA, S_KS)); a("s_sub_u32 s%d, s%d, 1" % (S_WA, S_WA))
            a("s_lshr_b64 s[%d:%d], s[%d:%d], 2" % (S_TAB, S_TAB + 1, S_TAB, S_TAB + 1))
        else:
            a("s_mov_b32 s%d, s%d" % (S_WA, S_KS))
        a("s_mul_i32 s%d, s%d, %d" % (S_WW, S_WA, kw)); a("s_mul_i32 s%d, s%d, %d" % (S_WA, S_WA, ka))
        a("s_add_u32 s%d, s%d, s%d" % (S_SOFA, S_BA, S_WA)); a("s_add_u32 s%d, s%d, s%d" % (S_SOFW, S_BW, S_WW))
        if c.halo: a("s_add_u32 s%d, s%d, s%d" % (S_SOFH, S_BH, S_WA))
        a("s_add_u32 s%d, s%d, 1" % (S_KS, S_KS))
    def tail():
        a("s_add_u32 s%d, s%d, %d" % (S_SLOT, S_SLOT, SL)); a("s_cmp_eq_u32 s%d, %d" % (S_SLOT, NS * SL)); a("s_cselect_b32 s%d, 0, s%d" % (S_SLOT, S_SLOT))
    def setm0(d): a("s_add_u32 m0, s%d, s%d" % (S_SLOT, S_G + d["g"]))
    def one(d, cur):
        if c.nodma: return d["g"]
        if d["g"] != cur:
            setm0(d)
            if not d["half"]: a("s_nop 0")
        if d["half"]:
            a("s_mov_b32 exec_hi, 0")
            if c.ones: a("s_mov_b32 exec_lo, s%d" % S_HM)
        a("buffer_load_dwordx4 v%d, s[%d:%d], s%d offen offset:%d %s lds" % (d["v"], d["srd"], d["srd"] + 3, d["soff"], d["imm"], d["fl"]))
        if d["half"]: a("s_mov_b64 exec, -1")
        return d["g"]
    def emit(i0, i1, fill=(), m0ok=True):
        fill = list(fill); k = i1 - i0
        cur = dmas[i0 % n]["g"] if m0ok else None
        for t, i in enumerate(range(i0, i1)):
            j = i % n
            cur = one(dmas[j], cur)
            if j == n - 1:
                tail(); head(); cur = None
            take = -(-len(fill) // (k - t))
            for g in fill[:take]:
                for l in g: a(l)
            fill = fill[take:]
        if dmas[i1 % n]["g"] != cur: setm0(dmas[i1 % n])
    ops = []
    a("s_mov_b32 s%d, 0" % S_SLOT); a("s_mov_b32 s%d, 0" % S_KS)
    if c.dep is None:
        ramp = c.ramp or [2 * n]
        pos = ramp[0]
        head(); emit(0, pos, m0ok=False)
        ops = [(i // n, 1) for i in range(pos)]
    else:
        P = 2
        for typ in ("W", "A"):
            if typ == "A":
                c.hook("loader_wait", a, c)
                c.dep(a, c)
                trace(a, c)
                a("s_mov_b32 s%d, 0" % S_SLOT); a("s_mov_b32 s%d, 0" % S_KS)
            for st in range(P):
                head(lock=(typ == "W")); cur = None
                for d in dmas:
                    if d["t"] == typ:
                        cur = one(d, cur)
                        if typ == "A": ops.append((st, 1))
                tail()
        head(); setm0(dmas[0])
        pos = P * n; ramp = [pos]
    m0dirty = False
    for (when, fn, nvm) in c.special.get(-1, []):
        fn(a, c); ops.append((None, nvm))
    plan = []
    for s in range(NST):
        idx = max(i for i, (st, k) in enumerate(ops) if st == s)
        w = sum(k for st, k in ops[idx + 1:])
        limit = min((NS - 1 if s == 0 else s - 1 + NS) + 1, NST) * n
        want = ramp[s + 1] if s + 1 < len(ramp) else (n if NS == 3 else 2 * n)
        k = max(0, min(want, limit - pos))
        sp = c.special.get(s, [])
        for (when, fn, nvm) in sp:
            if when != "post": ops.append((None, nvm))
        for i in range(pos, pos + k): ops.append((i // n, 1))
        for (when, fn, nvm) in sp:
            if when == "post": ops.append((None, nvm))
        plan.append((min(w, 63), pos % n, k, s if sp else None))
        pos += k
    i = 0
    while i < NST:
        j = i
        while j + 1 < NST and plan[j + 1] == plan[i] and plan[i][2] % n == 0: j += 1
        w, p0, k, sp = plan[i]
        def body(loopctl=()):
            trace(a, c)
            a("s_waitcnt vmcnt(%d)" % w)
            trace(a, c)
            a("s_barrier")
            trace(a, c)
            acts = c.special.get(sp, [])
            for (when, fn, nvm) in acts:
                if when == "pre": fn(a, c)
            fill = []
            for (when, fn, nvm) in acts:
                if when == "weave": fill += record(a, fn, c)
            if k: emit(p0, p0 + k, fill, m0ok=not c.trace)
            else:
                for g in fill:
                    for l in g: a(l)
            for (when, fn, nvm) in acts:
                if when == "post": fn(a, c)
        if j > i:
            L = a.newlabel("Lld"); a("s_mov_b32 s%d, %d" % (S_CNT, j - i + 1)); a.label(L)
            body()
            a("s_sub_u32 s%d, s%d, 1" % (S_CNT, S_CNT)); a("s_cmp_lg_u32 s%d, 0" % S_CNT); a("s_cbranch_scc1 %s" % L)
        else: body()
        i = j + 1
    trace(a, c)
    a("s_barrier")
    trace(a, c)

def trace_dump(a, c):
    if not c.trace: return
    trace(a, c)
    srd(a, S_SRDS, "ws", WS_STAMP + (1 << 20), 1 << 20)
    a("s_lshl_b32 s97, s2, 2"); a("s_add_u32 s97, s97, s%d" % S_LW); a("s_lshl_b32 s97, s97, 8"); a("s_add_u32 s97, s97, %d" % (c.kidx << 18))
    a("v_lshlrev_b32 v121, 2, v1")
    a("buffer_store_dword v120, v121, s[%d:%d], s97 offen" % (S_SRDS, S_SRDS + 3))
    a("s_mov_b32 s97, 0")

V_ADDR = 2
V_ACC = 16

def compute_setup(a, c):
    a("v_and_b32 v10, 15, v1"); a("v_lshrrev_b32 v11, 4, v1")
    a("v_bfe_u32 v12, v10, 1, 3"); a("v_xor_b32 v12, v12, v11"); a("v_lshlrev_b32 v12, 4, v12")
    a("v_lshl_add_u32 v13, v10, 7, v12")
    for i, fn in enumerate(c.aregs):
        fn(a, S_T0)
        a("v_add_u32 v%d, s%d, v13" % (V_ADDR + 2 * i, S_T0)); a("v_xor_b32 v%d, 64, v%d" % (V_ADDR + 2 * i + 1, V_ADDR + 2 * i))
    nA = 2 * len(c.aregs)
    a("v_bfe_u32 v12, v1, 2, 2"); a("v_lshl_add_u32 v12, v11, 3, v12")
    a("v_bfe_u32 v13, v1, 1, 1"); a("v_and_b32 v14, 1, v1"); a("v_lshlrev_b32 v14, 3, v14")
    a("v_bfe_u32 v15, v1, 3, 2"); a("v_lshlrev_b32 v15, 1, v15"); a("v_xor_b32 v15, v15, v13")
    a("v_lshl_add_u32 v15, v15, 4, v14"); a("v_lshl_add_u32 v15, v12, 7, v15")
    if 32 in c.segw:
        a("v_bfe_u32 v11, v1, 4, 1"); a("v_lshlrev_b32 v11, 1, v11"); a("v_xor_b32 v11, v11, v13")
        a("v_lshl_add_u32 v11, v11, 4, v14"); a("v_lshl_add_u32 v11, v12, 6, v11")
    so = segoffs(c)
    for i, (seg, segwc, pc, pwc) in enumerate(c.wregs):
        src = 15 if c.segw[seg] == 64 else 11
        d = V_ADDR + nA + i
        assert d < 11 or (d == 11 and i == len(c.wregs) - 1), d
        if callable(pwc):
            pwc(a, S_T0); a("v_xor_b32 v%d, s%d, v%d" % (d, S_T0, src))
        elif pwc:
            a("s_mul_i32 s%d, s%d, %d" % (S_T0, S_WC, pwc * 32))
            if pc: a("s_add_u32 s%d, s%d, %d" % (S_T0, S_T0, pc * 32))
            a("v_xor_b32 v%d, s%d, v%d" % (d, S_T0, src))
        else: a("v_xor_b32 v%d, %d, v%d" % (d, pc * 32, src))
        if segwc:
            a("s_mul_i32 s%d, s%d, %d" % (S_T0, S_WC, segwc * 8192)); a("s_add_u32 s%d, s%d, %d" % (S_T0, S_T0, so[seg]))
            a("v_add_u32 v%d, s%d, v%d" % (d, S_T0, d))
        else: a("v_add_u32 v%d, %d, v%d" % (d, so[seg], d))
    c.nA = nA; c.naddr = nA + len(c.wregs)

def frag_regs(c):
    MB = len(c.mblk); NB = len(c.nblk); kpb = c.sub
    per = (MB + NB) * 4 * kpb
    return (lambda s, kk, mb: s * per + (kk * (MB + NB) + mb) * 4), (lambda s, kk, nb: s * per + (kk * (MB + NB) + MB + nb) * 4), 2 * per

def fr(i, n):
    return ar(i, n) if i < 88 else vr(140 + i - 88, n)

def reads(c, s, blk):
    fa, fw, _ = frag_regs(c); out = []
    lst = [(0, blk, 0)] if c.sub == 1 else [(0, 0, blk * subbytes(c)), (1, 1, blk * subbytes(c))]
    for kk, kabs, so in lst:
        for mb, (ap, row) in enumerate(c.mblk):
            out.append("ds_read_b128 %s, v%d offset:%d" % (fr(fa(s, kk, mb), 4), V_ADDR + 2 * ap + kabs, so + row * 128))
        for nb, (wreg, immseg, rs) in enumerate(c.nblk):
            for h in range(2):
                out.append("ds_read_b64_tr_b16 %s, v%d offset:%d" % (fr(fw(s, kk, nb) + 2 * h, 2), V_ADDR + c.nA + wreg, so + immseg + (32 * kabs + 4 * h) * rs))
    return [] if c.noread else out

def mfmas(c, s):
    fa, fw, _ = frag_regs(c); out = []
    for kk in range(c.sub):
        for i, (mb, nb, swap) in enumerate(c.mf):
            acc = vr(V_ACC + 4 * i, 4)
            A, B = fr(fw(s, kk, nb), 4), fr(fa(s, kk, mb), 4)
            if swap: A, B = B, A
            out.append("v_mfma_f32_16x16x32_bf16 %s, %s, %s, %s" % (acc, A, B, acc))
    return [] if c.nomfma else out

def weave(main, first, rest, rpm, start=0):
    out = []; q = list(first); r = list(rest)
    for i, m in enumerate(main):
        out.append(m)
        if i < start: continue
        if q:
            for _ in range(rpm):
                if q: out.append(q.pop(0))
        elif r: out.append(r.pop(0))
    return out + q + r

def compute_loop(a, c):
    NST = nst(c); SL = slotbytes(c); NS = c.NS
    for i in range(0, len(c.mf) * 4, 2): a("v_mov_b64 v[%d:%d], 0" % (V_ACC + i, V_ACC + i + 1))
    a("s_mov_b32 s%d, 0" % S_SLOT); a("s_mov_b32 s%d, %d" % (S_T2, SL)); a("s_mov_b32 s%d, %d" % (S_T3, (-(NS - 1) * SL) & 0xffffffff))
    if c.prio: a("s_setprio %d" % c.prio)
    adv_s = ["s_add_u32 s%d, s%d, %d" % (S_SLOT, S_SLOT, SL), "s_cmp_eq_u32 s%d, %d" % (S_SLOT, NS * SL),
             "s_cselect_b32 s%d, s%d, s%d" % (S_DELTA, S_T3, S_T2), "s_cselect_b32 s%d, 0, s%d" % (S_SLOT, S_SLOT)]
    adv_v = ["v_add_u32 v%d, s%d, v%d" % (V_ADDR + i, S_DELTA, V_ADDR + i) for i in range(c.naddr)]
    cnt = ["s_sub_u32 s%d, s%d, 1" % (S_CNT, S_CNT), "s_cmp_lg_u32 s%d, 0" % S_CNT]
    L = a.newlabel("Lc")
    flag = []
    if c.flagiter:
        Lf, Lb = a.newlabel("Lfg"), a.newlabel("Lfb")
        a("s_mov_b32 s%d, %d" % (S_FIT, c.flagiter[0]))
        flag = ["s_cmp_eq_u32 s%d, s%d\ns_cbranch_scc1 %s\n%s:" % (S_CNT, S_FIT, Lf, Lb)]
    def emit(l):
        for x in l: a(x)
    stamp_w0(a, c, 1)
    a("s_barrier")
    stamp_w0(a, c, 2)
    emit(reads(c, 0, 0))
    a("s_mov_b32 s%d, %d" % (S_CNT, NST))
    a.label(L)
    a("s_waitcnt lgkmcnt(0)")
    emit(weave(mfmas(c, 0), reads(c, 1, 1), adv_s + adv_v, c.rpm, c.read_start))
    a("s_waitcnt lgkmcnt(0)"); a("s_barrier")
    emit(weave(mfmas(c, 1), reads(c, 0, 0), flag + cnt, c.rpm, c.read_start))
    a("s_cbranch_scc1 %s" % L)
    a("s_waitcnt lgkmcnt(0)")
    if c.prio: a("s_setprio 0")
    if c.xbar and not getattr(c, "own_xbar", False): a("s_barrier")
    a("s_nop 7")
    stamp_w0(a, c, 3)
    if c.flagiter:
        c.outofline = (Lf, Lb)

def out_of_line(a, c):
    if c.flagiter:
        Lf, Lb = c.outofline
        a.label(Lf); c.flagiter[1](a, c); a("s_branch %s" % Lb)

def signal(a, c):
    a("s_waitcnt vmcnt(0)")
    if c.sig is not None: a("s_barrier")

def sig_addr(a, c):
    a("s_lshl_b32 s%d, s%d, 8" % (S_SIG, S_MT)); a("s_lshl_b32 s%d, s%d, %d" % (S_T0, S_NT, c.flagshift)); a("s_add_u32 s%d, s%d, s%d" % (S_SIG, S_SIG, S_T0))
    a("s_add_u32 s%d, s%d, %d" % (S_SIG, S_SIG, c.sig * 4096))

def emit_kernel(name, phases):
    a = Asm(); a.lbl = phases[0].kidx * 1000
    a.lines.append(kernel_header(name).rstrip())
    a("s_cmp_ge_u32 s2, 256"); a("s_cbranch_scc1 %s_end" % name)
    a("s_load_dwordx16 s[76:91], s[0:1], 0"); a("s_load_dwordx2 s[92:93], s[0:1], 64")
    a("v_lshrrev_b32 v1, 6, v0")
    tile_map(a, phases[0])
    a("v_readfirstlane_b32 s%d, v1" % S_WAVE)
    a("v_and_b32 v1, 63, v0")
    a("s_cmp_ge_u32 s%d, 4" % S_WAVE); a("s_cbranch_scc1 %s_loader" % name)
    for i, c in enumerate(phases):
        a.label("%s_c" % c.name)
        if i: tile_map(a, c)
        a("s_lshr_b32 s%d, s%d, %d" % (S_WR, S_WAVE, c.wc_bits)); a("s_and_b32 s%d, s%d, %d" % (S_WC, S_WAVE, (1 << c.wc_bits) - 1))
        compute_setup(a, c)
        if i == 0:
            a("s_waitcnt lgkmcnt(0)")
            if c.stamps: srd(a, S_SRDS, "ws", WS_STAMP, 1 << 20)
        stamp_w0(a, c, 0)
        c.hook("compute_pre", a, c)
        compute_loop(a, c)
        a.label("%s_epi" % c.name)
        c.epilogue(a, c)
        if c.stamps or getattr(c, "dbgstamp", None) is not None:
            a("s_waitcnt vmcnt(0)"); stamp_w0(a, c, 4)
        if c.sig is not None: signal(a, c)
    a("s_endpgm")
    for c in phases: out_of_line(a, c)
    a.label("%s_loader" % name)
    a("s_sub_u32 s%d, s%d, 4" % (S_LW, S_WAVE))
    a("v_lshrrev_b32 v2, 3, v1"); a("v_and_b32 v3, 7, v1"); a("v_lshrrev_b32 v4, 4, v1")
    for i, c in enumerate(phases):
        a.label("%s_l" % c.name)
        if i:
            sig_addr(a, phases[i - 1]); tile_map(a, c)
        if c.trace:
            a("s_mov_b32 s97, 0"); a("v_mov_b32 v120, 0"); trace(a, c)
        loader_setup(a, c)
        if i == 0:
            a("s_waitcnt lgkmcnt(0)")
            if c.lprio: a("s_setprio %d" % c.lprio)
        srd(a, S_SRDA, *c.A); srd(a, S_SRDW, *c.W)
        if i and phases[i - 1].xbar: a("s_barrier")
        loader_run(a, c)
        if i == len(phases) - 1:
            if c.xbar: a("s_barrier")
            c.hook("loader_post", a, c)
        trace_dump(a, c)
    a.label("%s_end" % name)
    a("s_endpgm")
    a.label("%s_last" % name)
    return a.text()

def code_touch(a, start, end, vt, maxbytes):
    L = a.newlabel("Lpc")
    a("s_getpc_b64 s[48:49]")
    a.label(L)
    a("s_sub_u32 s48, s48, %s-%s" % (L, start)); a("s_subb_u32 s49, s49, 0")
    n = -(-maxbytes // 8192)
    for t in range(n):
        a("v_lshlrev_b32 v%d, 7, v1" % vt)
        if t: a("v_add_u32 v%d, %d, v%d" % (vt, 8192 * t, vt))
        a("v_min_u32 v%d, %s-%s-4, v%d" % (vt, end, start, vt))
        a("global_load_dword v%d, v%d, s[48:49]" % (vt + 1, vt))
    return n

def pk(x): return "v[%d:%d]" % (x, x + 1)
def pack_pair(a, x, y, t):
    a("v_cvt_pk_bf16_f32 v%d, v%d, v%d" % (t, x, x + 1)); a("v_cvt_pk_bf16_f32 v%d, v%d, v%d" % (t + 1, x + 2, x + 3))
    a("v_cvt_pk_bf16_f32 v%d, v%d, v%d" % (t + 2, y, y + 1)); a("v_cvt_pk_bf16_f32 v%d, v%d, v%d" % (t + 3, y + 2, y + 3))
def swap_pair(a, t):
    a("v_permlane32_swap_b32 v%d, v%d" % (t, t + 2)); a("v_permlane32_swap_b32 v%d, v%d" % (t + 1, t + 3))
    a("s_nop 0")
    a("v_permlane16_swap_b32 v%d, v%d" % (t, t + 2)); a("v_permlane16_swap_b32 v%d, v%d" % (t + 1, t + 3))
def acc_of(c, mb, nb):
    for i, (m, n, s) in enumerate(c.mf):
        if m == mb and n == nb: return V_ACC + 4 * i
    raise KeyError

def build(kernels, path):
    hdr = "".join("; @launch kernel=%s grid=(256,1,1) block=(512,1,1) lds=%d\n" % (k[0], k[4]) for k in kernels)
    if len(kernels) == 1 and kernels[0][0].startswith("sequential"):
        hdr = "; @launch grid=(256,1,1) block=(512,1,1) lds=%d\n" % kernels[0][4]
    s = hdr + '.amdgcn_target "amdgcn-amd-amdhsa--gfx950"\n.text\n'
    for k in kernels: s += k[1]
    s += '.section .rodata,"a"\n'
    for k in kernels: s += kernel_desc(k[0], k[2], k[3])
    open(path, "w").write(s)
```

```python
from asmlib import *
import math, struct
def f2u(x): return struct.unpack("<I", struct.pack("<f", x))[0]
LOG2E = 1.4426950408889634

WS_O = 4 << 20; WS_H = 8 << 20; WS_H1 = 12 << 20
WS_STATS = 28 << 20
WS_RSP = 29 << 20
WS_CSP = 30 << 20
WS_CS1 = 31 << 20
WS_FLAG = 32 << 20
WS_STAMP = 0xF000000

S_SRDA = 4; S_SRDW = 8; S_SRDO = 12; S_SRDX = 16; S_SRDY = 20
S_WAVE = 24; S_MT = 25; S_NT = 26; S_WR = 27; S_WC = 28
S_SOFA = 29; S_SOFW = 30; S_CNT = 31; S_SLOT = 32; S_DELTA = 33
S_T0 = 34; S_T1 = 35; S_T2 = 36; S_T3 = 37; S_SOFH = 38; S_IR = 39
S_BA = 40; S_BW = 41; S_BH = 42; S_PHI = 43
S_KH = 3
S_STAMP = 50
S_IC = 54; S_LW = 55
S_SRDS = 56
S_EXEC = 60
S_FIT = 62; S_DN = 63
S_G = 64
S_SRDP = 72
PTR = dict(x=76, wqkv=78, wo=80, w1=84, w2=86, out=88, dbg=90, ws=92)
S_KS = 94; S_WA = 95; S_WW = 96; S_TAB = 100; S_HM = 27; S_SIG = 28

class Cfg:
    def __init__(self, **kw):
        self.halo = 0; self.NS = 3; self.bps = 2; self.K = 1024
        self.nodma = self.nomfma = self.noread = False
        self.stamps = False; self.kidx = 0; self.trace = False
        self.xa = 8; self.xb = 4; self.splitk = False
        self.fla = ""; self.flw = ""
        self.prio = 3; self.lprio = 2
        self.rpm = 1; self.read_start = 0
        self.ramp = None
        self.stfl = "sc1"
        self.rot = False; self.perm = 0; self.permoff = 2; self.permr = 1; self.permc = 1
        self.special = {}
        self.fused = False; self.dep = None; self.sig = None
        self.flagiter = None
        self.ablk = 0; self.flagshift = 4; self.pollsleep = 2; self.ldsflag = 124000; self.xbar = False; self.sub = 1; self.order = None; self.ones = False
        self.__dict__.update(kw)
    def hook(self, name, *args):
        f = getattr(self, name, None)
        if f: return f(*args)

def srd(a, d, ptr, off, size):
    p = PTR[ptr]
    if off:
        a("s_add_u32 s%d, s%d, 0x%x" % (d, p, off)); a("s_addc_u32 s%d, s%d, 0" % (d + 1, p + 1))
    else:
        a("s_mov_b32 s%d, s%d" % (d, p)); a("s_mov_b32 s%d, s%d" % (d + 1, p + 1))
    a("s_mov_b32 s%d, 0x%x" % (d + 2, size)); a("s_mov_b32 s%d, 0x20000" % (d + 3))

def stamp_w0(a, c, idx, t=128):
    if getattr(c, "dbgstamp", None) is not None:
        if idx == 1 or (idx == 0 and c.kidx): return
        word = 1 + (0 if idx == 0 else 3 * c.kidx + idx - 1)
        L = a.newlabel("Lst")
        a("s_lshl_b32 s%d, s2, 3" % S_STAMP); a("s_add_u32 s%d, s%d, s%d" % (S_STAMP, S_STAMP, S_WAVE))
        a("s_cmp_lg_u32 s%d, %d" % (S_STAMP, 8 * c.dbgstamp)); a("s_cbranch_scc1 %s" % L)
        a("s_memrealtime s[%d:%d]" % (S_STAMP, S_STAMP + 1)); a("s_waitcnt lgkmcnt(0)")
        srd(a, S_SRDS, "dbg", 0, 256)
        a("v_mov_b32 v%d, s%d" % (t, S_STAMP)); a("v_mov_b32 v%d, %d" % (t + 1, 4 * word))
        a("s_mov_b64 exec, 1")
        a("buffer_store_dword v%d, v%d, s[%d:%d], 0 offen sc1" % (t, t + 1, S_SRDS, S_SRDS + 3))
        a("s_mov_b64 exec, -1")
        a.label(L)
        return
    if not c.stamps: return
    L = a.newlabel("Lst")
    a("s_cmp_lg_u32 s%d, 0" % S_WAVE); a("s_cbranch_scc1 %s" % L)
    a("s_memrealtime s[%d:%d]" % (S_STAMP, S_STAMP + 1)); a("s_memtime s[%d:%d]" % (S_STAMP + 2, S_STAMP + 3))
    a("s_waitcnt lgkmcnt(0)")
    for i in range(4): a("v_mov_b32 v%d, s%d" % (t + i, S_STAMP + i))
    a("s_lshl_b32 s%d, s2, 7" % S_STAMP); a("s_add_u32 s%d, s%d, %d" % (S_STAMP, S_STAMP, c.kidx * 512 * 128 + idx * 8))
    a("v_mov_b32 v%d, s%d" % (t + 4, S_STAMP))
    a("s_mov_b64 exec, 1")
    a("buffer_store_dwordx2 v[%d:%d], v%d, s[%d:%d], 0 offen" % (t, t + 1, t + 4, S_SRDS, S_SRDS + 3))
    a("buffer_store_dwordx2 v[%d:%d], v%d, s[%d:%d], 0 offen offset:64" % (t + 2, t + 3, t + 4, S_SRDS, S_SRDS + 3))
    a("s_mov_b64 exec, -1")
    a.label(L)

def trace(a, c):
    if not c.trace: return
    a("s_memtime s[98:99]"); a("s_waitcnt lgkmcnt(0)")
    a("s_mov_b32 m0, s97"); a("v_writelane_b32 v120, s98, m0"); a("s_add_u32 s97, s97, 1"); a("s_min_u32 s97, s97, 63")

def tile_map(a, c):
    xa, xb = c.xa, c.xb
    la, lb = int(math.log2(xa)), int(math.log2(xb))
    a("s_and_b32 s%d, s2, 7" % S_T0); a("s_lshr_b32 s%d, s2, 3" % S_T1)
    a("s_lshr_b32 s%d, s%d, %d" % (S_IR, S_T1, lb)); a("s_and_b32 s%d, s%d, %d" % (S_IC, S_T1, xb - 1))
    if c.splitk:
        a("s_and_b32 s%d, s%d, 1" % (S_KH, S_T0)); a("s_lshr_b32 s%d, s%d, 1" % (S_T0, S_T0))
        a("s_lshl_b32 s%d, s%d, %d" % (S_MT, S_T0, la)); a("s_add_u32 s%d, s%d, s%d" % (S_MT, S_MT, S_IR))
        a("s_mov_b32 s%d, s%d" % (S_NT, S_IC))
        return
    gcols = 16 // xb; lg = int(math.log2(gcols))
    a("s_lshr_b32 s%d, s%d, %d" % (S_T2, S_T0, lg)); a("s_and_b32 s%d, s%d, %d" % (S_T3, S_T0, gcols - 1))
    a("s_lshl_b32 s%d, s%d, %d" % (S_MT, S_T2, la)); a("s_lshl_b32 s%d, s%d, %d" % (S_NT, S_T3, lb))
    a("s_add_u32 s%d, s%d, s%d" % (S_MT, S_MT, S_IR)); a("s_add_u32 s%d, s%d, s%d" % (S_NT, S_NT, S_IC))

def abytes(c): return (128 + c.halo) * 128
def wbytes(c): return sum(64 * w * 2 for w in c.segw)
def subbytes(c): return abytes(c) + wbytes(c)
def slotbytes(c): return c.sub * subbytes(c)
def nst(c): return c.K // 64 // c.sub
def auxbase(c): return c.NS * slotbytes(c)
def segoffs(c):
    o = abytes(c); r = []
    for w in c.segw:
        r.append(o); o += 64 * w * 2
    return r

def record(a, fn, c):
    t = Asm(); t.lbl = a.lbl
    fn(t, c); a.lbl = t.lbl
    groups = []; cur = None
    for l in t.lines:
        s = l.strip()
        if cur is not None:
            cur.append(s)
            if s in ("s_mov_b32 exec_hi, -1", "s_mov_b64 exec, -1"): groups.append(cur); cur = None
        elif s.startswith("s_mov_b32 exec") or s.startswith("s_mov_b64 exec"):
            cur = [s]
        elif (s.startswith("s_addc") or s.startswith("s_cselect") or s.startswith("s_subb")) and groups:
            groups[-1].append(s)
        else:
            groups.append([s])
    assert cur is None
    return groups

LDSFLAG = 163840 - 4 - 16384 - 2048 + 0
def seam_wait(a, c, prev, phase):
    L1 = a.newlabel("Lsw"); L2 = a.newlabel("Lsx"); L3 = a.newlabel("Lsy")
    a("v_mov_b32 v112, %d" % c.ldsflag); a("v_mov_b32 v111, 0"); a("ds_write_b32 v112, v111")
    a("s_waitcnt lgkmcnt(0)")
    a("s_barrier")
    trace(a, c)
    a("s_cmp_lg_u32 s%d, 0" % S_LW); a("s_cbranch_scc1 %s" % L1)
    srd(a, S_SRDP, "ws", WS_FLAG, 16384)
    a("v_mov_b32 v110, 0"); a("v_mov_b32 v111, 1")
    a("s_mov_b64 exec, 1")
    a("buffer_store_dword v111, v110, s[%d:%d], s%d offen sc1" % (S_SRDP, S_SRDP + 3, S_SIG))
    a("s_mov_b64 exec, -1")
    a("s_lshl_b32 s%d, s%d, 8" % (S_T0, S_MT)); a("s_add_u32 s%d, s%d, %d" % (S_T0, S_T0, phase * 4096))
    a("v_and_b32 v110, 15, v1"); a("v_lshlrev_b32 v110, %d, v110" % c.flagshift)
    spin(a, "v111", "v110", S_T0, c.pollsleep)
    a("v_mov_b32 v111, 1"); a("ds_write_b32 v112, v111")
    a("s_branch %s" % L2)
    a.label(L1)
    a("s_mov_b32 s%d, %d" % (S_DN, SPIN * 4))
    a.label(L3)
    a("ds_read_b32 v111, v112"); a("s_sub_u32 s%d, s%d, 1" % (S_DN, S_DN)); a("s_cbranch_scc1 %s" % L2)
    a("s_waitcnt lgkmcnt(0)")
    a("v_cmp_eq_u32 vcc, 0, v111")
    a("s_cbranch_vccnz %s" % L3)
    a.label(L2)

SPIN = 1 << 18
def spin(a, vd, va, soff, sleep=0):
    L = a.newlabel("Lpf"); Le = a.newlabel("Lpe")
    a("s_mov_b32 s%d, %d" % (S_DN, SPIN))
    a.label(L)
    if sleep: a("s_sleep %d" % sleep)
    a("buffer_load_dword %s, %s, s[%d:%d], s%d offen sc1" % (vd, va, S_SRDP, S_SRDP + 3, soff))
    a("s_sub_u32 s%d, s%d, 1" % (S_DN, S_DN))
    a("s_cbranch_scc1 %s" % Le)
    a("s_waitcnt vmcnt(0)")
    a("v_cmp_eq_u32 vcc, 0, %s" % vd)
    a("s_cbranch_vccnz %s" % L)
    a.label(Le)

def blk_pattern(a, d):
    a("v_xor_b32 v5, v4, v3"); a("v_lshrrev_b32 v%d, 2, v5" % d); a("v_lshlrev_b32 v%d, 13, v%d" % (d, d)); a("v_and_b32 v5, 3, v5")
    a("v_lshl_add_u32 v%d, v5, 4, v%d" % (d, d)); a("v_lshl_add_u32 v%d, v2, 6, v%d" % (d, d))
    a("v_xor_b32 v%d, 0x2000, v%d" % (d + 1, d)); a("v_add_u32 v%d, %d, v%d" % (d + 1, 4096 - 512, d + 1))
    a("v_add_u32 v%d, %d, v%d" % (d + 2, 4096 - 1024, d)); a("v_add_u32 v%d, -1024, v%d" % (d + 3, d + 1)); a("v_add_u32 v%d, 4096, v%d" % (d, d))

def loader_setup(a, c):
    W = S_LW
    dmas = []
    if c.ablk:
        blk_pattern(a, 8)
    else:
        a("v_xor_b32 v5, v4, v3"); a("v_mul_u32_u24 v6, %d, v2" % c.lda); a("v_lshl_add_u32 v8, v5, 4, v6")
        a("v_xor_b32 v9, 64, v8"); a("v_add_u32 v9, %d, v9" % (8 * c.lda - 1024))
        a("v_add_u32 v10, %d, v8" % (16 * c.lda - 2048)); a("v_add_u32 v11, %d, v9" % (16 * c.lda - 2048))
    for j in range(4):
        dmas.append(dict(t="A", v=8 + j, srd=S_SRDA, soff=S_SOFA, m0c=c.halo * 128, m0w=4096, imm=1024 * j, half=False, fl=c.fla))
    vn = 12
    if c.ablk:
        a("s_mul_i32 s%d, s%d, %d" % (S_SOFA, S_MT, c.ablk * 8192)); a("s_lshl_b32 s%d, s%d, 11" % (S_T0, W)); a("s_add_u32 s%d, s%d, s%d" % (S_SOFA, S_SOFA, S_T0))
    else:
        a("s_lshl_b32 s%d, s%d, 2" % (S_T0, S_MT)); a("s_add_u32 s%d, s%d, s%d" % (S_T0, S_T0, W))
        a("s_mul_i32 s%d, s%d, %d" % (S_SOFA, S_T0, 32 * c.lda))
    if c.halo:
        a("s_lshl_b32 s%d, s%d, 1" % (S_T1, W))
        a("v_add_u32 v5, s%d, v4" % S_T1); a("v_xor_b32 v5, v5, v3"); a("v_and_b32 v5, 7, v5")
        a("v_lshl_add_u32 v%d, v5, 4, v6" % vn)
        a("s_lshl_b32 s%d, s%d, 5" % (S_T0, S_MT)); a("s_add_u32 s%d, s%d, s%d" % (S_T0, S_T0, W))
        a("s_sub_i32 s%d, s%d, 4" % (S_T0, S_T0)); a("s_max_i32 s%d, s%d, 0" % (S_T0, S_T0))
        a("s_mul_i32 s%d, s%d, %d" % (S_SOFH, S_T0, 4 * c.lda))
        dmas.append(dict(t="A", v=vn, srd=S_SRDA, soff=S_SOFH, m0c=0, m0w=512, imm=0, half=True, fl=c.fla))
        vn += 1
    a("v_and_b32 v5, 1, v4"); a("v_lshlrev_b32 v5, 1, v5"); a("v_xor_b32 v5, v5, v3")
    a("v_mul_u32_u24 v6, %d, v2" % c.ldb); a("v_lshl_add_u32 v6, v5, 4, v6")
    a("v_xor_b32 v7, 64, v6"); a("v_add_u32 v7, %d, v7" % (8 * c.ldb - 1024))
    so = segoffs(c)
    for s, w in enumerate(c.segw):
        if w == 64:
            for j in range(2):
                if c.col0[s] == 0: v = 6 + j
                else:
                    v = vn; vn += 1
                    a("v_add_u32 v%d, %d, v%d" % (v, c.col0[s] * 2, 6 + j))
                dmas.append(dict(t="W", v=v, srd=S_SRDW, soff=S_SOFW, m0c=so[s], m0w=2048, imm=1024 * j, half=False, fl=c.flw))
        else:
            a("v_lshrrev_b32 v5, 2, v1"); a("v_mul_u32_u24 v5, %d, v5" % c.ldb)
            a("v_lshrrev_b32 v%d, 5, v1" % vn); a("v_lshlrev_b32 v%d, 1, v%d" % (vn, vn)); a("v_xor_b32 v%d, v%d, v1" % (vn, vn))
            a("v_and_b32 v%d, 3, v%d" % (vn, vn)); a("v_lshl_add_u32 v%d, v%d, 4, v5" % (vn, vn))
            a("v_add_u32 v%d, %d, v%d" % (vn, c.col0[s] * 2, vn))
            dmas.append(dict(t="W", v=vn, srd=S_SRDW, soff=S_SOFW, m0c=so[s], m0w=1024, imm=0, half=False, fl=c.flw))
            vn += 1
    a("s_mul_i32 s%d, s%d, %d" % (S_SOFW, W, 16 * c.ldb))
    a("s_mul_i32 s%d, s%d, %d" % (S_T0, S_NT, c.cstep * 2)); a("s_add_u32 s%d, s%d, s%d" % (S_SOFW, S_SOFW, S_T0))
    if c.splitk:
        a("s_mul_i32 s%d, s%d, %d" % (S_T0, S_KH, c.K * 2)); a("s_add_u32 s%d, s%d, s%d" % (S_SOFA, S_SOFA, S_T0))
        a("s_mul_i32 s%d, s%d, %d" % (S_T0, S_KH, c.K * c.ldb)); a("s_add_u32 s%d, s%d, s%d" % (S_SOFW, S_SOFW, S_T0))
    if c.sub == 2:
        ex = []
        for d in dmas:
            e = dict(d); e["v"] = vn; vn += 1; e["m0c"] = d["m0c"] + subbytes(c)
            a("v_add_u32 v%d, %d, v%d" % (e["v"], (16384 if c.ablk else 128) if d["t"] == "A" else 64 * c.ldb, d["v"]))
            ex.append(e)
        dmas += ex
    assert vn <= 24
    groups = []
    for d in dmas:
        key = (d["m0c"], d["m0w"])
        if key not in groups: groups.append(key)
        d["g"] = groups.index(key)
    assert len(groups) <= 6
    for g, (m0c, m0w) in enumerate(groups):
        a("s_mul_i32 s%d, s%d, %d" % (S_G + g, W, m0w))
        if m0c: a("s_add_u32 s%d, s%d, %d" % (S_G + g, S_G + g, m0c))
    a("s_mov_b32 s%d, s%d" % (S_BA, S_SOFA)); a("s_mov_b32 s%d, s%d" % (S_BW, S_SOFW))
    if c.halo:
        a("s_mov_b32 s%d, s%d" % (S_BH, S_SOFH))
        if c.ones:
            a("s_cmp_eq_u32 s%d, 0" % W); a("s_cselect_b32 s%d, 0xffffff00, -1" % S_HM)
    if c.order == "rot": a("s_add_u32 s%d, s%d, s%d" % (S_PHI, S_MT, S_NT))
    elif c.order == "class":
        a("s_add_u32 s%d, s%d, s%d" % (S_PHI, S_IR, S_IC)); a("s_and_b32 s%d, s%d, 3" % (S_PHI, S_PHI))
        for cl in range(4):
            tb = class_table(nst(c), c.permoff, cl)
            if cl == 0:
                a("s_mov_b32 s%d, 0x%x" % (S_TAB, tb & 0xffffffff)); a("s_mov_b32 s%d, 0x%x" % (S_TAB + 1, tb >> 32))
            else:
                a("s_cmp_eq_u32 s%d, %d" % (S_PHI, cl))
                a("s_cselect_b32 s%d, 0x%x, s%d" % (S_TAB, tb & 0xffffffff, S_TAB)); a("s_cselect_b32 s%d, 0x%x, s%d" % (S_TAB + 1, tb >> 32, S_TAB + 1))
    c.dmas = dmas; c.ndma = len(dmas)

def class_table(N, po, cl):
    M = N - po
    key = lambda X: X - 4.5 if (X % 4 == cl and X >= 4) else X
    seq = list(range(po)) + [po + X for X in sorted(range(M), key=key)]
    tb = 0
    for p, s in enumerate(seq):
        code = {-1: 0, 0: 1, 3: 2, 4: 3}[s - p]
        tb |= code << (2 * p)
    assert sorted(seq) == list(range(N)) and tb < (1 << 64)
    return tb

def loader_run(a, c):
    NS = c.NS; NST = nst(c); SL = slotbytes(c); dmas = c.dmas; n = len(dmas)
    ka, kw = (16384 if c.ablk else 128) * c.sub, 64 * c.sub * c.ldb
    def head(lock=False):
        if c.order == "rot":
            a("s_add_u32 s%d, s%d, s%d" % (S_WA, S_KS, S_PHI)); a("s_and_b32 s%d, s%d, %d" % (S_WA, S_WA, NST - 1))
        elif c.order == "class" and not lock:
            a("s_and_b32 s%d, s%d, 1" % (S_WA, S_TAB)); a("s_and_b32 s%d, s%d, 2" % (S_WW, S_TAB)); a("s_lshl1_add_u32 s%d, s%d, s%d" % (S_WA, S_WW, S_WA))
            a("s_add_u32 s%d, s%d, s%d" % (S_WA, S_WA, S_KS)); a("s_sub_u32 s%d, s%d, 1" % (S_WA, S_WA))
            a("s_lshr_b64 s[%d:%d], s[%d:%d], 2" % (S_TAB, S_TAB + 1, S_TAB, S_TAB + 1))
        else:
            a("s_mov_b32 s%d, s%d" % (S_WA, S_KS))
        a("s_mul_i32 s%d, s%d, %d" % (S_WW, S_WA, kw)); a("s_mul_i32 s%d, s%d, %d" % (S_WA, S_WA, ka))
        a("s_add_u32 s%d, s%d, s%d" % (S_SOFA, S_BA, S_WA)); a("s_add_u32 s%d, s%d, s%d" % (S_SOFW, S_BW, S_WW))
        if c.halo: a("s_add_u32 s%d, s%d, s%d" % (S_SOFH, S_BH, S_WA))
        a("s_add_u32 s%d, s%d, 1" % (S_KS, S_KS))
    def tail():
        a("s_add_u32 s%d, s%d, %d" % (S_SLOT, S_SLOT, SL)); a("s_cmp_eq_u32 s%d, %d" % (S_SLOT, NS * SL)); a("s_cselect_b32 s%d, 0, s%d" % (S_SLOT, S_SLOT))
    def setm0(d): a("s_add_u32 m0, s%d, s%d" % (S_SLOT, S_G + d["g"]))
    def one(d, cur):
        if c.nodma: return d["g"]
        if d["g"] != cur:
            setm0(d)
            if not d["half"]: a("s_nop 0")
        if d["half"]:
            a("s_mov_b32 exec_hi, 0")
            if c.ones: a("s_mov_b32 exec_lo, s%d" % S_HM)
        a("buffer_load_dwordx4 v%d, s[%d:%d], s%d offen offset:%d %s lds" % (d["v"], d["srd"], d["srd"] + 3, d["soff"], d["imm"], d["fl"]))
        if d["half"]: a("s_mov_b64 exec, -1")
        return d["g"]
    def emit(i0, i1, fill=(), m0ok=True):
        fill = list(fill); k = i1 - i0
        cur = dmas[i0 % n]["g"] if m0ok else None
        for t, i in enumerate(range(i0, i1)):
            j = i % n
            cur = one(dmas[j], cur)
            if j == n - 1:
                tail(); head(); cur = None
            take = -(-len(fill) // (k - t))
            for g in fill[:take]:
                for l in g: a(l)
            fill = fill[take:]
        if dmas[i1 % n]["g"] != cur: setm0(dmas[i1 % n])
    ops = []
    a("s_mov_b32 s%d, 0" % S_SLOT); a("s_mov_b32 s%d, 0" % S_KS)
    if c.dep is None:
        ramp = c.ramp or [2 * n]
        pos = ramp[0]
        head(); emit(0, pos, m0ok=False)
        ops = [(i // n, 1) for i in range(pos)]
    else:
        P = 2
        for typ in ("W", "A"):
            if typ == "A":
                c.hook("loader_wait", a, c)
                c.dep(a, c)
                trace(a, c)
                a("s_mov_b32 s%d, 0" % S_SLOT); a("s_mov_b32 s%d, 0" % S_KS)
            for st in range(P):
                head(lock=(typ == "W")); cur = None
                for d in dmas:
                    if d["t"] == typ:
                        cur = one(d, cur)
                        if typ == "A": ops.append((st, 1))
                tail()
        head(); setm0(dmas[0])
        pos = P * n; ramp = [pos]
    m0dirty = False
    for (when, fn, nvm) in c.special.get(-1, []):
        fn(a, c); ops.append((None, nvm))
    plan = []
    for s in range(NST):
        idx = max(i for i, (st, k) in enumerate(ops) if st == s)
        w = sum(k for st, k in ops[idx + 1:])
        limit = min((NS - 1 if s == 0 else s - 1 + NS) + 1, NST) * n
        want = ramp[s + 1] if s + 1 < len(ramp) else (n if NS == 3 else 2 * n)
        k = max(0, min(want, limit - pos))
        sp = c.special.get(s, [])
        for (when, fn, nvm) in sp:
            if when != "post": ops.append((None, nvm))
        for i in range(pos, pos + k): ops.append((i // n, 1))
        for (when, fn, nvm) in sp:
            if when == "post": ops.append((None, nvm))
        plan.append((min(w, 63), pos % n, k, s if sp else None))
        pos += k
    i = 0
    while i < NST:
        j = i
        while j + 1 < NST and plan[j + 1] == plan[i] and plan[i][2] % n == 0: j += 1
        w, p0, k, sp = plan[i]
        def body(loopctl=()):
            trace(a, c)
            a("s_waitcnt vmcnt(%d)" % w)
            trace(a, c)
            a("s_barrier")
            trace(a, c)
            acts = c.special.get(sp, [])
            for (when, fn, nvm) in acts:
                if when == "pre": fn(a, c)
            fill = []
            for (when, fn, nvm) in acts:
                if when == "weave": fill += record(a, fn, c)
            if k: emit(p0, p0 + k, fill, m0ok=not c.trace)
            else:
                for g in fill:
                    for l in g: a(l)
            for (when, fn, nvm) in acts:
                if when == "post": fn(a, c)
        if j > i:
            L = a.newlabel("Lld"); a("s_mov_b32 s%d, %d" % (S_CNT, j - i + 1)); a.label(L)
            body()
            a("s_sub_u32 s%d, s%d, 1" % (S_CNT, S_CNT)); a("s_cmp_lg_u32 s%d, 0" % S_CNT); a("s_cbranch_scc1 %s" % L)
        else: body()
        i = j + 1
    trace(a, c)
    a("s_barrier")
    trace(a, c)

def trace_dump(a, c):
    if not c.trace: return
    trace(a, c)
    srd(a, S_SRDS, "ws", WS_STAMP + (1 << 20), 1 << 20)
    a("s_lshl_b32 s97, s2, 2"); a("s_add_u32 s97, s97, s%d" % S_LW); a("s_lshl_b32 s97, s97, 8"); a("s_add_u32 s97, s97, %d" % (c.kidx << 18))
    a("v_lshlrev_b32 v121, 2, v1")
    a("buffer_store_dword v120, v121, s[%d:%d], s97 offen" % (S_SRDS, S_SRDS + 3))
    a("s_mov_b32 s97, 0")

V_ADDR = 2
V_ACC = 16

def compute_setup(a, c):
    a("v_and_b32 v16, 15, v1"); a("v_lshrrev_b32 v17, 4, v1")
    a("v_bfe_u32 v18, v16, 1, 3"); a("v_xor_b32 v18, v18, v17"); a("v_lshlrev_b32 v18, 4, v18")
    a("v_lshl_add_u32 v19, v16, 7, v18")
    for i, fn in enumerate(c.aregs):
        fn(a, S_T0)
        a("v_add_u32 v%d, s%d, v19" % (V_ADDR + 2 * i, S_T0)); a("v_xor_b32 v%d, 64, v%d" % (V_ADDR + 2 * i + 1, V_ADDR + 2 * i))
    nA = 2 * len(c.aregs)
    a("v_bfe_u32 v18, v1, 2, 2"); a("v_lshl_add_u32 v18, v17, 3, v18")
    a("v_bfe_u32 v19, v1, 1, 1"); a("v_and_b32 v20, 1, v1"); a("v_lshlrev_b32 v20, 3, v20")
    a("v_bfe_u32 v21, v1, 3, 2"); a("v_lshlrev_b32 v21, 1, v21"); a("v_xor_b32 v21, v21, v19")
    a("v_lshl_add_u32 v21, v21, 4, v20"); a("v_lshl_add_u32 v21, v18, 7, v21")
    if 32 in c.segw:
        a("v_bfe_u32 v17, v1, 4, 1"); a("v_lshlrev_b32 v17, 1, v17"); a("v_xor_b32 v17, v17, v19")
        a("v_lshl_add_u32 v17, v17, 4, v20"); a("v_lshl_add_u32 v17, v18, 6, v17")
    so = segoffs(c)
    for i, (seg, segwc, pc, pwc) in enumerate(c.wregs):
        src = 21 if c.segw[seg] == 64 else 17
        d = V_ADDR + nA + i
        assert d < 16
        if callable(pwc):
            pwc(a, S_T0); a("v_xor_b32 v%d, s%d, v%d" % (d, S_T0, src))
        elif pwc:
            a("s_mul_i32 s%d, s%d, %d" % (S_T0, S_WC, pwc * 32))
            if pc: a("s_add_u32 s%d, s%d, %d" % (S_T0, S_T0, pc * 32))
            a("v_xor_b32 v%d, s%d, v%d" % (d, S_T0, src))
        else: a("v_xor_b32 v%d, %d, v%d" % (d, pc * 32, src))
        if segwc:
            a("s_mul_i32 s%d, s%d, %d" % (S_T0, S_WC, segwc * 8192)); a("s_add_u32 s%d, s%d, %d" % (S_T0, S_T0, so[seg]))
            a("v_add_u32 v%d, s%d, v%d" % (d, S_T0, d))
        else: a("v_add_u32 v%d, %d, v%d" % (d, so[seg], d))
    c.nA = nA; c.naddr = nA + len(c.wregs)

def frag_regs(c):
    MB = len(c.mblk); NB = len(c.nblk); kpb = c.sub
    per = (MB + NB) * 4 * kpb
    return (lambda s, kk, mb: s * per + (kk * (MB + NB) + mb) * 4), (lambda s, kk, nb: s * per + (kk * (MB + NB) + MB + nb) * 4), 2 * per

def fr(i, n):
    return ar(i, n) if i < 88 else vr(140 + i - 88, n)

def reads(c, s, blk):
    fa, fw, _ = frag_regs(c); out = []
    lst = [(0, blk, 0)] if c.sub == 1 else [(0, 0, blk * subbytes(c)), (1, 1, blk * subbytes(c))]
    for kk, kabs, so in lst:
        for mb, (ap, row) in enumerate(c.mblk):
            out.append("ds_read_b128 %s, v%d offset:%d" % (fr(fa(s, kk, mb), 4), V_ADDR + 2 * ap + kabs, so + row * 128))
        for nb, (wreg, immseg, rs) in enumerate(c.nblk):
            for h in range(2):
                out.append("ds_read_b64_tr_b16 %s, v%d offset:%d" % (fr(fw(s, kk, nb) + 2 * h, 2), V_ADDR + c.nA + wreg, so + immseg + (32 * kabs + 4 * h) * rs))
    return [] if c.noread else out

def mfmas(c, s):
    fa, fw, _ = frag_regs(c); out = []
    for kk in range(c.sub):
        for i, (mb, nb, swap) in enumerate(c.mf):
            acc = vr(V_ACC + 4 * i, 4)
            A, B = fr(fw(s, kk, nb), 4), fr(fa(s, kk, mb), 4)
            if swap: A, B = B, A
            out.append("v_mfma_f32_16x16x32_bf16 %s, %s, %s, %s" % (acc, A, B, acc))
    return [] if c.nomfma else out

def weave(main, first, rest, rpm, start=0):
    out = []; q = list(first); r = list(rest)
    for i, m in enumerate(main):
        out.append(m)
        if i < start: continue
        if q:
            for _ in range(rpm):
                if q: out.append(q.pop(0))
        elif r:
            out.append(r.pop(0))
            if len(r) > len(main) - i - 1: out.append(r.pop(0))
    return out + q + r

def compute_loop(a, c):
    NST = nst(c); SL = slotbytes(c); NS = c.NS
    for i in range(0, len(c.mf) * 4, 2): a("v_mov_b64 v[%d:%d], 0" % (V_ACC + i, V_ACC + i + 1))
    a("s_mov_b32 s%d, 0" % S_SLOT); a("s_mov_b32 s%d, %d" % (S_T2, SL)); a("s_mov_b32 s%d, %d" % (S_T3, (-(NS - 1) * SL) & 0xffffffff))
    if c.prio: a("s_setprio %d" % c.prio)
    adv_s = ["s_add_u32 s%d, s%d, %d" % (S_SLOT, S_SLOT, SL), "s_cmp_eq_u32 s%d, %d" % (S_SLOT, NS * SL),
             "s_cselect_b32 s%d, s%d, s%d" % (S_DELTA, S_T3, S_T2), "s_cselect_b32 s%d, 0, s%d" % (S_SLOT, S_SLOT)]
    adv_v = ["v_add_u32 v%d, s%d, v%d" % (V_ADDR + i, S_DELTA, V_ADDR + i) for i in range(c.naddr)]
    cnt = ["s_sub_u32 s%d, s%d, 1" % (S_CNT, S_CNT), "s_cmp_lg_u32 s%d, 0" % S_CNT]
    L = a.newlabel("Lc")
    flag = []
    if c.flagiter:
        Lf, Lb = a.newlabel("Lfg"), a.newlabel("Lfb")
        a("s_mov_b32 s%d, %d" % (S_FIT, c.flagiter[0]))
        flag = ["s_cmp_eq_u32 s%d, s%d\ns_cbranch_scc1 %s\n%s:" % (S_CNT, S_FIT, Lf, Lb)]
    def emit(l):
        for x in l: a(x)
    stamp_w0(a, c, 1)
    a("s_barrier")
    stamp_w0(a, c, 2)
    emit(reads(c, 0, 0))
    a("s_mov_b32 s%d, %d" % (S_CNT, NST))
    a.label(L)
    a("s_waitcnt lgkmcnt(0)")
    late = [x for i, x in enumerate(adv_v) if c.sub == 1 and i < c.nA and i % 2 == 1]
    early = [x for x in adv_v if x not in late]
    emit(weave(mfmas(c, 0), reads(c, 1, 1), adv_s + early, c.rpm, c.read_start))
    a("s_waitcnt lgkmcnt(0)"); a("s_barrier")
    emit(weave(mfmas(c, 1), reads(c, 0, 0), late + flag + cnt, c.rpm, c.read_start))
    a("s_cbranch_scc1 %s" % L)
    a("s_waitcnt lgkmcnt(0)")
    if c.prio: a("s_setprio 0")
    if c.xbar and not getattr(c, "own_xbar", False): a("s_barrier")
    a("s_nop 7")
    stamp_w0(a, c, 3)
    if c.flagiter:
        c.outofline = (Lf, Lb)

def out_of_line(a, c):
    if c.flagiter:
        Lf, Lb = c.outofline
        a.label(Lf); c.flagiter[1](a, c); a("s_branch %s" % Lb)

def signal(a, c):
    a("s_waitcnt vmcnt(0)")
    if c.sig is not None: a("s_barrier")

def sig_addr(a, c):
    a("s_lshl_b32 s%d, s%d, 8" % (S_SIG, S_MT)); a("s_lshl_b32 s%d, s%d, %d" % (S_T0, S_NT, c.flagshift)); a("s_add_u32 s%d, s%d, s%d" % (S_SIG, S_SIG, S_T0))
    a("s_add_u32 s%d, s%d, %d" % (S_SIG, S_SIG, c.sig * 4096))

def emit_kernel(name, phases):
    a = Asm(); a.lbl = phases[0].kidx * 1000
    a.lines.append(kernel_header(name).rstrip())
    a("s_cmp_ge_u32 s2, 256"); a("s_cbranch_scc1 %s_end" % name)
    a("s_load_dwordx16 s[76:91], s[0:1], 0"); a("s_load_dwordx2 s[92:93], s[0:1], 64")
    a("v_lshrrev_b32 v1, 6, v0")
    tile_map(a, phases[0])
    a("v_readfirstlane_b32 s%d, v1" % S_WAVE)
    a("v_and_b32 v1, 63, v0")
    a("s_cmp_ge_u32 s%d, 4" % S_WAVE); a("s_cbranch_scc1 %s_loader" % name)
    for i, c in enumerate(phases):
        a.label("%s_c" % c.name)
        if i: tile_map(a, c)
        a("s_lshr_b32 s%d, s%d, %d" % (S_WR, S_WAVE, c.wc_bits)); a("s_and_b32 s%d, s%d, %d" % (S_WC, S_WAVE, (1 << c.wc_bits) - 1))
        compute_setup(a, c)
        if i == 0:
            a("s_waitcnt lgkmcnt(0)")
            if c.stamps: srd(a, S_SRDS, "ws", WS_STAMP, 1 << 20)
        stamp_w0(a, c, 0)
        c.hook("compute_pre", a, c)
        compute_loop(a, c)
        a.label("%s_epi" % c.name)
        c.epilogue(a, c)
        if c.stamps or getattr(c, "dbgstamp", None) is not None:
            a("s_waitcnt vmcnt(0)"); stamp_w0(a, c, 4)
        if c.sig is not None: signal(a, c)
    a("s_endpgm")
    for c in phases: out_of_line(a, c)
    a.label("%s_loader" % name)
    a("s_sub_u32 s%d, s%d, 4" % (S_LW, S_WAVE))
    a("v_lshrrev_b32 v2, 3, v1"); a("v_and_b32 v3, 7, v1"); a("v_lshrrev_b32 v4, 4, v1")
    for i, c in enumerate(phases):
        a.label("%s_l" % c.name)
        if i:
            phases[i - 1].hook("loader_share", a, phases[i - 1])
            sig_addr(a, phases[i - 1]); tile_map(a, c)
        if c.trace:
            a("s_mov_b32 s97, 0"); a("v_mov_b32 v120, 0"); trace(a, c)
        loader_setup(a, c)
        if i == 0:
            a("s_waitcnt lgkmcnt(0)")
            if c.lprio: a("s_setprio %d" % c.lprio)
        srd(a, S_SRDA, *c.A); srd(a, S_SRDW, *c.W)
        if i and phases[i - 1].xbar and not getattr(phases[i - 1], "loader_share", None): a("s_barrier")
        loader_run(a, c)
        if i == len(phases) - 1:
            if c.xbar: a("s_barrier")
            c.hook("loader_post", a, c)
        trace_dump(a, c)
    a.label("%s_end" % name)
    a("s_endpgm")
    a.label("%s_last" % name)
    return a.text()

def code_touch(a, start, end, vt, maxbytes):
    L = a.newlabel("Lpc")
    a("s_getpc_b64 s[48:49]")
    a.label(L)
    a("s_sub_u32 s48, s48, %s-%s" % (L, start)); a("s_subb_u32 s49, s49, 0")
    n = -(-maxbytes // 8192)
    for t in range(n):
        a("v_lshlrev_b32 v%d, 7, v1" % vt)
        if t: a("v_add_u32 v%d, %d, v%d" % (vt, 8192 * t, vt))
        a("v_min_u32 v%d, %s-%s-4, v%d" % (vt, end, start, vt))
        a("global_load_dword v%d, v%d, s[48:49]" % (vt + 1, vt))
    return n

def pk(x): return "v[%d:%d]" % (x, x + 1)
def pack_pair(a, x, y, t):
    a("v_cvt_pk_bf16_f32 v%d, v%d, v%d" % (t, x, x + 1)); a("v_cvt_pk_bf16_f32 v%d, v%d, v%d" % (t + 1, x + 2, x + 3))
    a("v_cvt_pk_bf16_f32 v%d, v%d, v%d" % (t + 2, y, y + 1)); a("v_cvt_pk_bf16_f32 v%d, v%d, v%d" % (t + 3, y + 2, y + 3))
def swap_pair(a, t):
    a("v_permlane32_swap_b32 v%d, v%d" % (t, t + 2)); a("v_permlane32_swap_b32 v%d, v%d" % (t + 1, t + 3))
    a("s_nop 0")
    a("v_permlane16_swap_b32 v%d, v%d" % (t, t + 2)); a("v_permlane16_swap_b32 v%d, v%d" % (t + 1, t + 3))
def acc_of(c, mb, nb):
    for i, (m, n, s) in enumerate(c.mf):
        if m == mb and n == nb: return V_ACC + 4 * i
    raise KeyError

def build(kernels, path):
    hdr = "".join("; @launch kernel=%s grid=(256,1,1) block=(512,1,1) lds=%d\n" % (k[0], k[4]) for k in kernels)
    if len(kernels) == 1 and kernels[0][0].startswith("sequential"):
        hdr = "; @launch grid=(256,1,1) block=(512,1,1) lds=%d\n" % kernels[0][4]
    s = hdr + '.amdgcn_target "amdgcn-amd-amdhsa--gfx950"\n.text\n'
    for k in kernels: s += k[1]
    s += '.section .rodata,"a"\n'
    for k in kernels: s += kernel_desc(k[0], k[2], k[3])
    open(path, "w").write(s)
```

```python
from g7 import *

def rows_wr(mult, add=0):
    def f(a, d):
        a("s_mul_i32 s%d, s%d, %d" % (d, S_WR, mult * 128))
        if add: a("s_add_u32 s%d, s%d, %d" % (d, d, add * 128))
    return f
def rows_zero(a, d): a("s_mov_b32 s%d, 0" % d)

def trlane(a, d, t):
    a("v_bfe_u32 v%d, v1, 4, 1" % t); a("v_lshlrev_b32 v%d, 3, v%d" % (t, t))
    a("v_bfe_u32 v%d, v1, 5, 1" % (t + 1)); a("v_lshl_add_u32 v%d, v%d, 2, v%d" % (t, t + 1, t))
    a("v_bfe_u32 v%d, v1, 2, 2" % (t + 1)); a("v_add_u32 v%d, v%d, v%d" % (t, t, t + 1))
    a("v_bfe_u32 v%d, v1, 3, 2" % (t + 1)); a("v_lshlrev_b32 v%d, 1, v%d" % (t + 1, t + 1))
    a("v_bfe_u32 v%d, v1, 1, 1" % (t + 2)); a("v_xor_b32 v%d, v%d, v%d" % (t + 1, t + 1, t + 2))
    a("v_and_b32 v%d, 1, v1" % (t + 2)); a("v_lshlrev_b32 v%d, 3, v%d" % (t + 2, t + 2))
    a("v_lshl_add_u32 v%d, v%d, 4, v%d" % (t + 1, t + 1, t + 2)); a("v_lshl_add_u32 v%d, v%d, 7, v%d" % (d, t, t + 1))

def reduce4(a, X):
    a("s_nop 1")
    a("v_permlane32_swap_b32 v%d, v%d" % (X[0], X[2])); a("v_permlane32_swap_b32 v%d, v%d" % (X[1], X[3])); a("s_nop 0")
    a("v_add_f32 v%d, v%d, v%d" % (X[0], X[0], X[2])); a("v_add_f32 v%d, v%d, v%d" % (X[1], X[1], X[3])); a("s_nop 1")
    a("v_permlane16_swap_b32 v%d, v%d" % (X[0], X[1])); a("s_nop 0")
    a("v_add_f32 v%d, v%d, v%d" % (X[0], X[0], X[1]))

def finish_stats(a, s, q, t):
    a("v_mul_f32 v%d, 0x%x, v%d" % (s, f2u(1.0 / 1024), s)); a("v_mul_f32 v%d, 0x%x, v%d" % (q, f2u(1.0 / 1024), q))
    a("v_fma_f32 v%d, -v%d, v%d, v%d" % (q, s, s, q)); a("v_max_f32 v%d, 0, v%d" % (q, q))
    a("v_cvt_pk_bf16_f32 v%d, v%d, v%d" % (t, s, q))
    a("v_lshlrev_b32 v%d, 16, v%d" % (t + 1, t)); a("v_and_b32 v%d, 0xffff0000, v%d" % (q, t))
    a("v_add_f32 v%d, 0x%x, v%d" % (q, f2u(1e-5), q)); a("v_cvt_pk_bf16_f32 v%d, v%d, v%d" % (t, q, q)); a("v_and_b32 v%d, 0xffff0000, v%d" % (q, t))
    a("v_sqrt_f32 v%d, v%d" % (q, q)); a("s_nop 0"); a("v_cvt_pk_bf16_f32 v%d, v%d, v%d" % (t, q, q)); a("v_and_b32 v%d, 0xffff0000, v%d" % (q, t))
    a("v_rcp_f32 v%d, v%d" % (s, q)); a("v_sub_f32 v%d, 0, v%d" % (q, t + 1))

def flat_touch(a, c, ptr, nbytes, vt):
    srd(a, S_SRDP, ptr, 0, nbytes)
    per = nbytes // 1024
    a("s_lshl_b32 s%d, s2, 2" % S_T0); a("s_add_u32 s%d, s%d, s%d" % (S_T0, S_T0, S_LW)); a("s_mul_i32 s%d, s%d, %d" % (S_T0, S_T0, per))
    a("v_min_u32 v%d, %d, v1" % (vt, per // 128 - 1)); a("v_lshlrev_b32 v%d, 7, v%d" % (vt, vt))
    a("buffer_load_dword v%d, v%d, s[%d:%d], s%d offen" % (vt + 1, vt, S_SRDP, S_SRDP + 3, S_T0))
def tail_pf(a, c):
    for (ptr, nb) in c.tail_pf: flat_touch(a, c, ptr, nb, 98)
    for cp in c.codepf: code_touch(a, *cp)
def n_tail(c): return len(c.tail_pf) + sum(-(-cp[3] // 8192) for cp in c.codepf)

def cnt_add(a, word, sreg):
    a("s_mov_b32 s%d, 1" % sreg)
    a("s_atomic_add s%d, s[%d:%d], %d" % (sreg, PTR["dbg"], PTR["dbg"] + 1, 4 * word))
def cnt_poll(word, v=44):
    def f(a, c):
        srd(a, S_SRDP, "dbg", 0, 256)
        a("v_mov_b32 v%d, %d" % (v + 2, 4 * word))
        a("buffer_load_dword v%d, v%d, s[%d:%d], 0 offen sc1" % (v, v + 2, S_SRDP, S_SRDP + 3))
    return f
def cnt_check(a, v=44):
    L = a.newlabel("Lpo"); Ld = a.newlabel("Lpd")
    a("s_mov_b32 s%d, %d" % (S_DN, SPIN))
    a.label(L)
    a("v_cmp_gt_u32 vcc, 0x100, v%d" % v)
    a("s_cbranch_vccz %s" % Ld)
    a("s_sub_u32 s%d, s%d, 1" % (S_DN, S_DN)); a("s_cbranch_scc1 %s" % Ld)
    a("s_sleep 4")
    a("buffer_load_dword v%d, v%d, s[%d:%d], 0 offen sc1" % (v, v + 2, S_SRDP, S_SRDP + 3))
    a("s_waitcnt vmcnt(0)")
    a("s_branch %s" % L)
    a.label(Ld)

AUX1_W1 = 2048
XCH = 98304
def k1_setup(a, c):
    srd(a, S_SRDX, "ws", WS_RSP, 2048 * 8)
    a("v_mov_b32 v46, 0x3f803f80"); a("v_and_b32 v47, 31, v1"); a("v_lshlrev_b32 v47, 2, v47")
    a("ds_write_b32 v47, v46"); a("ds_write_b32 v47, v46 offset:%d" % slotbytes(c))
    a("v_add_u32 v47, %d, v47" % (2 * slotbytes(c))); a("ds_write_b32 v47, v46")
    a("s_waitcnt lgkmcnt(0)")
def rows_load(a, c):
    srd(a, S_SRDX, "x", 0, 4 << 20)
    a("s_lshl_b32 s40, s2, 2"); a("s_add_u32 s40, s40, s%d" % S_WAVE); a("s_lshl_b32 s41, s40, 12"); a("s_lshl_b32 s40, s40, 4")
    a("v_lshlrev_b32 v47, 4, v1")
    for i in range(4): a("buffer_load_dwordx4 v[%d:%d], v47, s[%d:%d], s41 offen offset:%d" % (48 + 4 * i, 51 + 4 * i, S_SRDX, S_SRDX + 3, 1024 * i))
    a("s_mov_b32 s42, s40")
    if c.wtouch:
        srd(a, S_SRDP, "wqkv", 0, 6 << 20)
        a("s_mul_i32 s41, s40, %d" % (6144 // 16))
        if c.wtouch == 1:
            a("v_min_u32 v47, 47, v1"); a("v_lshlrev_b32 v47, 7, v47")
            a("buffer_load_dword v167, v47, s[%d:%d], s41 offen" % (S_SRDP, S_SRDP + 3))
def rows_pub(a, c):
    a("s_waitcnt vmcnt(%d)" % (1 if c.wtouch else 0))
    for r in range(2):
        S, Q = 28 + 8 * r, 32 + 8 * r
        for d in range(8):
            x = 48 + 8 * r + d; t = 64 + 2 * (d & 3); e = 2 * (d & 1)
            a("v_lshlrev_b32 v%d, 16, v%d" % (t, x)); a("v_and_b32 v%d, 0xffff0000, v%d" % (t + 1, x))
            if d < 2:
                a("v_mov_b64 %s, %s" % (pk(S + e), pk(t))); a("v_pk_mul_f32 %s, %s, %s" % (pk(Q + e), pk(t), pk(t)))
            else:
                a("v_pk_add_f32 %s, %s, %s" % (pk(S + e), pk(S + e), pk(t))); a("v_pk_fma_f32 %s, %s, %s, %s" % (pk(Q + e), pk(t), pk(t), pk(Q + e)))
    for S in (28, 32, 36, 40): a("v_pk_add_f32 %s, %s, %s" % (pk(S), pk(S), pk(S + 2)))
    for S in (28, 36, 32, 40): a("v_add_f32 v%d, v%d, v%d" % (S, S, S + 1))
    srd(a, S_SRDX, "ws", WS_RSP, 2048 * 8)
    a("v_permlane32_swap_b32 v28, v36"); a("v_permlane32_swap_b32 v32, v40"); a("s_nop 0")
    a("v_add_f32 v28, v28, v36"); a("v_add_f32 v29, v32, v40"); a("s_nop 0")
    a("v_mov_b32 v30, v28"); a("v_mov_b32 v31, v29"); a("s_nop 1")
    a("v_permlane16_swap_b32 v28, v30"); a("v_permlane16_swap_b32 v29, v31"); a("s_nop 0")
    a("v_add_f32 v28, v28, v30"); a("v_add_f32 v29, v29, v31")
    for sh in ("row_ror:1", "row_ror:2", "row_ror:4", "row_ror:8"):
        a("s_nop 1")
        a("v_add_f32_dpp v28, v28, v28 %s row_mask:0xf bank_mask:0xf" % sh); a("v_add_f32_dpp v29, v29, v29 %s row_mask:0xf bank_mask:0xf" % sh)
    finish_stats(a, 28, 29, 30)
    a("v_lshrrev_b32 v30, 5, v1"); a("v_lshlrev_b32 v30, 3, v30")
    a("s_mov_b32 exec_lo, 1"); a("s_mov_b32 exec_hi, 1")
    a("buffer_store_dwordx2 v[28:29], v30, s[%d:%d], s42 offen sc1" % (S_SRDX, S_SRDX + 3))
    if c.fused:
        srd(a, S_SRDP, "ws", WS_FLAG, 16384)
        a("s_mov_b64 exec, 15")
        a("v_mov_b32 v31, 0"); a("v_lshlrev_b32 v30, 2, v1")
        a("buffer_store_dword v31, v30, s[%d:%d], s42 offen sc1" % (S_SRDP, S_SRDP + 3))
    a("s_mov_b64 exec, -1")
def k1_drain(a, c): a("s_waitcnt vmcnt(0)")
def lw0_cnt(word):
    def f(a, c):
        L = a.newlabel("Lc1f")
        a("s_cmp_lg_u32 s%d, 0" % S_LW); a("s_cbranch_scc1 %s" % L)
        cnt_add(a, word, S_T0)
        a.label(L)
    return f
def k1_prep(a, c):
    trlane(a, 24, 64)
    a("s_mul_i32 s%d, s%d, 36" % (S_T0, S_LW)); a("v_add_u32 v33, s%d, v1" % S_T0)
    a("s_lshl_b32 s%d, s%d, 7" % (S_T1, S_MT)); a("s_sub_i32 s%d, s%d, 16" % (S_T1, S_T1))
    a("v_add_u32 v34, s%d, v33" % S_T1); a("v_max_i32 v34, 0, v34"); a("v_lshlrev_b32 v34, 3, v34")
    a("v_lshlrev_b32 v33, 2, v33"); a("v_add_u32 v33, %d, v33" % auxbase(c))
    a("s_lshl_b32 s%d, s2, 2" % S_T0); a("s_add_u32 s%d, s%d, s%d" % (S_T0, S_T0, S_LW))
    a("s_mul_hi_u32 s46, s%d, %d" % (S_T0, (1 << 32) // 56 + 1)); a("s_mul_i32 s%d, s46, 56" % S_T1); a("s_sub_u32 s47, s%d, s%d" % (S_T0, S_T1))
    a("s_mul_i32 s44, s46, %d" % (64 * 7168)); a("s_lshl_b32 s%d, s47, 7" % S_T1); a("s_add_u32 s44, s44, s%d" % S_T1)
    a("v_and_b32 v96, 1, v4"); a("v_lshlrev_b32 v96, 1, v96"); a("v_xor_b32 v96, v96, v3")
    a("v_mul_u32_u24 v97, 7168, v2"); a("v_lshl_add_u32 v96, v96, 4, v97"); a("v_xor_b32 v97, 64, v96")
def k1_tail(a, c):
    cnt_check(a)
    a("buffer_load_dwordx2 v[36:37], v34, s[%d:%d], 0 offen sc1" % (S_SRDX, S_SRDX + 3))
    srd(a, S_SRDW, "w1", 0, 1024 * 7168)
    a("s_lshl_b32 s%d, s%d, 13" % (S_T1, S_LW)); a("s_add_u32 s%d, s%d, %d" % (S_T1, S_T1, auxbase(c) + AUX1_W1))
    for i in range(8):
        a("s_mov_b32 m0, s%d" % S_T1); a("s_add_u32 s%d, s%d, 1024" % (S_T1, S_T1))
        a("buffer_load_dwordx4 v%d, s[%d:%d], s44 offen lds" % (96 + (i & 1), S_SRDW, S_SRDW + 3))
        if i < 7: a("s_add_u32 s44, s44, %d" % (8 * 7168))
    tail_pf(a, c)
def k1_fin(a, c):
    a("s_waitcnt vmcnt(%d)" % (8 + n_tail(c)))
    a("s_mov_b32 exec_hi, 15")
    a("ds_write_b32 v33, v36 offset:%d" % c.aux[0]); a("ds_write_b32 v33, v37 offset:%d" % c.aux[1])
    a("s_mov_b32 exec_hi, -1")
    a("s_waitcnt lgkmcnt(0)")
def k1_post_f(base, nafter):
    def f(a, c):
        srd(a, S_SRDY, "ws", WS_CS1, 16 * 3584 * 4)
        a("s_lshl_b32 s%d, s%d, 13" % (S_T1, S_LW)); a("s_add_u32 s%d, s%d, %d" % (S_T1, S_T1, base + AUX1_W1))
        for p in range(4):
            a("v_xor_b32 v%d, %d, v24" % (28 + p, 32 * p)); a("v_add_u32 v%d, s%d, v%d" % (28 + p, S_T1, 28 + p))
        for r in range(32, 40): a("v_mov_b32 v%d, 0" % r)
        a("s_mov_b32 s70, 0x3f803f80")
        a("s_waitcnt vmcnt(%d)" % nafter(c))
        for q in range(4):
            for p in range(4): a("ds_read_b64_tr_b16 v[%d:%d], v%d offset:%d" % (48 + 8 * q + 2 * p, 49 + 8 * q + 2 * p, 28 + p, 2048 * q))
        a("s_waitcnt lgkmcnt(0)")
        for q in range(4):
            for p in range(4):
                for d in range(2): a("v_dot2c_f32_bf16 v%d, s70, v%d" % (32 + 2 * p + d, 48 + 8 * q + 2 * p + d))
        a("s_nop 2")
        for p in range(4): a("v_add_f32 v%d, v%d, v%d" % (32 + 2 * p, 32 + 2 * p, 33 + 2 * p))
        reduce4(a, [32, 34, 36, 38])
        a("s_mul_i32 s%d, s46, %d" % (S_T0, 3584 * 4)); a("s_lshl_b32 s%d, s47, 8" % S_T1); a("s_add_u32 s%d, s%d, s%d" % (S_T0, S_T0, S_T1))
        a("v_lshlrev_b32 v28, 2, v1")
        a("buffer_store_dword v32, v28, s[%d:%d], s%d offen sc1" % (S_SRDY, S_SRDY + 3, S_T0))
    return f

BIAS = 148
def pre_k1(a, c):
    rows_load(a, c)
    srd(a, S_SRDO, *c.O)
    a("v_and_b32 v12, 15, v1"); a("v_lshrrev_b32 v13, 4, v1")
    a("v_lshlrev_b32 v14, 2, v13"); a("v_sub_u32 v14, v12, v14")
    a("s_mov_b32 s%d, 0x%x" % (S_T0, f2u(-1e30))); a("v_mov_b32 v12, s%d" % S_T0)
    for half in range(2):
        for r in range(4):
            a("v_add_u32 v13, %d, v14" % ((16 if half == 0 else 0) - r)); a("v_and_b32 v13, 0xfffffff1, v13")
            a("v_cmp_ne_u32 vcc, 0, v13"); a("s_nop 1")
            a("v_cndmask_b32 v%d, 0, v12, vcc" % (BIAS + 4 * half + r))
    a("s_or_b32 s%d, s%d, s%d" % (S_T1, S_MT, S_WR)); a("s_cmp_eq_u32 s%d, 0" % S_T1); a("s_cselect_b32 s%d, s%d, 0" % (S_T1, S_T0))
    for r in range(4): a("v_add_f32 v%d, s%d, v%d" % (BIAS + 8 + r, S_T1, BIAS + r))
    base = auxbase(c); CSB = base + c.aux[2]
    a("v_lshlrev_b32 v12, 4, v1")
    a("s_mul_i32 s%d, s%d, 6144" % (S_T0, S_WAVE)); a("s_add_u32 s%d, s%d, %d" % (S_T0, S_T0, XCH))
    a("s_xor_b32 s%d, s%d, 2" % (S_T1, S_WAVE)); a("s_mul_i32 s%d, s%d, 6144" % (S_T1, S_T1)); a("s_add_u32 s%d, s%d, %d" % (S_T1, S_T1, XCH))
    a("v_add_u32 v160, s%d, v12" % S_T0)
    a("s_cmp_eq_u32 s%d, 0" % S_WR)
    for i, (own, s0, s1) in enumerate(((True, 0, 3), (False, 0, 2), (True, 1, 5), (False, 1, 4))):
        a("s_add_u32 s40, s%d, %d" % (S_T0 if own else S_T1, 1024 * s0)); a("s_add_u32 s41, s%d, %d" % (S_T1, 1024 * s1))
        a("s_cmp_eq_u32 s%d, 0" % S_WR); a("s_cselect_b32 s40, s40, s41")
        a("v_add_u32 v%d, s40, v12" % (161 + i))
    a("s_lshl_b32 s%d, s%d, 7" % (S_T0, S_WC)); a("s_lshl_b32 s%d, s%d, 6" % (S_T1, S_WR)); a("s_add_u32 s%d, s%d, s%d" % (S_T0, S_T0, S_T1)); a("s_add_u32 s%d, s%d, %d" % (S_T0, S_T0, CSB))
    a("v_lshrrev_b32 v13, 4, v1"); a("v_lshlrev_b32 v13, 4, v13"); a("v_add_u32 v165, s%d, v13" % S_T0)
    a("v_and_b32 v13, 15, v1"); a("v_lshlrev_b32 v13, 2, v13"); a("v_add_u32 v166, s%d, v13" % S_T0)
    rows_pub(a, c)

def epi_k1(a, c):
    base = auxbase(c); AUX_A, AUX_NM, AUX_CS = c.aux
    assert (base + AUX_CS) % 128 == 0
    hq, hk, hv = acc_of(c, 0, 0), acc_of(c, 0, 2), acc_of(c, 0, 4)
    A = lambda b, nb: (acc_of(c, b, nb) if b else {2: hk, 3: hq, 4: hv, 5: V_ACC + 108}[nb])
    for i, r in enumerate((hk, hv, A(4, 2), A(4, 3), A(4, 4), A(4, 5))): a("ds_write_b128 v160, v[%d:%d] offset:%d" % (r, r + 3, 1024 * i))
    a("s_mov_b32 exec_lo, 0x10001"); a("s_mov_b32 exec_hi, 0x10001")
    a("ds_write_b128 v165, v[%d:%d]" % (hq, hq + 3)); a("ds_write_b128 v165, v[%d:%d] offset:256" % (hk, hk + 3))
    a("s_mov_b64 exec, 0xffff")
    a("ds_write_b32 v166, v%d offset:512" % hv)
    a("s_mov_b64 exec, -1")
    a("v_and_b32 v2, 15, v1"); a("v_lshrrev_b32 v3, 4, v1")
    a("s_lshl_b32 s%d, s%d, 8" % (S_T0, S_WR)); a("s_add_u32 s%d, s%d, %d" % (S_T0, S_T0, base))
    a("v_lshlrev_b32 v4, 2, v2"); a("v_add_u32 v4, s%d, v4" % S_T0)
    a("v_lshlrev_b32 v5, 4, v3"); a("v_add_u32 v5, s%d, v5" % S_T0)
    a("v_xor_b32 v6, 64, v165"); a("v_xor_b32 v7, 64, v166")
    AN = 128; CQ = 140; CK = 160; CV = 138
    for mb in (1, 2, 3, 4, 0): a("ds_read2_b32 %s, v4 offset0:%d offset1:%d" % (pk(AN + 2 * mb), AUX_A // 4 + 16 * mb, AUX_NM // 4 + 16 * mb))
    a("ds_read_b128 v[8:11], v5 offset:%d" % AUX_A); a("ds_read_b128 v[12:15], v5 offset:%d" % AUX_NM)
    a("s_waitcnt lgkmcnt(7)")
    a("s_barrier")
    a("ds_read_b128 v[%d:%d], v165" % (CQ, CQ + 3)); a("ds_read_b128 v[%d:%d], v6" % (CQ + 4, CQ + 7))
    for i, nb in enumerate((2, 3, 4, 5)): a("ds_read_b128 v[%d:%d], v%d" % (A(0, nb), A(0, nb) + 3, 161 + i))
    a("ds_read_b32 v%d, v166 offset:512" % CV); a("ds_read_b32 v%d, v7 offset:512" % (CV + 1))
    a("ds_read_b128 v[%d:%d], v165 offset:256" % (CK, CK + 3)); a("ds_read_b128 v[%d:%d], v6 offset:256" % (CK + 4, CK + 7))
    def norm_rowlane(x, an, cs):
        for p in range(2): a("v_pk_fma_f32 %s, %s, %s, %s op_sel:[0,1,0] op_sel_hi:[1,1,1]" % (pk(x + 2 * p), pk(cs + 2 * p), pk(an), pk(x + 2 * p)))
    def scale_rowlane(x, an):
        for p in range(2): a("v_pk_mul_f32 %s, %s, %s op_sel_hi:[1,0]" % (pk(x + 2 * p), pk(x + 2 * p), pk(an)))
    def packqk(b, nb0, cs):
        x0, x1 = A(b, nb0), A(b, nb0 + 1)
        norm_rowlane(x0, AN + 2 * b, cs); norm_rowlane(x1, AN + 2 * b, cs + 4); scale_rowlane(x0, AN + 2 * b); scale_rowlane(x1, AN + 2 * b)
        pack_pair(a, x0, x1, x0)
    QP = {b: A(b, 0) for b in range(1, 5)}; KP = {b: A(b, 2) for b in range(5)}
    a("s_waitcnt lgkmcnt(8)")
    for b in range(1, 5): packqk(b, 0, CQ)
    a("s_waitcnt lgkmcnt(0)")
    for b in (1, 2, 3, 4, 0): packqk(b, 2, CK)
    S0 = {b: A(b, 1) for b in range(1, 5)}; S1 = {b: A(b, 3) for b in range(1, 5)}
    for b in (2, 3, 4, 1):
        a("v_mfma_f32_16x16x32_bf16 %s, %s, %s, 0" % (vr(S1[b], 4), vr(KP[b], 4), vr(QP[b], 4)))
        a("v_mfma_f32_16x16x32_bf16 %s, %s, %s, 0" % (vr(S0[b], 4), vr(KP[b - 1], 4), vr(QP[b], 4)))
    VP = [128, 158]
    VP = [128, 160 - 2]
    VB = [(8, 12), (140, 144)]
    a("s_mov_b32 s64, 0x%x" % f2u(32 ** -0.5 * LOG2E)); a("s_mov_b32 s65, s64")
    def vblock(b):
        va, vn = VB[b & 1]
        if b < 4:
            na, nn = VB[(b + 1) & 1]
            a("ds_read_b128 v[%d:%d], v5 offset:%d" % (na, na + 3, AUX_A + 64 * (b + 1))); a("ds_read_b128 v[%d:%d], v5 offset:%d" % (nn, nn + 3, AUX_NM + 64 * (b + 1)))
        a("s_waitcnt lgkmcnt(%d)" % (2 if b < 4 else 0))
        xs = [A(b, 4), A(b, 5)]
        for cc in range(2):
            for p in range(2):
                sel = "op_sel_hi:[1,0,1]" if cc == 0 else "op_sel:[0,1,0] op_sel_hi:[1,1,1]"
                a("v_pk_fma_f32 %s, %s, %s, %s %s" % (pk(xs[cc] + 2 * p), pk(vn + 2 * p), pk(CV), pk(xs[cc] + 2 * p), sel))
        for cc in range(2):
            for p in range(2): a("v_pk_mul_f32 %s, %s, %s" % (pk(xs[cc] + 2 * p), pk(xs[cc] + 2 * p), pk(va + 2 * p)))
    def vpack(b):
        xs = [A(b, 4), A(b, 5)]
        for cc in range(2):
            a("v_cvt_pk_bf16_f32 v%d, v%d, v%d" % (VP[cc] + 2 * b, xs[cc], xs[cc] + 1))
            a("v_cvt_pk_bf16_f32 v%d, v%d, v%d" % (VP[cc] + 2 * b + 1, xs[cc] + 2, xs[cc] + 3))
    vblock(0)
    for b in (1, 2, 3, 4):
        vblock(b); vpack(b)
    for b in range(1, 5):
        for h, s in enumerate((S0[b], S1[b])):
            bias = BIAS + 8 if (b == 1 and h == 0) else BIAS + 4 * h
            for p in range(2): a("v_pk_fma_f32 %s, %s, s[64:65], %s" % (pk(s + 2 * p), pk(s + 2 * p), pk(bias + 2 * p)))
    vpack(0)
    M, T = 8, 12
    for st in range(4):
        for b in range(1, 5):
            s, u = S0[b], S1[b]; m = M + b - 1
            a(["v_max3_f32 v%d, v%d, v%d, v%d" % (m, s, s + 1, s + 2), "v_max3_f32 v%d, v%d, v%d, v%d" % (m, m, s + 3, u),
               "v_max3_f32 v%d, v%d, v%d, v%d" % (m, m, u + 1, u + 2), "v_max_f32 v%d, v%d, v%d" % (m, m, u + 3)][st])
    def xreduce(op):
        for sw in ("v_permlane16_swap_b32", "v_permlane32_swap_b32"):
            for b in range(4): a("v_mov_b32 v%d, v%d" % (T + b, M + b))
            for b in range(4): a("%s v%d, v%d" % (sw, M + b, T + b))
            for b in range(4): a("%s v%d, v%d, v%d" % (op, M + b, M + b, T + b))
    xreduce("v_max_f32")
    def bsel(b):
        m = M + b - 1
        return (pk(m & ~1), "op_sel:[0,1] op_sel_hi:[1,1]" if m & 1 else "op_sel_hi:[1,0]")
    for b in range(1, 5):
        r, sel = bsel(b)
        for s in (S0[b], S1[b]):
            for p in range(2): a("v_pk_add_f32 %s, %s, %s %s neg_lo:[0,1] neg_hi:[0,1]" % (pk(s + 2 * p), pk(s + 2 * p), r, sel))
    for b in range(1, 5):
        for s in (S0[b], S1[b]):
            for j in range(4): a("v_exp_f32 v%d, v%d" % (s + j, s + j))
    U = 136
    for b in range(1, 5): a("v_pk_add_f32 %s, %s, %s" % (pk(U + 4 * b), pk(S0[b]), pk(S0[b] + 2)))
    for b in range(1, 5): a("v_pk_add_f32 %s, %s, %s" % (pk(U + 2 + 4 * b), pk(S1[b]), pk(S1[b] + 2)))
    for b in range(1, 5): a("v_pk_add_f32 %s, %s, %s" % (pk(U + 4 * b), pk(U + 4 * b), pk(U + 2 + 4 * b)))
    for b in range(1, 5): a("v_add_f32 v%d, v%d, v%d" % (M + b - 1, U + 4 * b, U + 1 + 4 * b))
    xreduce("v_add_f32")
    for b in range(4): a("v_rcp_f32 v%d, v%d" % (M + b, M + b))
    a("s_lshl_b32 s%d, s%d, 5" % (S_T0, S_MT)); a("s_lshl_b32 s%d, s%d, 1" % (S_T1, S_NT))
    for b in range(1, 5):
        r, sel = bsel(b)
        for s in (S0[b], S1[b]):
            for p in range(2): a("v_pk_mul_f32 %s, %s, %s %s" % (pk(s + 2 * p), pk(s + 2 * p), r, sel))
        pack_pair(a, S0[b], S1[b], QP[b])
    a("s_add_u32 s%d, s%d, s%d" % (S_T0, S_T0, S_T1)); a("s_add_u32 s%d, s%d, s%d" % (S_T0, S_T0, S_WC))
    for b in range(1, 5):
        for cc, o in enumerate((S0[b], S1[b])):
            a("v_mfma_f32_16x16x32_bf16 %s, %s, %s, 0" % (vr(o, 4), vr(VP[cc] + 2 * (b - 1), 4), vr(QP[b], 4)))
    a("s_lshl_b32 s%d, s%d, 1" % (S_T0, S_T0)); a("s_add_u32 s%d, s%d, s%d" % (S_T0, S_T0, S_WR)); a("s_lshl_b32 s%d, s%d, 12" % (S_T0, S_T0))
    a("s_lshl_b32 s%d, s%d, 1" % (S_T1, S_WR)); a("v_xor_b32 v3, s%d, v3" % S_T1)
    a("v_lshlrev_b32 v4, 6, v2"); a("v_lshl_add_u32 v4, v3, 4, v4")
    for b in range(1, 5): pack_pair(a, S0[b], S1[b], KP[b])
    for b in range(1, 5):
        swap_pair(a, KP[b])
        a("buffer_store_dwordx4 v[%d:%d], v4, s[%d:%d], s%d offen offset:%d %s" % (KP[b], KP[b] + 3, S_SRDO, S_SRDO + 3, S_T0, 1024 * (b - 1), c.stfl))

def pairAB(flip):
    def f(a, d):
        a("s_lshl_b32 s%d, s%d, 1" % (d, S_WC)); a("s_add_u32 s%d, s%d, s%d" % (d, d, S_WR))
        if flip: a("s_xor_b32 s%d, s%d, 1" % (d, d))
        a("s_lshl_b32 s%d, s%d, 5" % (d, d))
    return f
def cfg_p1(**kw):
    c = Cfg(name="p1", K=1024, lda=2048, ldb=6144, halo=16, ones=True,
            A=("x", 0, 4 << 20), W=("wqkv", 0, 1024 * 6144), O=("ws", WS_O, 4 << 20),
            segw=[64, 64, 64], col0=[0, 1024, 2048], cstep=64, wc_bits=1,
            aregs=[rows_wr(64, 16), rows_zero], mblk=[(1, 0), (0, 0), (0, 16), (0, 32), (0, 48)],
            wregs=[(0, 0, 0, pairAB(0)), (0, 0, 0, pairAB(1))],
            nblk=[(0, 0, 128), (1, 0, 128), (0, 8192, 128), (1, 8192, 128), (0, 16384, 128), (1, 16384, 128)],
            xa=8, xb=4, NS=3, order="rot", aux=(0, 576, 1152), own_xbar=True, wtouch=0,
            tail_pf=[("wo", 2 << 20)], codepf=[], ramp=[17, 12, 12, 12, 13])
    c.mf = []
    for base, sw in ((0, False), (2, False), (4, True)):
        c.mf += [(mb, base, sw) for mb in range(5)] + [(mb, base + 1, sw) for mb in range(1, 5)]
    c.epilogue = epi_k1; c.compute_pre = pre_k1
    c.__dict__.update(kw)
    c.xbar = True
    c.special = {-1: [("post", k1_setup, 0)], 4: [("post", lw0_cnt(0), 0)], 13: [("weave", k1_prep, 0)], 12: [("pre", cnt_poll(0), 1)],
                 14: [("post", k1_tail, 9 + n_tail(c))], 15: [("post", k1_fin, 0)]}
    c.flagiter = (16 - 2, k1_drain)
    return c

RESB = 147456
def res_tail(a, c):
    srd(a, S_SRDX, *c.R)
    if c.rblk:
        blk_pattern(a, 30)
        a("s_lshl_b32 s%d, s%d, 4" % (S_T0, S_MT)); a("s_add_u32 s%d, s%d, s%d" % (S_T0, S_T0, S_NT)); a("s_lshl_b32 s%d, s%d, 14" % (S_T0, S_T0))
        a("s_lshl_b32 s%d, s%d, 11" % (S_T1, S_LW)); a("s_add_u32 s%d, s%d, s%d" % (S_T0, S_T0, S_T1))
    else:
        a("v_xor_b32 v5, v4, v3"); a("v_lshlrev_b32 v30, 11, v2"); a("v_lshl_add_u32 v30, v5, 4, v30")
        a("v_xor_b32 v31, 64, v30"); a("v_add_u32 v31, %d, v31" % (8 * 2048 - 1024))
        a("v_add_u32 v32, %d, v30" % (16 * 2048 - 2048)); a("v_add_u32 v33, %d, v31" % (16 * 2048 - 2048))
        a("s_lshl_b32 s%d, s%d, 2" % (S_T0, S_MT)); a("s_add_u32 s%d, s%d, s%d" % (S_T0, S_T0, S_LW)); a("s_lshl_b32 s%d, s%d, 16" % (S_T0, S_T0))
        a("s_lshl_b32 s%d, s%d, 7" % (S_T1, S_NT)); a("s_add_u32 s%d, s%d, s%d" % (S_T0, S_T0, S_T1))
    a("s_lshl_b32 s%d, s%d, 12" % (S_T1, S_LW)); a("s_add_u32 m0, s%d, %d" % (S_T1, RESB)); a("s_nop 0")
    for j in range(4): a("buffer_load_dwordx4 v%d, s[%d:%d], s%d offen offset:%d %s lds" % (30 + j, S_SRDX, S_SRDX + 3, S_T0, 1024 * j, c.flr))
    tail_pf(a, c)
def res_fin(a, c): a("s_waitcnt vmcnt(%d)" % n_tail(c))
def pre_k24(a, c):
    srd(a, S_SRDO, *c.O)
    if c.dostats: srd(a, S_SRDY, "ws", WS_STATS, 16 * 2048 * 8)
    a("v_and_b32 v80, 15, v1"); a("v_lshrrev_b32 v81, 4, v1")
    if c.oblk:
        a("s_lshl_b32 s%d, s%d, 4" % (S_T0, S_MT)); a("s_add_u32 s%d, s%d, s%d" % (S_T0, S_T0, S_NT)); a("s_lshl_b32 s%d, s%d, 14" % (S_T0, S_T0))
        a("s_lshl_b32 s%d, s%d, 11" % (S_T1, S_WR)); a("s_add_u32 s64, s%d, s%d" % (S_T0, S_T1)); a("s_add_u32 s65, s64, 8192")
        a("v_lshlrev_b32 v82, 6, v80"); a("v_lshl_add_u32 v84, v81, 4, v82")
    else:
        a("s_lshl_b32 s%d, s%d, 7" % (S_T0, S_MT)); a("s_lshl_b32 s%d, s%d, 5" % (S_T1, S_WR))
        a("s_add_u32 s%d, s%d, s%d" % (S_T0, S_T0, S_T1)); a("s_lshl_b32 s%d, s%d, 11" % (S_T0, S_T0))
        a("s_lshl_b32 s%d, s%d, 7" % (S_T1, S_NT)); a("s_add_u32 s64, s%d, s%d" % (S_T0, S_T1))
        for i in range(1, 4): a("s_add_u32 s%d, s64, %d" % (64 + i, i * 8 * 2048))
        a("v_and_b32 v82, 7, v80"); a("v_lshlrev_b32 v82, 11, v82"); a("v_lshl_add_u32 v84, v81, 4, v82")
        a("v_lshrrev_b32 v82, 3, v80"); a("v_lshl_add_u32 v84, v82, 6, v84")
    a("v_bfe_u32 v82, v80, 1, 3"); a("v_lshrrev_b32 v83, 1, v81"); a("v_xor_b32 v82, v82, v83"); a("v_lshlrev_b32 v82, 4, v82")
    a("v_and_b32 v83, 1, v81"); a("v_lshl_add_u32 v82, v83, 3, v82"); a("v_lshl_add_u32 v82, v80, 7, v82")
    a("s_lshl_b32 s%d, s%d, 12" % (S_T0, S_WR)); a("s_add_u32 s%d, s%d, %d" % (S_T0, S_T0, RESB))
    for nb in range(4):
        a("v_xor_b32 v%d, %d, v82" % (48 + nb, 32 * nb)); a("v_add_u32 v%d, s%d, v%d" % (48 + nb, S_T0, 48 + nb))
    if c.dostats:
        a("v_and_b32 v113, 31, v1"); a("v_lshlrev_b32 v113, 3, v113"); a("v_lshrrev_b32 v114, 5, v1"); a("v_lshl_add_u32 v116, v114, 2, v113")
        a("s_lshl_b32 s%d, s%d, 14" % (S_T0, S_NT)); a("s_lshl_b32 s%d, s%d, 10" % (S_T1, S_MT)); a("s_add_u32 s%d, s%d, s%d" % (S_T0, S_T0, S_T1))
        a("s_lshl_b32 s%d, s%d, 8" % (S_T1, S_WR)); a("s_add_u32 s68, s%d, s%d" % (S_T0, S_T1))
def epi_k24(a, c):
    RES = 64; T = 96
    for mb in range(2):
        for nb in range(4): a("ds_read_b64 %s, v%d offset:%d" % (pk(RES + (mb * 4 + nb) * 2), 48 + nb, 2048 * mb))
    if c.dostats:
        a("s_mov_b32 s%d, 0x3f803f80" % S_T0)
        for r in range(112, 116): a("v_mov_b32 v%d, 0" % r)
    for mb in range(2):
        a("s_waitcnt lgkmcnt(%d)" % (4 - 4 * mb))
        for nb in range(4):
            r = RES + (mb * 4 + nb) * 2; x = acc_of(c, mb, nb); t = 86 + 4 * (nb & 1)
            for d in range(2):
                a("v_lshlrev_b32 v%d, 16, v%d" % (t + 2 * d, r + d)); a("v_and_b32 v%d, 0xffff0000, v%d" % (t + 2 * d + 1, r + d))
            for d in range(2): a("v_pk_add_f32 %s, %s, %s" % (pk(x + 2 * d), pk(x + 2 * d), pk(t + 2 * d)))
        for p in range(2): pack_pair(a, acc_of(c, mb, 2 * p), acc_of(c, mb, 2 * p + 1), T + (mb * 2 + p) * 4)
        if c.dostats:
            for j in range(8):
                d = T + mb * 8 + j
                a("v_dot2c_f32_bf16 v%d, s%d, v%d" % (112 + 2 * mb, S_T0, d)); a("v_dot2c_f32_bf16 v%d, v%d, v%d" % (113 + 2 * mb, d, d))
        else: a("s_nop 1")
        if c.oblk:
            for p in range(2):
                t = T + (mb * 2 + p) * 4
                swap_pair(a, t)
                a("buffer_store_dwordx4 v[%d:%d], v84, s[%d:%d], s%d offen offset:%d %s" % (t, t + 3, S_SRDO, S_SRDO + 3, 64 + p, 1024 * mb, c.stfl))
        else:
            X, Y, U = T + mb * 8, T + mb * 8 + 4, 120
            swap_pair(a, X); swap_pair(a, Y)
            for d in range(4): a("v_mov_b32 v%d, v%d" % (U + d, X + d))
            for d in range(4): a("v_mov_b32_dpp v%d, v%d row_ror:8 row_mask:0xf bank_mask:0xc" % (X + d, Y + d))
            for d in range(4): a("v_mov_b32_dpp v%d, v%d row_ror:8 row_mask:0xf bank_mask:0x3" % (Y + d, U + d))
            a("buffer_store_dwordx4 v[%d:%d], v84, s[%d:%d], s%d offen %s" % (X, X + 3, S_SRDO, S_SRDO + 3, 64 + 2 * mb, c.stfl))
            a("buffer_store_dwordx4 v[%d:%d], v84, s[%d:%d], s%d offen %s" % (Y, Y + 3, S_SRDO, S_SRDO + 3, 65 + 2 * mb, c.stfl))
    if c.dostats:
        a("v_permlane32_swap_b32 v112, v113"); a("v_permlane32_swap_b32 v114, v115"); a("s_nop 0")
        a("v_add_f32 v112, v112, v113"); a("v_add_f32 v114, v114, v115"); a("s_nop 1")
        a("v_permlane16_swap_b32 v112, v114"); a("s_nop 0")
        a("v_add_f32 v112, v112, v114")
        a("buffer_store_dword v112, v116, s[%d:%d], s68 offen sc1" % (S_SRDY, S_SRDY + 3))

def cfg_p24(**kw):
    c = Cfg(segw=[64], col0=[0], cstep=64, wc_bits=0, aregs=[rows_wr(32)], mblk=[(0, 0), (0, 16)],
            wregs=[(0, 0, 0, 0), (0, 0, 1, 0), (0, 0, 2, 0), (0, 0, 3, 0)],
            nblk=[(0, 0, 128), (1, 0, 128), (2, 0, 128), (3, 0, 128)],
            xa=4, xb=8, NS=3, sub=2, rpm=2, order="class", tail_pf=[], codepf=[], ramp=[20], flr="")
    c.mf = [(mb, nb, False) for nb in range(4) for mb in range(2)]
    c.compute_pre = pre_k24; c.epilogue = epi_k24
    c.__dict__.update(kw)
    N = nst(c)
    c.special = {N - 2: [("post", res_tail, 4 + n_tail(c))], N - 1: [("post", res_fin, 0)]}
    return c
def cfg_p2(**kw):
    return cfg_p24(name="p2", K=1024, lda=2048, ldb=2048, A=("ws", WS_O - 4096, (4 << 20) + 4096), ablk=32, W=("wo", 0, 2 << 20), O=("ws", WS_H, 4 << 20), oblk=True, R=("x", 0, 4 << 20), rblk=False, dostats=True, **kw)
def cfg_p4(**kw):
    return cfg_p24(name="p4", K=3584, lda=7168, ldb=2048, A=("ws", WS_H1 - 4096, 2048 * 7168 + 4096), ablk=112, W=("w2", 0, 3584 * 2048), O=("out", 0, 4 << 20), oblk=False, R=("ws", WS_H - 4096, (4 << 20) + 4096), rblk=True, dostats=False, **kw)

def pre_k3(a, c):
    srd(a, S_SRDO, *c.O); srd(a, S_SRDX, "ws", WS_CS1, 16 * 3584 * 4)
    if c.fused:
        cnt_poll(32, 20)(a, c); a("s_waitcnt vmcnt(0)"); cnt_check(a, 20)
    a("s_mul_i32 s40, s%d, 896" % S_NT); a("s_mul_i32 s41, s%d, 224" % S_WAVE); a("s_add_u32 s40, s40, s41")
    a("v_lshlrev_b32 v16, 2, v1")
    for p in range(16):
        a("buffer_load_dword v%d, v16, s[%d:%d], s40 offen sc1" % (32 + p, S_SRDX, S_SRDX + 3))
        if p < 15: a("s_add_u32 s40, s40, %d" % (3584 * 4))
    a("s_add_u32 s41, s41, %d" % (auxbase(c) + c.aux[2])); a("v_add_u32 v17, s41, v16")
    a("s_waitcnt vmcnt(0)")
    for st in (8, 4, 2):
        for j in range(0, st, 2): a("v_pk_add_f32 %s, %s, %s" % (pk(32 + j), pk(32 + j), pk(32 + j + st)))
    a("v_add_f32 v32, v32, v33")
    a("s_mov_b32 exec_hi, 0xffffff")
    a("ds_write_b32 v17, v32")
    a("s_mov_b32 exec_hi, -1")
    a("s_waitcnt lgkmcnt(0)")
def k3_stats(a, c):
    srd(a, S_SRDY, "ws", WS_STATS, 16 * 2048 * 8)
    a("v_and_b32 v28, 31, v1"); a("v_lshlrev_b32 v29, 3, v28"); a("v_lshrrev_b32 v30, 5, v1"); a("v_lshl_add_u32 v29, v30, 17, v29")
    a("s_lshl_b32 s44, s%d, 10" % S_MT); a("s_lshl_b32 s%d, s%d, 8" % (S_T0, S_LW)); a("s_add_u32 s44, s44, s%d" % S_T0)
    for j in range(8):
        a("buffer_load_dwordx2 %s, v29, s[%d:%d], s44 offen sc1" % (pk(48 + 2 * j), S_SRDY, S_SRDY + 3))
        if j < 7: a("s_add_u32 s44, s44, 16384")
def k3_fin(a, c):
    for st in (8, 4, 2):
        for j in range(st): a("v_add_f32 v%d, v%d, v%d" % (48 + j, 48 + j, 48 + j + st))
    a("s_lshl_b32 s%d, s%d, 7" % (S_T0, S_LW)); a("s_add_u32 s%d, s%d, %d" % (S_T0, S_T0, auxbase(c)))
    a("v_mov_b32 v50, v48"); a("v_mov_b32 v51, v49")
    a("v_lshlrev_b32 v28, 2, v28"); a("v_add_u32 v28, s%d, v28" % S_T0)
    a("v_permlane32_swap_b32 v48, v50"); a("v_permlane32_swap_b32 v49, v51"); a("s_nop 0")
    a("v_add_f32 v48, v48, v50"); a("v_add_f32 v49, v49, v51")
    finish_stats(a, 48, 49, 50)
    a("ds_write_b32 v28, v49 offset:%d" % c.aux[1]); a("ds_write_b32 v28, v48 offset:%d" % c.aux[0])
def lgkm0(a, c): a("s_waitcnt lgkmcnt(0)")
def epi_k3(a, c, half=0):
    base = auxbase(c); AUX_A, AUX_NM, AUX_CS = c.aux
    AB = 128; CS = 136; E = 8
    alljobs = [(m, q) for m in range(4) for q in range(4) if q < 3 or m < 2]
    mine = alljobs
    if c.share:
        theirs = [(3, 0), (3, 1), (3, 2), (2, 0), (2, 1), (2, 2), (1, 3)][:c.share]
        mine = theirs if half else [j for j in alljobs if j not in theirs]
        W = S_LW if half else S_WAVE
        if half:
            a("s_lshr_b32 s%d, s%d, 1" % (S_WR, S_LW)); a("s_and_b32 s%d, s%d, 1" % (S_WC, S_LW)); srd(a, S_SRDO, *c.O)
        a("s_mul_i32 s%d, s%d, 24576" % (S_T0, W)); a("v_lshlrev_b32 v9, 4, v1"); a("v_add_u32 v9, s%d, v9" % S_T0)
        blocks = [acc_of(c, m, 2 * q + e) for (m, q) in theirs for e in range(2)]
        if not half:
            for i, x in enumerate(blocks): a("ds_write_b128 v9, v[%d:%d] offset:%d" % (x, x + 3, 1024 * i))
    a("v_and_b32 v2, 15, v1"); a("v_lshrrev_b32 v3, 4, v1")
    a("s_lshl_b32 s%d, s%d, 1" % (S_T0, S_WR)); a("s_add_u32 s%d, s%d, s%d" % (S_T0, S_T0, S_WC))
    a("s_lshl_b32 s%d, s%d, 7" % (S_T1, S_T0)); a("s_add_u32 s%d, s%d, %d" % (S_T1, S_T1, base))
    a("v_lshlrev_b32 v4, 2, v2"); a("v_add_u32 v4, s%d, v4" % S_T1); a("v_xor_b32 v10, 128, v4")
    a("v_lshlrev_b32 v5, 4, v3"); a("v_add_u32 v5, %d, v5" % (base + AUX_CS))
    a("s_lshl_b32 s%d, s%d, 8" % (S_T1, S_WC)); a("v_add_u32 v6, s%d, v5" % S_T1)
    a("s_lshl_b32 s%d, s%d, 7" % (S_T1, S_WC)); a("v_add_u32 v7, s%d, v5" % S_T1)
    ms = sorted(set(m for m, q in mine)); qs = sorted(set(q for m, q in mine))
    for m in ms: a("ds_read2_b32 %s, v%d offset0:%d offset1:%d" % (pk(AB + 2 * m), 4 if m < 2 else 10, AUX_A // 4 + 16 * (m & 1), AUX_NM // 4 + 16 * (m & 1)))
    for t in range(8):
        v, off = (6, 64 * t) if t < 4 else ((7, 512 + 64 * (t - 4)) if t < 6 else (5, 768 + 64 * (t - 6)))
        a("ds_read_b128 v[%d:%d], v%d offset:%d" % (CS + 4 * t, CS + 4 * t + 3, v, off))
    nrd = len(ms) + 8
    if c.share and not half:
        a("s_waitcnt lgkmcnt(%d)" % nrd); a("s_barrier")
    a("v_lshlrev_b32 v5, 6, v2"); a("v_lshl_add_u32 v5, v3, 4, v5"); a("s_lshl_b32 s%d, s%d, 11" % (S_T0, S_T0)); a("v_add_u32 v5, s%d, v5" % S_T0); a("v_xor_b32 v6, 0x800, v5")
    a("s_mul_i32 s%d, s%d, 112" % (S_T0, S_MT)); a("s_mul_i32 s%d, s%d, 7" % (S_T1, S_NT)); a("s_add_u32 s%d, s%d, s%d" % (S_T0, S_T0, S_T1))
    a("s_add_u32 s67, s%d, 6" % S_T0); a("s_add_u32 s66, s%d, s%d" % (S_T0, S_WC)); a("s_add_u32 s64, s66, s%d" % S_WC); a("s_add_u32 s66, s66, 4"); a("s_add_u32 s65, s64, 1")
    for q in range(4): a("s_lshl_b32 s%d, s%d, 13" % (64 + q, 64 + q))
    a("s_mov_b32 s68, 0x%x" % f2u(-LOG2E)); a("s_mov_b32 s69, s68")
    if c.share and half:
        a("s_barrier")
        for i, x in enumerate(blocks): a("ds_read_b128 v[%d:%d], v9 offset:%d" % (x, x + 3, 1024 * i))
    pend = None
    for i, (m, q) in enumerate(mine):
        if c.share and half: a("s_waitcnt lgkmcnt(%d)" % (len(blocks) - 2 * i - 2))
        elif i == 0: a("s_waitcnt lgkmcnt(0)")
        prs = []
        for t in (2 * q, 2 * q + 1):
            x = acc_of(c, m, t)
            for p in range(2): prs.append((x + 2 * p, AB + 2 * m, CS + 4 * t + 2 * p))
        for (x, ab, cs) in prs: a("v_pk_fma_f32 %s, %s, %s, %s op_sel:[0,1,0] op_sel_hi:[1,1,1]" % (pk(x), pk(cs), pk(ab), pk(x)))
        if pend: pend()
        for (x, ab, cs) in prs: a("v_pk_mul_f32 %s, %s, %s op_sel_hi:[1,0]" % (pk(x), pk(x), pk(ab)))
        for j, (x, ab, cs) in enumerate(prs): a("v_pk_mul_f32 %s, %s, s[68:69]" % (pk(E + 2 * j), pk(x)))
        for j in range(8): a("v_exp_f32 v%d, v%d" % (E + j, E + j))
        for j in range(4): a("v_pk_add_f32 %s, %s, 1.0 op_sel_hi:[1,0]" % (pk(E + 2 * j), pk(E + 2 * j)))
        for j in range(8): a("v_rcp_f32 v%d, v%d" % (E + j, E + j))
        for j, (x, ab, cs) in enumerate(prs): a("v_pk_mul_f32 %s, %s, %s" % (pk(x), pk(x), pk(E + 2 * j)))
        t = prs[0][0]
        pack_pair(a, prs[0][0], prs[2][0], t)
        def fin(t=t, m=m, q=q):
            swap_pair(a, t)
            a("buffer_store_dwordx4 v[%d:%d], v%d, s[%d:%d], s%d offen offset:%d %s" % (t, t + 3, 5 if m < 2 else 6, S_SRDO, S_SRDO + 3, 64 + q, 1024 * (m & 1), c.stfl))
        pend = fin
    a("s_nop 1"); pend()
    if half:
        a("v_lshrrev_b32 v2, 3, v1"); a("v_and_b32 v3, 7, v1"); a("v_lshrrev_b32 v4, 4, v1")

def rows_p3(flip):
    def f(a, d):
        a("s_lshl_b32 s%d, s%d, 1" % (d, S_WR)); a("s_add_u32 s%d, s%d, s%d" % (d, d, S_WC))
        if flip: a("s_xor_b32 s%d, s%d, 1" % (d, d))
        a("s_lshl_b32 s%d, s%d, 12" % (d, d))
    return f
def cfg_p3(**kw):
    c = Cfg(name="p3", K=1024, lda=2048, ldb=7168, A=("ws", WS_H - 4096, (4 << 20) + 4096), ablk=32, W=("w1", 0, 1024 * 7168), O=("ws", WS_H1, 2048 * 7168),
            segw=[64, 64, 64, 32], col0=[0, 64, 128, 192], cstep=224, wc_bits=1,
            aregs=[rows_p3(0), rows_p3(1)], mblk=[(0, 0), (0, 16), (1, 0), (1, 16)],
            wregs=[(0, 1, 0, 0), (0, 1, 1, 0), (0, 1, 2, 0), (0, 1, 3, 0), (2, 0, 0, 2), (2, 0, 1, 2), (3, 0, 0, 0), (3, 0, 1, 0)],
            nblk=[(0, 0, 128), (1, 0, 128), (2, 0, 128), (3, 0, 128), (4, 0, 128), (5, 0, 128), (6, 0, 64), (7, 0, 64)],
            xa=8, xb=4, NS=3, order="class", aux=(0, 512, 1024),
            tail_pf=[("w2", 7 << 20)], codepf=[], ramp=[19, 11, 12, 12, 12], share=0)
    c.mf = [(mb, nb, False) for nb in range(6) for mb in range(4)] + [(mb, nb, False) for nb in (6, 7) for mb in range(2)]
    c.compute_pre = pre_k3; c.epilogue = epi_k3
    c.__dict__.update(kw)
    if c.share:
        c.own_xbar = True; c.loader_share = lambda a, c: epi_k3(a, c, 1)
    c.special = {-1: [("post", k3_stats, 8)], 14: [("post", tail_pf, n_tail(c)), ("post", k3_fin, 0), ("post", lgkm0, 0)]}
    return c

KNAME = "sequential_preLN__sliding_local_dilated__dense_activation_silu__prompt_kernel"
def multi(path, stamps=False, all={}, p1={}, p2={}, p3={}, p4={}):
    d = dict(stamps=stamps); d.update(all)
    cp = lambda s, e: [(s, e, 100, 16384)]
    c1 = cfg_p1(kidx=0, **{**d, "codepf": cp("p1_epi", "k2_kernel_last"), **p1}); c2 = cfg_p2(kidx=1, **{**d, "codepf": cp("p2_epi", "k3_kernel_last"), **p2})
    c3 = cfg_p3(kidx=2, **{**d, "codepf": cp("p3_epi", "k4_kernel_last"), **p3}); c4 = cfg_p4(kidx=3, **{**d, **p4})
    c1.loader_post = k1_post_f(auxbase(c1), n_tail)
    ks = [("k1_kernel", emit_kernel("k1_kernel", [c1]), 256, 168, 163840), ("k2_kernel", emit_kernel("k2_kernel", [c2]), 256, 168, 163840),
          ("k3_kernel", emit_kernel("k3_kernel", [c3]), 256, 168, auxbase(c3) + 2048), ("k4_kernel", emit_kernel("k4_kernel", [c4]), 256, 168, 163840)]
    build(ks, path)

def fused(path, stamps=False, all={}, p1={}, p2={}, p3={}, p4={}):
    d = dict(stamps=stamps, fused=True, xbar=True); d.update(all)
    c1 = cfg_p1(kidx=0, sig=0, **{**d, "codepf": [("p1_epi", "p3_c", 100, 8192), ("p1_l", "p3_l", 100, 16384)], **p1})
    c2 = cfg_p2(kidx=1, sig=1, fla="sc1", **{**d, "codepf": [("p2_epi", "p4_c", 100, 8192), ("p2_l", "p4_l", 100, 8192)], **p2})
    c3 = cfg_p3(kidx=2, sig=2, fla="sc1", **{**d, "codepf": [("p3_epi", KNAME + "_loader", 100, 8192), ("p3_l", KNAME + "_last", 100, 8192)], **p3})
    c4 = cfg_p4(kidx=3, fla="sc1", flr="sc1", **{**d, "xbar": False, **p4})
    c2.dep = lambda a, c: seam_wait(a, c, c1, 0)
    c3.dep = lambda a, c: seam_wait(a, c, c2, 1)
    c4.dep = lambda a, c: seam_wait(a, c, c3, 2)
    c2.loader_wait = k1_post_f(auxbase(c1), lambda c: 2 * 4)
    c2.special[1] = [("post", lw0_cnt(32), 0)]
    if c3.share: c4.loader_wait = lambda a, c: a("s_waitcnt vmcnt(8)")
    build([(KNAME, emit_kernel(KNAME, [c1, c2, c3, c4]), 256, 168, 163840)], path)
```

```python
from k7 import *
fused("f25_s0.s", stamps=True, p4=dict(stfl="nt"))
fused("f25_s7.s", stamps=True, p3=dict(share=7), p4=dict(stfl="nt"))
fused("f25_s4.s", stamps=True, p3=dict(share=4), p4=dict(stfl="nt"))
fused("f25_s7_sl0.s", stamps=True, all=dict(pollsleep=0), p3=dict(share=7), p4=dict(stfl="nt"))
fused("f25a.s", p4=dict(stfl="nt"))
fused("f25b.s", p3=dict(share=7), p4=dict(stfl="nt"))
fused("f25c.s", p3=dict(share=7), p4=dict(stfl=""))
fused("f25d.s", p3=dict(share=7), p4=dict(stfl="sc1"))
```

```python
from g7 import *

def rows_wr(mult, add=0):
    def f(a, d):
        a("s_mul_i32 s%d, s%d, %d" % (d, S_WR, mult * 128))
        if add: a("s_add_u32 s%d, s%d, %d" % (d, d, add * 128))
    return f
def rows_zero(a, d): a("s_mov_b32 s%d, 0" % d)

def trlane(a, d, t):
    a("v_bfe_u32 v%d, v1, 4, 1" % t); a("v_lshlrev_b32 v%d, 3, v%d" % (t, t))
    a("v_bfe_u32 v%d, v1, 5, 1" % (t + 1)); a("v_lshl_add_u32 v%d, v%d, 2, v%d" % (t, t + 1, t))
    a("v_bfe_u32 v%d, v1, 2, 2" % (t + 1)); a("v_add_u32 v%d, v%d, v%d" % (t, t, t + 1))
    a("v_bfe_u32 v%d, v1, 3, 2" % (t + 1)); a("v_lshlrev_b32 v%d, 1, v%d" % (t + 1, t + 1))
    a("v_bfe_u32 v%d, v1, 1, 1" % (t + 2)); a("v_xor_b32 v%d, v%d, v%d" % (t + 1, t + 1, t + 2))
    a("v_and_b32 v%d, 1, v1" % (t + 2)); a("v_lshlrev_b32 v%d, 3, v%d" % (t + 2, t + 2))
    a("v_lshl_add_u32 v%d, v%d, 4, v%d" % (t + 1, t + 1, t + 2)); a("v_lshl_add_u32 v%d, v%d, 7, v%d" % (d, t, t + 1))

def reduce4(a, X):
    a("s_nop 1")
    a("v_permlane32_swap_b32 v%d, v%d" % (X[0], X[2])); a("v_permlane32_swap_b32 v%d, v%d" % (X[1], X[3])); a("s_nop 0")
    a("v_add_f32 v%d, v%d, v%d" % (X[0], X[0], X[2])); a("v_add_f32 v%d, v%d, v%d" % (X[1], X[1], X[3])); a("s_nop 1")
    a("v_permlane16_swap_b32 v%d, v%d" % (X[0], X[1])); a("s_nop 0")
    a("v_add_f32 v%d, v%d, v%d" % (X[0], X[0], X[1]))

def finish_stats(a, s, q, t):
    a("v_mul_f32 v%d, 0x%x, v%d" % (s, f2u(1.0 / 1024), s)); a("v_mul_f32 v%d, 0x%x, v%d" % (q, f2u(1.0 / 1024), q))
    a("v_fma_f32 v%d, -v%d, v%d, v%d" % (q, s, s, q)); a("v_max_f32 v%d, 0, v%d" % (q, q))
    a("v_cvt_pk_bf16_f32 v%d, v%d, v%d" % (t, s, q))
    a("v_lshlrev_b32 v%d, 16, v%d" % (t + 1, t)); a("v_and_b32 v%d, 0xffff0000, v%d" % (q, t))
    a("v_add_f32 v%d, 0x%x, v%d" % (q, f2u(1e-5), q)); a("v_cvt_pk_bf16_f32 v%d, v%d, v%d" % (t, q, q)); a("v_and_b32 v%d, 0xffff0000, v%d" % (q, t))
    a("v_sqrt_f32 v%d, v%d" % (q, q)); a("s_nop 0"); a("v_cvt_pk_bf16_f32 v%d, v%d, v%d" % (t, q, q)); a("v_and_b32 v%d, 0xffff0000, v%d" % (q, t))
    a("v_rcp_f32 v%d, v%d" % (s, q)); a("v_sub_f32 v%d, 0, v%d" % (q, t + 1))

def flat_touch(a, c, ptr, nbytes, vt):
    srd(a, S_SRDP, ptr, 0, nbytes)
    per = nbytes // 1024
    a("s_lshl_b32 s%d, s2, 2" % S_T0); a("s_add_u32 s%d, s%d, s%d" % (S_T0, S_T0, S_LW)); a("s_mul_i32 s%d, s%d, %d" % (S_T0, S_T0, per))
    a("v_min_u32 v%d, %d, v1" % (vt, per // 128 - 1)); a("v_lshlrev_b32 v%d, 7, v%d" % (vt, vt))
    a("buffer_load_dword v%d, v%d, s[%d:%d], s%d offen" % (vt + 1, vt, S_SRDP, S_SRDP + 3, S_T0))
def tail_pf(a, c):
    for (ptr, nb) in c.tail_pf: flat_touch(a, c, ptr, nb, 98)
    for cp in c.codepf: code_touch(a, *cp)
def n_tail(c): return len(c.tail_pf) + sum(-(-cp[3] // 8192) for cp in c.codepf)

def cnt_add(a, word, sreg):
    a("s_mov_b32 s%d, 1" % sreg)
    a("s_atomic_add s%d, s[%d:%d], %d" % (sreg, PTR["dbg"], PTR["dbg"] + 1, 4 * word))
def cnt_poll(word, v=44):
    def f(a, c):
        srd(a, S_SRDP, "dbg", 0, 256)
        a("v_mov_b32 v%d, %d" % (v + 2, 4 * word))
        a("buffer_load_dword v%d, v%d, s[%d:%d], 0 offen sc1" % (v, v + 2, S_SRDP, S_SRDP + 3))
    return f
def cnt_check(a, v=44):
    L = a.newlabel("Lpo"); Ld = a.newlabel("Lpd")
    a("s_mov_b32 s%d, %d" % (S_DN, SPIN))
    a.label(L)
    a("v_cmp_gt_u32 vcc, 0x100, v%d" % v)
    a("s_cbranch_vccz %s" % Ld)
    a("s_sub_u32 s%d, s%d, 1" % (S_DN, S_DN)); a("s_cbranch_scc1 %s" % Ld)
    a("s_sleep 4")
    a("buffer_load_dword v%d, v%d, s[%d:%d], 0 offen sc1" % (v, v + 2, S_SRDP, S_SRDP + 3))
    a("s_waitcnt vmcnt(0)")
    a("s_branch %s" % L)
    a.label(Ld)

AUX1_W1 = 2048
XCH = 98304
def k1_setup(a, c):
    srd(a, S_SRDX, "ws", WS_RSP, 2048 * 8)
    a("v_mov_b32 v46, 0x3f803f80"); a("v_and_b32 v47, 31, v1"); a("v_lshlrev_b32 v47, 2, v47")
    a("ds_write_b32 v47, v46"); a("ds_write_b32 v47, v46 offset:%d" % slotbytes(c))
    a("v_add_u32 v47, %d, v47" % (2 * slotbytes(c))); a("ds_write_b32 v47, v46")
    a("s_waitcnt lgkmcnt(0)")
def rows_load(a, c):
    srd(a, S_SRDX, "x", 0, 4 << 20)
    a("s_lshl_b32 s40, s2, 2"); a("s_add_u32 s40, s40, s%d" % S_WAVE); a("s_lshl_b32 s41, s40, 12"); a("s_lshl_b32 s40, s40, 4")
    a("v_lshlrev_b32 v47, 4, v1")
    for i in range(4): a("buffer_load_dwordx4 v[%d:%d], v47, s[%d:%d], s41 offen offset:%d" % (48 + 4 * i, 51 + 4 * i, S_SRDX, S_SRDX + 3, 1024 * i))
    a("s_mov_b32 s42, s40")
    if c.wtouch:
        srd(a, S_SRDP, "wqkv", 0, 6 << 20)
        a("s_mul_i32 s41, s40, %d" % (6144 // 16))
        if c.wtouch == 1:
            a("v_min_u32 v47, 47, v1"); a("v_lshlrev_b32 v47, 7, v47")
            a("buffer_load_dword v167, v47, s[%d:%d], s41 offen" % (S_SRDP, S_SRDP + 3))
def rows_pub(a, c):
    a("s_waitcnt vmcnt(%d)" % (1 if c.wtouch else 0))
    for r in range(2):
        S, Q = 28 + 8 * r, 32 + 8 * r
        for d in range(8):
            x = 48 + 8 * r + d; t = 64 + 2 * (d & 3); e = 2 * (d & 1)
            a("v_lshlrev_b32 v%d, 16, v%d" % (t, x)); a("v_and_b32 v%d, 0xffff0000, v%d" % (t + 1, x))
            if d < 2:
                a("v_mov_b64 %s, %s" % (pk(S + e), pk(t))); a("v_pk_mul_f32 %s, %s, %s" % (pk(Q + e), pk(t), pk(t)))
            else:
                a("v_pk_add_f32 %s, %s, %s" % (pk(S + e), pk(S + e), pk(t))); a("v_pk_fma_f32 %s, %s, %s, %s" % (pk(Q + e), pk(t), pk(t), pk(Q + e)))
    for S in (28, 32, 36, 40): a("v_pk_add_f32 %s, %s, %s" % (pk(S), pk(S), pk(S + 2)))
    for S in (28, 36, 32, 40): a("v_add_f32 v%d, v%d, v%d" % (S, S, S + 1))
    srd(a, S_SRDX, "ws", WS_RSP, 2048 * 8)
    a("v_permlane32_swap_b32 v28, v36"); a("v_permlane32_swap_b32 v32, v40"); a("s_nop 0")
    a("v_add_f32 v28, v28, v36"); a("v_add_f32 v29, v32, v40"); a("s_nop 0")
    a("v_mov_b32 v30, v28"); a("v_mov_b32 v31, v29"); a("s_nop 1")
    a("v_permlane16_swap_b32 v28, v30"); a("v_permlane16_swap_b32 v29, v31"); a("s_nop 0")
    a("v_add_f32 v28, v28, v30"); a("v_add_f32 v29, v29, v31")
    for sh in ("row_ror:1", "row_ror:2", "row_ror:4", "row_ror:8"):
        a("s_nop 1")
        a("v_add_f32_dpp v28, v28, v28 %s row_mask:0xf bank_mask:0xf" % sh); a("v_add_f32_dpp v29, v29, v29 %s row_mask:0xf bank_mask:0xf" % sh)
    finish_stats(a, 28, 29, 30)
    a("v_lshrrev_b32 v30, 5, v1"); a("v_lshlrev_b32 v30, 3, v30")
    a("s_mov_b32 exec_lo, 1"); a("s_mov_b32 exec_hi, 1")
    a("buffer_store_dwordx2 v[28:29], v30, s[%d:%d], s42 offen sc1" % (S_SRDX, S_SRDX + 3))
    if c.fused:
        srd(a, S_SRDP, "ws", WS_FLAG, 16384)
        a("s_mov_b64 exec, 15")
        a("v_mov_b32 v31, 0"); a("v_lshlrev_b32 v30, 2, v1")
        a("buffer_store_dword v31, v30, s[%d:%d], s42 offen sc1" % (S_SRDP, S_SRDP + 3))
    a("s_mov_b64 exec, -1")
def k1_drain(a, c): a("s_waitcnt vmcnt(0)")
def lw0_cnt(word):
    def f(a, c):
        L = a.newlabel("Lc1f")
        a("s_cmp_lg_u32 s%d, 0" % S_LW); a("s_cbranch_scc1 %s" % L)
        cnt_add(a, word, S_T0)
        a.label(L)
    return f
def k1_prep(a, c):
    trlane(a, 24, 64)
    a("s_mul_i32 s%d, s%d, 36" % (S_T0, S_LW)); a("v_add_u32 v33, s%d, v1" % S_T0)
    a("s_lshl_b32 s%d, s%d, 7" % (S_T1, S_MT)); a("s_sub_i32 s%d, s%d, 16" % (S_T1, S_T1))
    a("v_add_u32 v34, s%d, v33" % S_T1); a("v_max_i32 v34, 0, v34"); a("v_lshlrev_b32 v34, 3, v34")
    a("v_lshlrev_b32 v33, 2, v33"); a("v_add_u32 v33, %d, v33" % auxbase(c))
    a("s_lshl_b32 s%d, s2, 2" % S_T0); a("s_add_u32 s%d, s%d, s%d" % (S_T0, S_T0, S_LW))
    a("s_mul_hi_u32 s46, s%d, %d" % (S_T0, (1 << 32) // 56 + 1)); a("s_mul_i32 s%d, s46, 56" % S_T1); a("s_sub_u32 s47, s%d, s%d" % (S_T0, S_T1))
    a("s_mul_i32 s44, s46, %d" % (64 * 7168)); a("s_lshl_b32 s%d, s47, 7" % S_T1); a("s_add_u32 s44, s44, s%d" % S_T1)
    a("v_and_b32 v96, 1, v4"); a("v_lshlrev_b32 v96, 1, v96"); a("v_xor_b32 v96, v96, v3")
    a("v_mul_u32_u24 v97, 7168, v2"); a("v_lshl_add_u32 v96, v96, 4, v97"); a("v_xor_b32 v97, 64, v96")
def k1_tail(a, c):
    cnt_check(a)
    a("buffer_load_dwordx2 v[36:37], v34, s[%d:%d], 0 offen sc1" % (S_SRDX, S_SRDX + 3))
    srd(a, S_SRDW, "w1", 0, 1024 * 7168)
    a("s_lshl_b32 s%d, s%d, 13" % (S_T1, S_LW)); a("s_add_u32 s%d, s%d, %d" % (S_T1, S_T1, auxbase(c) + AUX1_W1))
    for i in range(8):
        a("s_mov_b32 m0, s%d" % S_T1); a("s_add_u32 s%d, s%d, 1024" % (S_T1, S_T1))
        a("buffer_load_dwordx4 v%d, s[%d:%d], s44 offen lds" % (96 + (i & 1), S_SRDW, S_SRDW + 3))
        if i < 7: a("s_add_u32 s44, s44, %d" % (8 * 7168))
    tail_pf(a, c)
def k1_fin(a, c):
    a("s_waitcnt vmcnt(%d)" % (8 + n_tail(c)))
    a("s_mov_b32 exec_hi, 15")
    a("ds_write_b32 v33, v36 offset:%d" % c.aux[0]); a("ds_write_b32 v33, v37 offset:%d" % c.aux[1])
    a("s_mov_b32 exec_hi, -1")
    a("s_waitcnt lgkmcnt(0)")
def k1_post_f(base, nafter):
    def f(a, c):
        srd(a, S_SRDY, "ws", WS_CS1, 16 * 3584 * 4)
        a("s_lshl_b32 s%d, s%d, 13" % (S_T1, S_LW)); a("s_add_u32 s%d, s%d, %d" % (S_T1, S_T1, base + AUX1_W1))
        for p in range(4):
            a("v_xor_b32 v%d, %d, v24" % (28 + p, 32 * p)); a("v_add_u32 v%d, s%d, v%d" % (28 + p, S_T1, 28 + p))
        for r in range(32, 40): a("v_mov_b32 v%d, 0" % r)
        a("s_mov_b32 s70, 0x3f803f80")
        a("s_waitcnt vmcnt(%d)" % nafter(c))
        for q in range(4):
            for p in range(4): a("ds_read_b64_tr_b16 v[%d:%d], v%d offset:%d" % (48 + 8 * q + 2 * p, 49 + 8 * q + 2 * p, 28 + p, 2048 * q))
        a("s_waitcnt lgkmcnt(0)")
        for q in range(4):
            for p in range(4):
                for d in range(2): a("v_dot2c_f32_bf16 v%d, s70, v%d" % (32 + 2 * p + d, 48 + 8 * q + 2 * p + d))
        a("s_nop 2")
        for p in range(4): a("v_add_f32 v%d, v%d, v%d" % (32 + 2 * p, 32 + 2 * p, 33 + 2 * p))
        reduce4(a, [32, 34, 36, 38])
        a("s_mul_i32 s%d, s46, %d" % (S_T0, 3584 * 4)); a("s_lshl_b32 s%d, s47, 8" % S_T1); a("s_add_u32 s%d, s%d, s%d" % (S_T0, S_T0, S_T1))
        a("v_lshlrev_b32 v28, 2, v1")
        a("buffer_store_dword v32, v28, s[%d:%d], s%d offen sc1" % (S_SRDY, S_SRDY + 3, S_T0))
    return f

BIAS = 148
def pre_k1(a, c):
    rows_load(a, c)
    srd(a, S_SRDO, *c.O)
    a("v_and_b32 v12, 15, v1"); a("v_lshrrev_b32 v13, 4, v1")
    a("v_lshlrev_b32 v14, 2, v13"); a("v_sub_u32 v14, v12, v14")
    a("s_mov_b32 s%d, 0x%x" % (S_T0, f2u(-1e30))); a("v_mov_b32 v12, s%d" % S_T0)
    for half in range(2):
        for r in range(4):
            a("v_add_u32 v13, %d, v14" % ((16 if half == 0 else 0) - r)); a("v_and_b32 v13, 0xfffffff1, v13")
            a("v_cmp_ne_u32 vcc, 0, v13"); a("s_nop 1")
            a("v_cndmask_b32 v%d, 0, v12, vcc" % (BIAS + 4 * half + r))
    a("s_or_b32 s%d, s%d, s%d" % (S_T1, S_MT, S_WR)); a("s_cmp_eq_u32 s%d, 0" % S_T1); a("s_cselect_b32 s%d, s%d, 0" % (S_T1, S_T0))
    for r in range(4): a("v_add_f32 v%d, s%d, v%d" % (BIAS + 8 + r, S_T1, BIAS + r))
    base = auxbase(c); CSB = base + c.aux[2]
    a("v_lshlrev_b32 v12, 4, v1")
    a("s_mul_i32 s%d, s%d, 6144" % (S_T0, S_WAVE)); a("s_add_u32 s%d, s%d, %d" % (S_T0, S_T0, XCH))
    a("s_xor_b32 s%d, s%d, 2" % (S_T1, S_WAVE)); a("s_mul_i32 s%d, s%d, 6144" % (S_T1, S_T1)); a("s_add_u32 s%d, s%d, %d" % (S_T1, S_T1, XCH))
    a("v_add_u32 v160, s%d, v12" % S_T0)
    a("s_cmp_eq_u32 s%d, 0" % S_WR)
    for i, (own, s0, s1) in enumerate(((True, 0, 3), (False, 0, 2), (True, 1, 5), (False, 1, 4))):
        a("s_add_u32 s40, s%d, %d" % (S_T0 if own else S_T1, 1024 * s0)); a("s_add_u32 s41, s%d, %d" % (S_T1, 1024 * s1))
        a("s_cmp_eq_u32 s%d, 0" % S_WR); a("s_cselect_b32 s40, s40, s41")
        a("v_add_u32 v%d, s40, v12" % (161 + i))
    a("s_lshl_b32 s%d, s%d, 7" % (S_T0, S_WC)); a("s_lshl_b32 s%d, s%d, 6" % (S_T1, S_WR)); a("s_add_u32 s%d, s%d, s%d" % (S_T0, S_T0, S_T1)); a("s_add_u32 s%d, s%d, %d" % (S_T0, S_T0, CSB))
    a("v_lshrrev_b32 v13, 4, v1"); a("v_lshlrev_b32 v13, 4, v13"); a("v_add_u32 v165, s%d, v13" % S_T0)
    a("v_and_b32 v13, 15, v1"); a("v_lshlrev_b32 v13, 2, v13"); a("v_add_u32 v166, s%d, v13" % S_T0)
    rows_pub(a, c)

def epi_k1(a, c):
    base = auxbase(c); AUX_A, AUX_NM, AUX_CS = c.aux
    assert (base + AUX_CS) % 128 == 0
    hq, hk, hv = acc_of(c, 0, 0), acc_of(c, 0, 2), acc_of(c, 0, 4)
    A = lambda b, nb: (acc_of(c, b, nb) if b else {2: hk, 3: hq, 4: hv, 5: V_ACC + 108}[nb])
    for i, r in enumerate((hk, hv, A(4, 2), A(4, 3), A(4, 4), A(4, 5))): a("ds_write_b128 v160, v[%d:%d] offset:%d" % (r, r + 3, 1024 * i))
    a("s_mov_b32 exec_lo, 0x10001"); a("s_mov_b32 exec_hi, 0x10001")
    a("ds_write_b128 v165, v[%d:%d]" % (hq, hq + 3)); a("ds_write_b128 v165, v[%d:%d] offset:256" % (hk, hk + 3))
    a("s_mov_b64 exec, 0xffff")
    a("ds_write_b32 v166, v%d offset:512" % hv)
    a("s_mov_b64 exec, -1")
    a("v_and_b32 v2, 15, v1"); a("v_lshrrev_b32 v3, 4, v1")
    a("s_lshl_b32 s%d, s%d, 8" % (S_T0, S_WR)); a("s_add_u32 s%d, s%d, %d" % (S_T0, S_T0, base))
    a("v_lshlrev_b32 v4, 2, v2"); a("v_add_u32 v4, s%d, v4" % S_T0)
    a("v_lshlrev_b32 v5, 4, v3"); a("v_add_u32 v5, s%d, v5" % S_T0)
    a("v_xor_b32 v6, 64, v165"); a("v_xor_b32 v7, 64, v166")
    AN = 128; CQ = 140; CK = 160; CV = 138
    for mb in (1, 2, 3, 4, 0): a("ds_read2_b32 %s, v4 offset0:%d offset1:%d" % (pk(AN + 2 * mb), AUX_A // 4 + 16 * mb, AUX_NM // 4 + 16 * mb))
    a("ds_read_b128 v[8:11], v5 offset:%d" % AUX_A); a("ds_read_b128 v[12:15], v5 offset:%d" % AUX_NM)
    a("s_waitcnt lgkmcnt(7)")
    a("s_barrier")
    a("ds_read_b128 v[%d:%d], v165" % (CQ, CQ + 3)); a("ds_read_b128 v[%d:%d], v6" % (CQ + 4, CQ + 7))
    for i, nb in enumerate((2, 3, 4, 5)): a("ds_read_b128 v[%d:%d], v%d" % (A(0, nb), A(0, nb) + 3, 161 + i))
    a("ds_read_b32 v%d, v166 offset:512" % CV); a("ds_read_b32 v%d, v7 offset:512" % (CV + 1))
    a("ds_read_b128 v[%d:%d], v165 offset:256" % (CK, CK + 3)); a("ds_read_b128 v[%d:%d], v6 offset:256" % (CK + 4, CK + 7))
    def norm_rowlane(x, an, cs):
        for p in range(2): a("v_pk_fma_f32 %s, %s, %s, %s op_sel:[0,1,0] op_sel_hi:[1,1,1]" % (pk(x + 2 * p), pk(cs + 2 * p), pk(an), pk(x + 2 * p)))
    def scale_rowlane(x, an):
        for p in range(2): a("v_pk_mul_f32 %s, %s, %s op_sel_hi:[1,0]" % (pk(x + 2 * p), pk(x + 2 * p), pk(an)))
    def packqk(b, nb0, cs):
        x0, x1 = A(b, nb0), A(b, nb0 + 1)
        norm_rowlane(x0, AN + 2 * b, cs); norm_rowlane(x1, AN + 2 * b, cs + 4); scale_rowlane(x0, AN + 2 * b); scale_rowlane(x1, AN + 2 * b)
        pack_pair(a, x0, x1, x0)
    QP = {b: A(b, 0) for b in range(1, 5)}; KP = {b: A(b, 2) for b in range(5)}
    a("s_waitcnt lgkmcnt(8)")
    for b in range(1, 5): packqk(b, 0, CQ)
    a("s_waitcnt lgkmcnt(0)")
    for b in (1, 2, 3, 4, 0): packqk(b, 2, CK)
    S0 = {b: A(b, 1) for b in range(1, 5)}; S1 = {b: A(b, 3) for b in range(1, 5)}
    for b in (2, 3, 4, 1):
        a("v_mfma_f32_16x16x32_bf16 %s, %s, %s, 0" % (vr(S1[b], 4), vr(KP[b], 4), vr(QP[b], 4)))
        a("v_mfma_f32_16x16x32_bf16 %s, %s, %s, 0" % (vr(S0[b], 4), vr(KP[b - 1], 4), vr(QP[b], 4)))
    VP = [128, 158]
    VP = [128, 160 - 2]
    VB = [(8, 12), (140, 144)]
    a("s_mov_b32 s64, 0x%x" % f2u(32 ** -0.5 * LOG2E)); a("s_mov_b32 s65, s64")
    def vblock(b):
        va, vn = VB[b & 1]
        if b < 4:
            na, nn = VB[(b + 1) & 1]
            a("ds_read_b128 v[%d:%d], v5 offset:%d" % (na, na + 3, AUX_A + 64 * (b + 1))); a("ds_read_b128 v[%d:%d], v5 offset:%d" % (nn, nn + 3, AUX_NM + 64 * (b + 1)))
        a("s_waitcnt lgkmcnt(%d)" % (2 if b < 4 else 0))
        xs = [A(b, 4), A(b, 5)]
        for cc in range(2):
            for p in range(2):
                sel = "op_sel_hi:[1,0,1]" if cc == 0 else "op_sel:[0,1,0] op_sel_hi:[1,1,1]"
                a("v_pk_fma_f32 %s, %s, %s, %s %s" % (pk(xs[cc] + 2 * p), pk(vn + 2 * p), pk(CV), pk(xs[cc] + 2 * p), sel))
        for cc in range(2):
            for p in range(2): a("v_pk_mul_f32 %s, %s, %s" % (pk(xs[cc] + 2 * p), pk(xs[cc] + 2 * p), pk(va + 2 * p)))
    def vpack(b):
        xs = [A(b, 4), A(b, 5)]
        for cc in range(2):
            a("v_cvt_pk_bf16_f32 v%d, v%d, v%d" % (VP[cc] + 2 * b, xs[cc], xs[cc] + 1))
            a("v_cvt_pk_bf16_f32 v%d, v%d, v%d" % (VP[cc] + 2 * b + 1, xs[cc] + 2, xs[cc] + 3))
    vblock(0)
    for b in (1, 2, 3, 4):
        vblock(b); vpack(b)
    for b in range(1, 5):
        for h, s in enumerate((S0[b], S1[b])):
            bias = BIAS + 8 if (b == 1 and h == 0) else BIAS + 4 * h
            for p in range(2): a("v_pk_fma_f32 %s, %s, s[64:65], %s" % (pk(s + 2 * p), pk(s + 2 * p), pk(bias + 2 * p)))
    vpack(0)
    M, T = 8, 12
    for st in range(4):
        for b in range(1, 5):
            s, u = S0[b], S1[b]; m = M + b - 1
            a(["v_max3_f32 v%d, v%d, v%d, v%d" % (m, s, s + 1, s + 2), "v_max3_f32 v%d, v%d, v%d, v%d" % (m, m, s + 3, u),
               "v_max3_f32 v%d, v%d, v%d, v%d" % (m, m, u + 1, u + 2), "v_max_f32 v%d, v%d, v%d" % (m, m, u + 3)][st])
    def xreduce(op):
        for sw in ("v_permlane16_swap_b32", "v_permlane32_swap_b32"):
            for b in range(4): a("v_mov_b32 v%d, v%d" % (T + b, M + b))
            for b in range(4): a("%s v%d, v%d" % (sw, M + b, T + b))
            for b in range(4): a("%s v%d, v%d, v%d" % (op, M + b, M + b, T + b))
    xreduce("v_max_f32")
    def bsel(b):
        m = M + b - 1
        return (pk(m & ~1), "op_sel:[0,1] op_sel_hi:[1,1]" if m & 1 else "op_sel_hi:[1,0]")
    for b in range(1, 5):
        r, sel = bsel(b)
        for s in (S0[b], S1[b]):
            for p in range(2): a("v_pk_add_f32 %s, %s, %s %s neg_lo:[0,1] neg_hi:[0,1]" % (pk(s + 2 * p), pk(s + 2 * p), r, sel))
    for b in range(1, 5):
        for s in (S0[b], S1[b]):
            for j in range(4): a("v_exp_f32 v%d, v%d" % (s + j, s + j))
    U = 136
    for b in range(1, 5): a("v_pk_add_f32 %s, %s, %s" % (pk(U + 4 * b), pk(S0[b]), pk(S0[b] + 2)))
    for b in range(1, 5): a("v_pk_add_f32 %s, %s, %s" % (pk(U + 2 + 4 * b), pk(S1[b]), pk(S1[b] + 2)))
    for b in range(1, 5): a("v_pk_add_f32 %s, %s, %s" % (pk(U + 4 * b), pk(U + 4 * b), pk(U + 2 + 4 * b)))
    for b in range(1, 5): a("v_add_f32 v%d, v%d, v%d" % (M + b - 1, U + 4 * b, U + 1 + 4 * b))
    xreduce("v_add_f32")
    for b in range(4): a("v_rcp_f32 v%d, v%d" % (M + b, M + b))
    a("s_lshl_b32 s%d, s%d, 5" % (S_T0, S_MT)); a("s_lshl_b32 s%d, s%d, 1" % (S_T1, S_NT))
    for b in range(1, 5):
        r, sel = bsel(b)
        for s in (S0[b], S1[b]):
            for p in range(2): a("v_pk_mul_f32 %s, %s, %s %s" % (pk(s + 2 * p), pk(s + 2 * p), r, sel))
        pack_pair(a, S0[b], S1[b], QP[b])
    a("s_add_u32 s%d, s%d, s%d" % (S_T0, S_T0, S_T1)); a("s_add_u32 s%d, s%d, s%d" % (S_T0, S_T0, S_WC))
    for b in range(1, 5):
        for cc, o in enumerate((S0[b], S1[b])):
            a("v_mfma_f32_16x16x32_bf16 %s, %s, %s, 0" % (vr(o, 4), vr(VP[cc] + 2 * (b - 1), 4), vr(QP[b], 4)))
    a("s_lshl_b32 s%d, s%d, 1" % (S_T0, S_T0)); a("s_add_u32 s%d, s%d, s%d" % (S_T0, S_T0, S_WR)); a("s_lshl_b32 s%d, s%d, 12" % (S_T0, S_T0))
    a("s_lshl_b32 s%d, s%d, 1" % (S_T1, S_WR)); a("v_xor_b32 v3, s%d, v3" % S_T1)
    a("v_lshlrev_b32 v4, 6, v2"); a("v_lshl_add_u32 v4, v3, 4, v4")
    for b in range(1, 5): pack_pair(a, S0[b], S1[b], KP[b])
    for b in range(1, 5):
        swap_pair(a, KP[b])
        a("buffer_store_dwordx4 v[%d:%d], v4, s[%d:%d], s%d offen offset:%d %s" % (KP[b], KP[b] + 3, S_SRDO, S_SRDO + 3, S_T0, 1024 * (b - 1), c.stfl))

def pairAB(flip):
    def f(a, d):
        a("s_lshl_b32 s%d, s%d, 1" % (d, S_WC)); a("s_add_u32 s%d, s%d, s%d" % (d, d, S_WR))
        if flip: a("s_xor_b32 s%d, s%d, 1" % (d, d))
        a("s_lshl_b32 s%d, s%d, 5" % (d, d))
    return f
def cfg_p1(**kw):
    c = Cfg(name="p1", K=1024, lda=2048, ldb=6144, halo=16, ones=True,
            A=("x", 0, 4 << 20), W=("wqkv", 0, 1024 * 6144), O=("ws", WS_O, 4 << 20),
            segw=[64, 64, 64], col0=[0, 1024, 2048], cstep=64, wc_bits=1,
            aregs=[rows_wr(64, 16), rows_zero], mblk=[(1, 0), (0, 0), (0, 16), (0, 32), (0, 48)],
            wregs=[(0, 0, 0, pairAB(0)), (0, 0, 0, pairAB(1))],
            nblk=[(0, 0, 128), (1, 0, 128), (0, 8192, 128), (1, 8192, 128), (0, 16384, 128), (1, 16384, 128)],
            xa=8, xb=4, NS=3, order="rot", aux=(0, 576, 1152), own_xbar=True, wtouch=0,
            tail_pf=[("wo", 2 << 20)], codepf=[], ramp=[17, 12, 12, 12, 13])
    c.mf = []
    for base, sw in ((0, False), (2, False), (4, True)):
        c.mf += [(mb, base, sw) for mb in range(5)] + [(mb, base + 1, sw) for mb in range(1, 5)]
    c.epilogue = epi_k1; c.compute_pre = pre_k1
    c.__dict__.update(kw)
    c.xbar = True
    c.special = {-1: [("post", k1_setup, 0)], 4: [("post", lw0_cnt(0), 0)], 13: [("weave", k1_prep, 0)], 12: [("pre", cnt_poll(0), 1)],
                 14: [("post", k1_tail, 9 + n_tail(c))], 15: [("post", k1_fin, 0)]}
    c.flagiter = (16 - 2, k1_drain)
    return c

RESB = 147456
def res_tail(a, c):
    srd(a, S_SRDX, *c.R)
    if c.rblk:
        blk_pattern(a, 30)
        a("s_lshl_b32 s%d, s%d, 4" % (S_T0, S_MT)); a("s_add_u32 s%d, s%d, s%d" % (S_T0, S_T0, S_NT)); a("s_lshl_b32 s%d, s%d, 14" % (S_T0, S_T0))
        a("s_lshl_b32 s%d, s%d, 11" % (S_T1, S_LW)); a("s_add_u32 s%d, s%d, s%d" % (S_T0, S_T0, S_T1))
    else:
        a("v_xor_b32 v5, v4, v3"); a("v_lshlrev_b32 v30, 11, v2"); a("v_lshl_add_u32 v30, v5, 4, v30")
        a("v_xor_b32 v31, 64, v30"); a("v_add_u32 v31, %d, v31" % (8 * 2048 - 1024))
        a("v_add_u32 v32, %d, v30" % (16 * 2048 - 2048)); a("v_add_u32 v33, %d, v31" % (16 * 2048 - 2048))
        a("s_lshl_b32 s%d, s%d, 2" % (S_T0, S_MT)); a("s_add_u32 s%d, s%d, s%d" % (S_T0, S_T0, S_LW)); a("s_lshl_b32 s%d, s%d, 16" % (S_T0, S_T0))
        a("s_lshl_b32 s%d, s%d, 7" % (S_T1, S_NT)); a("s_add_u32 s%d, s%d, s%d" % (S_T0, S_T0, S_T1))
    a("s_lshl_b32 s%d, s%d, 12" % (S_T1, S_LW)); a("s_add_u32 m0, s%d, %d" % (S_T1, RESB)); a("s_nop 0")
    for j in range(4): a("buffer_load_dwordx4 v%d, s[%d:%d], s%d offen offset:%d %s lds" % (30 + j, S_SRDX, S_SRDX + 3, S_T0, 1024 * j, c.flr))
    tail_pf(a, c)
def res_fin(a, c): a("s_waitcnt vmcnt(%d)" % n_tail(c))
def pre_k24(a, c):
    srd(a, S_SRDO, *c.O)
    if c.dostats: srd(a, S_SRDY, "ws", WS_STATS, 16 * 2048 * 8)
    a("v_and_b32 v80, 15, v1"); a("v_lshrrev_b32 v81, 4, v1")
    if c.oblk:
        a("s_lshl_b32 s%d, s%d, 4" % (S_T0, S_MT)); a("s_add_u32 s%d, s%d, s%d" % (S_T0, S_T0, S_NT)); a("s_lshl_b32 s%d, s%d, 14" % (S_T0, S_T0))
        a("s_lshl_b32 s%d, s%d, 11" % (S_T1, S_WR)); a("s_add_u32 s64, s%d, s%d" % (S_T0, S_T1)); a("s_add_u32 s65, s64, 8192")
        a("v_lshlrev_b32 v82, 6, v80"); a("v_lshl_add_u32 v84, v81, 4, v82")
    else:
        a("s_lshl_b32 s%d, s%d, 7" % (S_T0, S_MT)); a("s_lshl_b32 s%d, s%d, 5" % (S_T1, S_WR))
        a("s_add_u32 s%d, s%d, s%d" % (S_T0, S_T0, S_T1)); a("s_lshl_b32 s%d, s%d, 11" % (S_T0, S_T0))
        a("s_lshl_b32 s%d, s%d, 7" % (S_T1, S_NT)); a("s_add_u32 s64, s%d, s%d" % (S_T0, S_T1))
        for i in range(1, 4): a("s_add_u32 s%d, s64, %d" % (64 + i, i * 8 * 2048))
        a("v_and_b32 v82, 7, v80"); a("v_lshlrev_b32 v82, 11, v82"); a("v_lshl_add_u32 v84, v81, 4, v82")
        a("v_lshrrev_b32 v82, 3, v80"); a("v_lshl_add_u32 v84, v82, 6, v84")
    a("v_bfe_u32 v82, v80, 1, 3"); a("v_lshrrev_b32 v83, 1, v81"); a("v_xor_b32 v82, v82, v83"); a("v_lshlrev_b32 v82, 4, v82")
    a("v_and_b32 v83, 1, v81"); a("v_lshl_add_u32 v82, v83, 3, v82"); a("v_lshl_add_u32 v82, v80, 7, v82")
    a("s_lshl_b32 s%d, s%d, 12" % (S_T0, S_WR)); a("s_add_u32 s%d, s%d, %d" % (S_T0, S_T0, RESB))
    for nb in range(4):
        a("v_xor_b32 v%d, %d, v82" % (48 + nb, 32 * nb)); a("v_add_u32 v%d, s%d, v%d" % (48 + nb, S_T0, 48 + nb))
    if c.dostats:
        a("v_and_b32 v113, 31, v1"); a("v_lshlrev_b32 v113, 3, v113"); a("v_lshrrev_b32 v114, 5, v1"); a("v_lshl_add_u32 v116, v114, 2, v113")
        a("s_lshl_b32 s%d, s%d, 14" % (S_T0, S_NT)); a("s_lshl_b32 s%d, s%d, 10" % (S_T1, S_MT)); a("s_add_u32 s%d, s%d, s%d" % (S_T0, S_T0, S_T1))
        a("s_lshl_b32 s%d, s%d, 8" % (S_T1, S_WR)); a("s_add_u32 s68, s%d, s%d" % (S_T0, S_T1))
def epi_k24(a, c):
    RES = 64; T = 96
    for mb in range(2):
        for nb in range(4): a("ds_read_b64 %s, v%d offset:%d" % (pk(RES + (mb * 4 + nb) * 2), 48 + nb, 2048 * mb))
    if c.dostats:
        a("s_mov_b32 s%d, 0x3f803f80" % S_T0)
        for r in range(112, 116): a("v_mov_b32 v%d, 0" % r)
    for mb in range(2):
        a("s_waitcnt lgkmcnt(%d)" % (4 - 4 * mb))
        for nb in range(4):
            r = RES + (mb * 4 + nb) * 2; x = acc_of(c, mb, nb); t = 86 + 4 * (nb & 1)
            for d in range(2):
                a("v_lshlrev_b32 v%d, 16, v%d" % (t + 2 * d, r + d)); a("v_and_b32 v%d, 0xffff0000, v%d" % (t + 2 * d + 1, r + d))
            for d in range(2): a("v_pk_add_f32 %s, %s, %s" % (pk(x + 2 * d), pk(x + 2 * d), pk(t + 2 * d)))
        for p in range(2): pack_pair(a, acc_of(c, mb, 2 * p), acc_of(c, mb, 2 * p + 1), T + (mb * 2 + p) * 4)
        if c.dostats:
            for j in range(8):
                d = T + mb * 8 + j
                a("v_dot2c_f32_bf16 v%d, s%d, v%d" % (112 + 2 * mb, S_T0, d)); a("v_dot2c_f32_bf16 v%d, v%d, v%d" % (113 + 2 * mb, d, d))
        else: a("s_nop 1")
        if c.oblk:
            for p in range(2):
                t = T + (mb * 2 + p) * 4
                swap_pair(a, t)
                a("buffer_store_dwordx4 v[%d:%d], v84, s[%d:%d], s%d offen offset:%d %s" % (t, t + 3, S_SRDO, S_SRDO + 3, 64 + p, 1024 * mb, c.stfl))
        else:
            X, Y, U = T + mb * 8, T + mb * 8 + 4, 120
            swap_pair(a, X); swap_pair(a, Y)
            for d in range(4): a("v_mov_b32 v%d, v%d" % (U + d, X + d))
            for d in range(4): a("v_mov_b32_dpp v%d, v%d row_ror:8 row_mask:0xf bank_mask:0xc" % (X + d, Y + d))
            for d in range(4): a("v_mov_b32_dpp v%d, v%d row_ror:8 row_mask:0xf bank_mask:0x3" % (Y + d, U + d))
            a("buffer_store_dwordx4 v[%d:%d], v84, s[%d:%d], s%d offen %s" % (X, X + 3, S_SRDO, S_SRDO + 3, 64 + 2 * mb, c.stfl))
            a("buffer_store_dwordx4 v[%d:%d], v84, s[%d:%d], s%d offen %s" % (Y, Y + 3, S_SRDO, S_SRDO + 3, 65 + 2 * mb, c.stfl))
    if c.dostats:
        a("v_permlane32_swap_b32 v112, v113"); a("v_permlane32_swap_b32 v114, v115"); a("s_nop 0")
        a("v_add_f32 v112, v112, v113"); a("v_add_f32 v114, v114, v115"); a("s_nop 1")
        a("v_permlane16_swap_b32 v112, v114"); a("s_nop 0")
        a("v_add_f32 v112, v112, v114")
        a("buffer_store_dword v112, v116, s[%d:%d], s68 offen sc1" % (S_SRDY, S_SRDY + 3))

def cfg_p24(**kw):
    c = Cfg(segw=[64], col0=[0], cstep=64, wc_bits=0, aregs=[rows_wr(32)], mblk=[(0, 0), (0, 16)],
            wregs=[(0, 0, 0, 0), (0, 0, 1, 0), (0, 0, 2, 0), (0, 0, 3, 0)],
            nblk=[(0, 0, 128), (1, 0, 128), (2, 0, 128), (3, 0, 128)],
            xa=4, xb=8, NS=3, sub=2, rpm=2, order="class", tail_pf=[], codepf=[], ramp=[20], flr="")
    c.mf = [(mb, nb, False) for nb in range(4) for mb in range(2)]
    c.compute_pre = pre_k24; c.epilogue = epi_k24
    c.__dict__.update(kw)
    N = nst(c)
    c.special = {N - 2: [("post", res_tail, 4 + n_tail(c))], N - 1: [("post", res_fin, 0)]}
    return c
def cfg_p2(**kw):
    return cfg_p24(name="p2", K=1024, lda=2048, ldb=2048, A=("ws", WS_O - 4096, (4 << 20) + 4096), ablk=32, W=("wo", 0, 2 << 20), O=("ws", WS_H, 4 << 20), oblk=True, R=("x", 0, 4 << 20), rblk=False, dostats=True, **kw)
def cfg_p4(**kw):
    return cfg_p24(name="p4", K=3584, lda=7168, ldb=2048, A=("ws", WS_H1 - 4096, 2048 * 7168 + 4096), ablk=112, W=("w2", 0, 3584 * 2048), O=("out", 0, 4 << 20), oblk=False, R=("ws", WS_H - 4096, (4 << 20) + 4096), rblk=True, dostats=False, **kw)

def pre_k3(a, c):
    srd(a, S_SRDO, *c.O); srd(a, S_SRDX, "ws", WS_CS1, 16 * 3584 * 4)
    if c.fused:
        cnt_poll(32, 20)(a, c); a("s_waitcnt vmcnt(0)"); cnt_check(a, 20)
    a("s_mul_i32 s40, s%d, 896" % S_NT); a("s_mul_i32 s41, s%d, 224" % S_WAVE); a("s_add_u32 s40, s40, s41")
    a("v_lshlrev_b32 v16, 2, v1")
    for p in range(16):
        a("buffer_load_dword v%d, v16, s[%d:%d], s40 offen sc1" % (32 + p, S_SRDX, S_SRDX + 3))
        if p < 15: a("s_add_u32 s40, s40, %d" % (3584 * 4))
    a("s_add_u32 s41, s41, %d" % (auxbase(c) + c.aux[2])); a("v_add_u32 v17, s41, v16")
    a("s_waitcnt vmcnt(0)")
    for st in (8, 4, 2):
        for j in range(0, st, 2): a("v_pk_add_f32 %s, %s, %s" % (pk(32 + j), pk(32 + j), pk(32 + j + st)))
    a("v_add_f32 v32, v32, v33")
    a("s_mov_b32 exec_hi, 0xffffff")
    a("ds_write_b32 v17, v32")
    a("s_mov_b32 exec_hi, -1")
    a("s_waitcnt lgkmcnt(0)")
def k3_stats(a, c):
    srd(a, S_SRDY, "ws", WS_STATS, 16 * 2048 * 8)
    a("v_and_b32 v28, 31, v1"); a("v_lshlrev_b32 v29, 3, v28"); a("v_lshrrev_b32 v30, 5, v1"); a("v_lshl_add_u32 v29, v30, 17, v29")
    a("s_lshl_b32 s44, s%d, 10" % S_MT); a("s_lshl_b32 s%d, s%d, 8" % (S_T0, S_LW)); a("s_add_u32 s44, s44, s%d" % S_T0)
    for j in range(8):
        a("buffer_load_dwordx2 %s, v29, s[%d:%d], s44 offen sc1" % (pk(48 + 2 * j), S_SRDY, S_SRDY + 3))
        if j < 7: a("s_add_u32 s44, s44, 16384")
def k3_fin(a, c):
    for st in (8, 4, 2):
        for j in range(st): a("v_add_f32 v%d, v%d, v%d" % (48 + j, 48 + j, 48 + j + st))
    a("s_lshl_b32 s%d, s%d, 7" % (S_T0, S_LW)); a("s_add_u32 s%d, s%d, %d" % (S_T0, S_T0, auxbase(c)))
    a("v_mov_b32 v50, v48"); a("v_mov_b32 v51, v49")
    a("v_lshlrev_b32 v28, 2, v28"); a("v_add_u32 v28, s%d, v28" % S_T0)
    a("v_permlane32_swap_b32 v48, v50"); a("v_permlane32_swap_b32 v49, v51"); a("s_nop 0")
    a("v_add_f32 v48, v48, v50"); a("v_add_f32 v49, v49, v51")
    finish_stats(a, 48, 49, 50)
    a("ds_write_b32 v28, v49 offset:%d" % c.aux[1]); a("ds_write_b32 v28, v48 offset:%d" % c.aux[0])
def lgkm0(a, c): a("s_waitcnt lgkmcnt(0)")
def epi_k3(a, c, half=0):
    base = auxbase(c); AUX_A, AUX_NM, AUX_CS = c.aux
    AB = 128; CS = 136; E = 8
    alljobs = [(m, q) for m in range(4) for q in range(4) if q < 3 or m < 2]
    mine = alljobs
    if c.share:
        theirs = [(3, 0), (3, 1), (3, 2), (2, 0), (2, 1), (2, 2), (1, 3)][:c.share]
        mine = theirs if half else [j for j in alljobs if j not in theirs]
        W = S_LW if half else S_WAVE
        if half:
            a("s_lshr_b32 s%d, s%d, 1" % (S_WR, S_LW)); a("s_and_b32 s%d, s%d, 1" % (S_WC, S_LW)); srd(a, S_SRDO, *c.O)
        a("s_mul_i32 s%d, s%d, 24576" % (S_T0, W)); a("v_lshlrev_b32 v9, 4, v1"); a("v_add_u32 v9, s%d, v9" % S_T0)
        blocks = [acc_of(c, m, 2 * q + e) for (m, q) in theirs for e in range(2)]
        if not half:
            for i, x in enumerate(blocks): a("ds_write_b128 v9, v[%d:%d] offset:%d" % (x, x + 3, 1024 * i))
    a("v_and_b32 v2, 15, v1"); a("v_lshrrev_b32 v3, 4, v1")
    a("s_lshl_b32 s%d, s%d, 1" % (S_T0, S_WR)); a("s_add_u32 s%d, s%d, s%d" % (S_T0, S_T0, S_WC))
    a("s_lshl_b32 s%d, s%d, 7" % (S_T1, S_T0)); a("s_add_u32 s%d, s%d, %d" % (S_T1, S_T1, base))
    a("v_lshlrev_b32 v4, 2, v2"); a("v_add_u32 v4, s%d, v4" % S_T1); a("v_xor_b32 v10, 128, v4")
    a("v_lshlrev_b32 v5, 4, v3"); a("v_add_u32 v5, %d, v5" % (base + AUX_CS))
    a("s_lshl_b32 s%d, s%d, 8" % (S_T1, S_WC)); a("v_add_u32 v6, s%d, v5" % S_T1)
    a("s_lshl_b32 s%d, s%d, 7" % (S_T1, S_WC)); a("v_add_u32 v7, s%d, v5" % S_T1)
    ms = sorted(set(m for m, q in mine)); qs = sorted(set(q for m, q in mine))
    for m in ms: a("ds_read2_b32 %s, v%d offset0:%d offset1:%d" % (pk(AB + 2 * m), 4 if m < 2 else 10, AUX_A // 4 + 16 * (m & 1), AUX_NM // 4 + 16 * (m & 1)))
    for t in range(8):
        v, off = (6, 64 * t) if t < 4 else ((7, 512 + 64 * (t - 4)) if t < 6 else (5, 768 + 64 * (t - 6)))
        a("ds_read_b128 v[%d:%d], v%d offset:%d" % (CS + 4 * t, CS + 4 * t + 3, v, off))
    nrd = len(ms) + 8
    if c.share and not half:
        a("s_waitcnt lgkmcnt(%d)" % nrd); a("s_barrier")
    a("v_lshlrev_b32 v5, 6, v2"); a("v_lshl_add_u32 v5, v3, 4, v5"); a("s_lshl_b32 s%d, s%d, 11" % (S_T0, S_T0)); a("v_add_u32 v5, s%d, v5" % S_T0); a("v_xor_b32 v6, 0x800, v5")
    a("s_mul_i32 s%d, s%d, 112" % (S_T0, S_MT)); a("s_mul_i32 s%d, s%d, 7" % (S_T1, S_NT)); a("s_add_u32 s%d, s%d, s%d" % (S_T0, S_T0, S_T1))
    a("s_add_u32 s67, s%d, 6" % S_T0); a("s_add_u32 s66, s%d, s%d" % (S_T0, S_WC)); a("s_add_u32 s64, s66, s%d" % S_WC); a("s_add_u32 s66, s66, 4"); a("s_add_u32 s65, s64, 1")
    for q in range(4): a("s_lshl_b32 s%d, s%d, 13" % (64 + q, 64 + q))
    a("s_mov_b32 s68, 0x%x" % f2u(-LOG2E)); a("s_mov_b32 s69, s68")
    if c.share and half:
        a("s_barrier")
        for i, x in enumerate(blocks): a("ds_read_b128 v[%d:%d], v9 offset:%d" % (x, x + 3, 1024 * i))
    pend = None
    for i, (m, q) in enumerate(mine):
        if c.share and half: a("s_waitcnt lgkmcnt(%d)" % (len(blocks) - 2 * i - 2))
        elif i == 0: a("s_waitcnt lgkmcnt(0)")
        prs = []
        for t in (2 * q, 2 * q + 1):
            x = acc_of(c, m, t)
            for p in range(2): prs.append((x + 2 * p, AB + 2 * m, CS + 4 * t + 2 * p))
        for (x, ab, cs) in prs: a("v_pk_fma_f32 %s, %s, %s, %s op_sel:[0,1,0] op_sel_hi:[1,1,1]" % (pk(x), pk(cs), pk(ab), pk(x)))
        if pend: pend()
        for (x, ab, cs) in prs: a("v_pk_mul_f32 %s, %s, %s op_sel_hi:[1,0]" % (pk(x), pk(x), pk(ab)))
        for j, (x, ab, cs) in enumerate(prs): a("v_pk_mul_f32 %s, %s, s[68:69]" % (pk(E + 2 * j), pk(x)))
        for j in range(8): a("v_exp_f32 v%d, v%d" % (E + j, E + j))
        for j in range(4): a("v_pk_add_f32 %s, %s, 1.0 op_sel_hi:[1,0]" % (pk(E + 2 * j), pk(E + 2 * j)))
        for j in range(8): a("v_rcp_f32 v%d, v%d" % (E + j, E + j))
        for j, (x, ab, cs) in enumerate(prs): a("v_pk_mul_f32 %s, %s, %s" % (pk(x), pk(x), pk(E + 2 * j)))
        t = prs[0][0]
        pack_pair(a, prs[0][0], prs[2][0], t)
        def fin(t=t, m=m, q=q):
            swap_pair(a, t)
            a("buffer_store_dwordx4 v[%d:%d], v%d, s[%d:%d], s%d offen offset:%d %s" % (t, t + 3, 5 if m < 2 else 6, S_SRDO, S_SRDO + 3, 64 + q, 1024 * (m & 1), c.stfl))
        pend = fin
    a("s_nop 1"); pend()
    if half:
        a("v_lshrrev_b32 v2, 3, v1"); a("v_and_b32 v3, 7, v1"); a("v_lshrrev_b32 v4, 4, v1")

def rows_p3(flip):
    def f(a, d):
        a("s_lshl_b32 s%d, s%d, 1" % (d, S_WR)); a("s_add_u32 s%d, s%d, s%d" % (d, d, S_WC))
        if flip: a("s_xor_b32 s%d, s%d, 1" % (d, d))
        a("s_lshl_b32 s%d, s%d, 12" % (d, d))
    return f
def cfg_p3(**kw):
    c = Cfg(name="p3", K=1024, lda=2048, ldb=7168, A=("ws", WS_H - 4096, (4 << 20) + 4096), ablk=32, W=("w1", 0, 1024 * 7168), O=("ws", WS_H1, 2048 * 7168),
            segw=[64, 64, 64, 32], col0=[0, 64, 128, 192], cstep=224, wc_bits=1,
            aregs=[rows_p3(0), rows_p3(1)], mblk=[(0, 0), (0, 16), (1, 0), (1, 16)],
            wregs=[(0, 1, 0, 0), (0, 1, 1, 0), (0, 1, 2, 0), (0, 1, 3, 0), (2, 0, 0, 2), (2, 0, 1, 2), (3, 0, 0, 0), (3, 0, 1, 0)],
            nblk=[(0, 0, 128), (1, 0, 128), (2, 0, 128), (3, 0, 128), (4, 0, 128), (5, 0, 128), (6, 0, 64), (7, 0, 64)],
            xa=8, xb=4, NS=3, order="class", aux=(0, 512, 1024),
            tail_pf=[("w2", 7 << 20)], codepf=[], ramp=[19, 11, 12, 12, 12], share=0)
    c.mf = [(mb, nb, False) for nb in range(6) for mb in range(4)] + [(mb, nb, False) for nb in (6, 7) for mb in range(2)]
    c.compute_pre = pre_k3; c.epilogue = epi_k3
    c.__dict__.update(kw)
    if c.share:
        c.own_xbar = True; c.loader_share = lambda a, c: epi_k3(a, c, 1)
    c.special = {-1: [("post", k3_stats, 8)], 14: [("post", tail_pf, n_tail(c)), ("post", k3_fin, 0), ("post", lgkm0, 0)]}
    return c

KNAME = "sequential_preLN__sliding_local_dilated__dense_activation_silu__prompt_kernel"
def multi(path, stamps=False, all={}, p1={}, p2={}, p3={}, p4={}):
    d = dict(stamps=stamps); d.update(all)
    cp = lambda s, e: [(s, e, 100, 16384)]
    c1 = cfg_p1(kidx=0, **{**d, "codepf": cp("p1_epi", "k2_kernel_last"), **p1}); c2 = cfg_p2(kidx=1, **{**d, "codepf": cp("p2_epi", "k3_kernel_last"), **p2})
    c3 = cfg_p3(kidx=2, **{**d, "codepf": cp("p3_epi", "k4_kernel_last"), **p3}); c4 = cfg_p4(kidx=3, **{**d, **p4})
    c1.loader_post = k1_post_f(auxbase(c1), n_tail)
    ks = [("k1_kernel", emit_kernel("k1_kernel", [c1]), 256, 168, 163840), ("k2_kernel", emit_kernel("k2_kernel", [c2]), 256, 168, 163840),
          ("k3_kernel", emit_kernel("k3_kernel", [c3]), 256, 168, auxbase(c3) + 2048), ("k4_kernel", emit_kernel("k4_kernel", [c4]), 256, 168, 163840)]
    build(ks, path)

def prewrite(a, c):
    for (off, nb) in c.prew:
        srd(a, S_SRDP, "ws" if off >= 0 else "out", max(off, 0), nb)
        per = nb // 1024
        a("s_lshl_b32 s%d, s2, 2" % S_T0); a("s_add_u32 s%d, s%d, s%d" % (S_T0, S_T0, S_LW)); a("s_mul_i32 s%d, s%d, %d" % (S_T0, S_T0, per))
        a("v_lshlrev_b32 v104, 4, v1")
        for r in range(108, 112): a("v_mov_b32 v%d, 0" % r)
        for i in range(per // 1024):
            a("buffer_store_dwordx4 v[108:111], v104, s[%d:%d], s%d offen sc1" % (S_SRDP, S_SRDP + 3, S_T0))
            a("s_add_u32 s%d, s%d, 1024" % (S_T0, S_T0))

def fused(path, stamps=False, all={}, p1={}, p2={}, p3={}, p4={}, nocode=False, prew=False):
    d = dict(stamps=stamps, fused=True, xbar=True); d.update(all)
    if nocode:
        p1 = dict(p1, codepf=[]); p2 = dict(p2, codepf=[]); p3 = dict(p3, codepf=[])
    c1 = cfg_p1(kidx=0, sig=0, **{**d, "codepf": [("p1_epi", "p3_c", 100, 8192), ("p1_l", "p3_l", 100, 16384)], **p1})
    c2 = cfg_p2(kidx=1, sig=1, fla="sc1", **{**d, "codepf": [("p2_epi", "p4_c", 100, 8192), ("p2_l", "p4_l", 100, 8192)], **p2})
    c3 = cfg_p3(kidx=2, sig=2, fla="sc1", **{**d, "codepf": [("p3_epi", KNAME + "_loader", 100, 8192), ("p3_l", KNAME + "_last", 100, 8192)], **p3})
    c4 = cfg_p4(kidx=3, fla="sc1", flr="sc1", **{**d, "xbar": False, **p4})
    c2.dep = lambda a, c: seam_wait(a, c, c1, 0)
    c3.dep = lambda a, c: seam_wait(a, c, c2, 1)
    c4.dep = lambda a, c: seam_wait(a, c, c3, 2)
    c2.loader_wait = k1_post_f(auxbase(c1), lambda c: 2 * 4)
    if prew:
        k1p = c2.loader_wait
        c2.prew = [(WS_H1, 14 << 20)]
        def lw(a, c):
            k1p(a, c); prewrite(a, c)
        c2.loader_wait = lw
    c2.special[1] = [("post", lw0_cnt(32), 0)]
    if c3.share: c4.loader_wait = lambda a, c: a("s_waitcnt vmcnt(8)")
    build([(KNAME, emit_kernel(KNAME, [c1, c2, c3, c4]), 256, 168, 163840)], path)
```

```python
import g7
from k7 import *
import k7
fused("f26_base.s", p4=dict(stfl="nt"))
fused("f26_nocode.s", p4=dict(stfl="nt"), nocode=True)
fused("f26_nopf.s", p4=dict(stfl="nt"), p1=dict(tail_pf=[]), p3=dict(tail_pf=[]))
fused("f26_prew.s", p4=dict(stfl="nt"), prew=True)
fused("f26_cls.s", p4=dict(stfl="nt"), p1=dict(order="class"))
sh = 200 << 20
for m in (g7, k7):
    for n in ("WS_O", "WS_H", "WS_H1", "WS_STATS", "WS_RSP", "WS_CSP", "WS_CS1", "WS_FLAG"):
        setattr(m, n, getattr(m, n) + sh)
fused("f26_wsend.s", p4=dict(stfl="nt"))
```

```python
from asmlib import *
import math, struct
def f2u(x): return struct.unpack("<I", struct.pack("<f", x))[0]
LOG2E = 1.4426950408889634

WS_O = 4 << 20; WS_H = 8 << 20; WS_H1 = 12 << 20
WS_STATS = 28 << 20
WS_RSP = 29 << 20
WS_CSP = 30 << 20
WS_CS1 = 31 << 20
WS_FLAG = 32 << 20
WS_STAMP = 0xF000000

S_SRDA = 4; S_SRDW = 8; S_SRDO = 12; S_SRDX = 16; S_SRDY = 20
S_WAVE = 24; S_MT = 25; S_NT = 26; S_WR = 27; S_WC = 28
S_SOFA = 29; S_SOFW = 30; S_CNT = 31; S_SLOT = 32; S_DELTA = 33
S_T0 = 34; S_T1 = 35; S_T2 = 36; S_T3 = 37; S_SOFH = 38; S_IR = 39
S_BA = 40; S_BW = 41; S_BH = 42; S_PHI = 43
S_KH = 3
S_STAMP = 50
S_IC = 54; S_LW = 55
S_SRDS = 56
S_EXEC = 60
S_FIT = 62; S_DN = 63
S_G = 64
S_SRDP = 72
PTR = dict(x=76, wqkv=78, wo=80, w1=84, w2=86, out=88, dbg=90, ws=92)
S_KS = 94; S_WA = 95; S_WW = 96; S_TAB = 100; S_HM = 27; S_SIG = 28

class Cfg:
    def __init__(self, **kw):
        self.halo = 0; self.NS = 3; self.bps = 2; self.K = 1024
        self.nodma = self.nomfma = self.noread = False
        self.stamps = False; self.kidx = 0; self.trace = False
        self.xa = 8; self.xb = 4; self.splitk = False
        self.fla = ""; self.flw = ""
        self.prio = 3; self.lprio = 2
        self.rpm = 1; self.read_start = 0
        self.ramp = None
        self.stfl = "sc1"
        self.rot = False; self.perm = 0; self.permoff = 2; self.permr = 1; self.permc = 1
        self.special = {}
        self.fused = False; self.dep = None; self.sig = None
        self.flagiter = None
        self.wres = 0; self.ablk = 0; self.flagshift = 4; self.pollsleep = 2; self.ldsflag = 124000; self.xbar = False; self.sub = 1; self.order = None; self.ones = False
        self.__dict__.update(kw)
    def hook(self, name, *args):
        f = getattr(self, name, None)
        if f: return f(*args)

def srd(a, d, ptr, off, size):
    p = PTR[ptr]
    if off:
        a("s_add_u32 s%d, s%d, 0x%x" % (d, p, off)); a("s_addc_u32 s%d, s%d, 0" % (d + 1, p + 1))
    else:
        a("s_mov_b32 s%d, s%d" % (d, p)); a("s_mov_b32 s%d, s%d" % (d + 1, p + 1))
    a("s_mov_b32 s%d, 0x%x" % (d + 2, size)); a("s_mov_b32 s%d, 0x20000" % (d + 3))

def stamp_w0(a, c, idx):
    t = getattr(c, 'stampv', 128)
    if getattr(c, "dbgstamp", None) is not None:
        if idx == 1 or (idx == 0 and c.kidx): return
        word = 1 + (0 if idx == 0 else 3 * c.kidx + idx - 1)
        L = a.newlabel("Lst")
        a("s_lshl_b32 s%d, s2, 3" % S_STAMP); a("s_add_u32 s%d, s%d, s%d" % (S_STAMP, S_STAMP, S_WAVE))
        a("s_cmp_lg_u32 s%d, %d" % (S_STAMP, 8 * c.dbgstamp)); a("s_cbranch_scc1 %s" % L)
        a("s_memrealtime s[%d:%d]" % (S_STAMP, S_STAMP + 1)); a("s_waitcnt lgkmcnt(0)")
        srd(a, S_SRDS, "dbg", 0, 256)
        a("v_mov_b32 v%d, s%d" % (t, S_STAMP)); a("v_mov_b32 v%d, %d" % (t + 1, 4 * word))
        a("s_mov_b64 exec, 1")
        a("buffer_store_dword v%d, v%d, s[%d:%d], 0 offen sc1" % (t, t + 1, S_SRDS, S_SRDS + 3))
        a("s_mov_b64 exec, -1")
        a.label(L)
        return
    if not c.stamps: return
    L = a.newlabel("Lst")
    a("s_cmp_lg_u32 s%d, 0" % S_WAVE); a("s_cbranch_scc1 %s" % L)
    a("s_memrealtime s[%d:%d]" % (S_STAMP, S_STAMP + 1)); a("s_memtime s[%d:%d]" % (S_STAMP + 2, S_STAMP + 3))
    a("s_waitcnt lgkmcnt(0)")
    for i in range(4): a("v_mov_b32 v%d, s%d" % (t + i, S_STAMP + i))
    a("s_lshl_b32 s%d, s2, 7" % S_STAMP); a("s_add_u32 s%d, s%d, %d" % (S_STAMP, S_STAMP, c.kidx * 512 * 128 + idx * 8))
    a("v_mov_b32 v%d, s%d" % (t + 4, S_STAMP))
    a("s_mov_b64 exec, 1")
    a("buffer_store_dwordx2 v[%d:%d], v%d, s[%d:%d], 0 offen" % (t, t + 1, t + 4, S_SRDS, S_SRDS + 3))
    a("buffer_store_dwordx2 v[%d:%d], v%d, s[%d:%d], 0 offen offset:64" % (t + 2, t + 3, t + 4, S_SRDS, S_SRDS + 3))
    a("s_mov_b64 exec, -1")
    a.label(L)

def trace(a, c):
    if not c.trace: return
    a("s_memtime s[98:99]"); a("s_waitcnt lgkmcnt(0)")
    a("s_mov_b32 m0, s97"); a("v_writelane_b32 v120, s98, m0"); a("s_add_u32 s97, s97, 1"); a("s_min_u32 s97, s97, 63")

def tile_map(a, c):
    xa, xb = c.xa, c.xb
    la, lb = int(math.log2(xa)), int(math.log2(xb))
    a("s_and_b32 s%d, s2, 7" % S_T0); a("s_lshr_b32 s%d, s2, 3" % S_T1)
    a("s_lshr_b32 s%d, s%d, %d" % (S_IR, S_T1, lb)); a("s_and_b32 s%d, s%d, %d" % (S_IC, S_T1, xb - 1))
    if c.splitk and c.samexcd:
        a("s_and_b32 s%d, s%d, 1" % (S_KH, S_T1)); a("s_lshr_b32 s%d, s%d, 3" % (S_IR, S_T1)); a("s_bfe_u32 s%d, s%d, 0x20001" % (S_IC, S_T1))
        a("s_lshr_b32 s%d, s%d, 1" % (S_MT, S_T0)); a("s_lshl2_add_u32 s%d, s%d, s%d" % (S_MT, S_MT, S_IR))
        a("s_and_b32 s%d, s%d, 1" % (S_NT, S_T0)); a("s_lshl2_add_u32 s%d, s%d, s%d" % (S_NT, S_NT, S_IC))
        return
    if c.splitk:
        a("s_and_b32 s%d, s%d, 1" % (S_KH, S_T0)); a("s_lshr_b32 s%d, s%d, 1" % (S_MT, S_T0)); a("s_lshl2_add_u32 s%d, s%d, s%d" % (S_MT, S_MT, S_IR))
        a("s_mov_b32 s%d, s%d" % (S_NT, S_IC))
        return
    gcols = 16 // xb; lg = int(math.log2(gcols))
    a("s_lshr_b32 s%d, s%d, %d" % (S_T2, S_T0, lg)); a("s_and_b32 s%d, s%d, %d" % (S_T3, S_T0, gcols - 1))
    a("s_lshl_b32 s%d, s%d, %d" % (S_MT, S_T2, la)); a("s_lshl_b32 s%d, s%d, %d" % (S_NT, S_T3, lb))
    a("s_add_u32 s%d, s%d, s%d" % (S_MT, S_MT, S_IR)); a("s_add_u32 s%d, s%d, s%d" % (S_NT, S_NT, S_IC))

def abytes(c): return (128 + c.halo) * 128
def wbytes(c): return sum(64 * w * 2 for w in c.segw)
def subbytes(c): return abytes(c) + wbytes(c)
def slotbytes(c): return abytes(c) if c.wres else c.sub * subbytes(c)
def abase(c): return c.wres * wbytes(c)
def nst(c): return c.K // 64 // c.sub
def auxbase(c): return c.NS * slotbytes(c)
def segoffs(c):
    o = 0 if c.wres else abytes(c); r = []
    for w in c.segw:
        r.append(o); o += 64 * w * 2
    return r

def record(a, fn, c):
    t = Asm(); t.lbl = a.lbl
    fn(t, c); a.lbl = t.lbl
    groups = []; cur = None
    for l in t.lines:
        s = l.strip()
        if cur is not None:
            cur.append(s)
            if s in ("s_mov_b32 exec_hi, -1", "s_mov_b64 exec, -1"): groups.append(cur); cur = None
        elif s.startswith("s_mov_b32 exec") or s.startswith("s_mov_b64 exec"):
            cur = [s]
        elif (s.startswith("s_addc") or s.startswith("s_cselect") or s.startswith("s_subb")) and groups:
            groups[-1].append(s)
        else:
            groups.append([s])
    assert cur is None
    return groups

LDSFLAG = 163840 - 4 - 16384 - 2048 + 0
def seam_wait(a, c, prev, phase):
    L1 = a.newlabel("Lsw")
    srd(a, S_SRDP, "ws", WS_FLAG, 16384)
    a("v_mov_b32 v110, 0"); a("v_mov_b32 v111, 1")
    a("s_lshl_b32 s%d, s%d, 8" % (S_T0, S_MT)); a("s_add_u32 s%d, s%d, %d" % (S_T0, S_T0, phase * 4096))
    if c.splitk:
        a("s_lshl_b32 s%d, s%d, %d" % (S_T1, S_KH, 3 + c.flagshift)); a("s_add_u32 s%d, s%d, s%d" % (S_T0, S_T0, S_T1))
    a("v_and_b32 v112, %d, v1" % (7 if c.splitk else 15)); a("v_lshlrev_b32 v112, %d, v112" % c.flagshift)
    a("s_cmp_lg_u32 s%d, 0" % S_LW)
    a("s_barrier")
    a("s_cbranch_scc1 %s" % L1)
    a("s_mov_b64 exec, 1")
    a("buffer_store_dword v111, v110, s[%d:%d], s%d offen sc1" % (S_SRDP, S_SRDP + 3, S_SIG))
    a("s_mov_b64 exec, -1")
    trace(a, c)
    spin(a, "v111", "v112", S_T0, c.pollsleep)
    a.label(L1)
    a("s_barrier")

SPIN = 1 << 18
def spin(a, vd, va, soff, sleep=0):
    L = a.newlabel("Lpf"); Le = a.newlabel("Lpe")
    a("s_mov_b32 s%d, %d" % (S_DN, SPIN))
    a.label(L)
    if sleep: a("s_sleep %d" % sleep)
    a("buffer_load_dword %s, %s, s[%d:%d], s%d offen sc1" % (vd, va, S_SRDP, S_SRDP + 3, soff))
    a("s_sub_u32 s%d, s%d, 1" % (S_DN, S_DN))
    a("s_cbranch_scc1 %s" % Le)
    a("s_waitcnt vmcnt(0)")
    a("v_cmp_eq_u32 vcc, 0, %s" % vd)
    a("s_cbranch_vccnz %s" % L)
    a.label(Le)

def blk_pattern(a, d):
    a("v_xor_b32 v5, v4, v3"); a("v_lshrrev_b32 v%d, 2, v5" % d); a("v_lshlrev_b32 v%d, 13, v%d" % (d, d)); a("v_and_b32 v5, 3, v5")
    a("v_lshl_add_u32 v%d, v5, 4, v%d" % (d, d)); a("v_lshl_add_u32 v%d, v2, 6, v%d" % (d, d))
    a("v_xor_b32 v%d, 0x2000, v%d" % (d + 1, d)); a("v_add_u32 v%d, %d, v%d" % (d + 1, 4096 - 512, d + 1))
    a("v_add_u32 v%d, %d, v%d" % (d + 2, 4096 - 1024, d)); a("v_add_u32 v%d, -1024, v%d" % (d + 3, d + 1)); a("v_add_u32 v%d, 4096, v%d" % (d, d))

def loader_setup(a, c):
    W = S_LW
    dmas = []
    if c.ablk:
        blk_pattern(a, 8)
    else:
        a("v_xor_b32 v5, v4, v3"); a("v_mul_u32_u24 v6, %d, v2" % c.lda); a("v_lshl_add_u32 v8, v5, 4, v6")
        a("v_xor_b32 v9, 64, v8"); a("v_add_u32 v9, %d, v9" % (8 * c.lda - 1024))
        a("v_add_u32 v10, %d, v8" % (16 * c.lda - 2048)); a("v_add_u32 v11, %d, v9" % (16 * c.lda - 2048))
    for j in range(4):
        dmas.append(dict(t="A", v=8 + j, srd=S_SRDA, soff=S_SOFA, m0c=abase(c) + c.halo * 128, m0w=4096, imm=1024 * j, half=False, fl=c.fla))
    vn = 12
    if c.ablk:
        a("s_mul_i32 s%d, s%d, %d" % (S_SOFA, S_MT, c.ablk * 8192)); a("s_lshl_b32 s%d, s%d, 11" % (S_T0, W)); a("s_add_u32 s%d, s%d, s%d" % (S_SOFA, S_SOFA, S_T0))
    else:
        a("s_lshl_b32 s%d, s%d, 2" % (S_T0, S_MT)); a("s_add_u32 s%d, s%d, s%d" % (S_T0, S_T0, W))
        a("s_mul_i32 s%d, s%d, %d" % (S_SOFA, S_T0, 32 * c.lda))
    if c.halo:
        a("s_lshl_b32 s%d, s%d, 1" % (S_T1, W))
        a("v_add_u32 v5, s%d, v4" % S_T1); a("v_xor_b32 v5, v5, v3"); a("v_and_b32 v5, 7, v5")
        a("v_lshl_add_u32 v%d, v5, 4, v6" % vn)
        a("s_lshl_b32 s%d, s%d, 5" % (S_T0, S_MT)); a("s_add_u32 s%d, s%d, s%d" % (S_T0, S_T0, W))
        a("s_sub_i32 s%d, s%d, 4" % (S_T0, S_T0)); a("s_max_i32 s%d, s%d, 0" % (S_T0, S_T0))
        a("s_mul_i32 s%d, s%d, %d" % (S_SOFH, S_T0, 4 * c.lda))
        dmas.append(dict(t="A", v=vn, srd=S_SRDA, soff=S_SOFH, m0c=0, m0w=512, imm=0, half=True, fl=c.fla))
        vn += 1
    a("v_and_b32 v5, 1, v4"); a("v_lshlrev_b32 v5, 1, v5"); a("v_xor_b32 v5, v5, v3")
    a("v_mul_u32_u24 v6, %d, v2" % c.ldb); a("v_lshl_add_u32 v6, v5, 4, v6")
    a("v_xor_b32 v7, 64, v6"); a("v_add_u32 v7, %d, v7" % (8 * c.ldb - 1024))
    if getattr(c, "oddalign", False):
        a("s_and_b32 s%d, s%d, 1" % (S_T1, S_NT)); a("s_lshl_b32 s%d, s%d, 6" % (S_T1, S_T1))
        a("v_add_u32 v6, s%d, v6" % S_T1); a("v_add_u32 v7, s%d, v7" % S_T1)
    so = segoffs(c)
    for s, w in enumerate(c.segw):
        if w == 64:
            for j in range(2):
                if c.col0[s] == 0: v = 6 + j
                else:
                    v = vn; vn += 1
                    a("v_add_u32 v%d, %d, v%d" % (v, c.col0[s] * 2, 6 + j))
                dmas.append(dict(t="W", v=v, srd=S_SRDW, soff=S_SOFW, m0c=so[s], m0w=2048, imm=1024 * j, half=False, fl=c.flw))
        else:
            a("v_lshrrev_b32 v5, 2, v1"); a("v_mul_u32_u24 v5, %d, v5" % c.ldb)
            a("v_lshrrev_b32 v%d, 5, v1" % vn); a("v_lshlrev_b32 v%d, 1, v%d" % (vn, vn)); a("v_xor_b32 v%d, v%d, v1" % (vn, vn))
            a("v_and_b32 v%d, 3, v%d" % (vn, vn)); a("v_lshl_add_u32 v%d, v%d, 4, v5" % (vn, vn))
            if getattr(c, "oddalign", False):
                a("s_bitcmp1_b32 s%d, 0" % S_NT); a("s_cselect_b32 s%d, 0, %d" % (S_T1, c.col0[s] * 2))
                a("v_add_u32 v%d, s%d, v%d" % (vn, S_T1, vn))
            else:
                a("v_add_u32 v%d, %d, v%d" % (vn, c.col0[s] * 2, vn))
            dmas.append(dict(t="W", v=vn, srd=S_SRDW, soff=S_SOFW, m0c=so[s], m0w=1024, imm=0, half=False, fl=c.flw))
            vn += 1
    a("s_mul_i32 s%d, s%d, %d" % (S_SOFW, W, 16 * c.ldb))
    a("s_mul_i32 s%d, s%d, %d" % (S_T0, S_NT, c.cstep * 2)); a("s_add_u32 s%d, s%d, s%d" % (S_SOFW, S_SOFW, S_T0))
    if c.splitk:
        a("s_mul_i32 s%d, s%d, %d" % (S_T0, S_KH, c.K * 256 if c.ablk else c.K * 2)); a("s_add_u32 s%d, s%d, s%d" % (S_SOFA, S_SOFA, S_T0))
        a("s_mul_i32 s%d, s%d, %d" % (S_T0, S_KH, c.K * c.ldb)); a("s_add_u32 s%d, s%d, s%d" % (S_SOFW, S_SOFW, S_T0))
    if c.sub == 2:
        ex = []
        for d in dmas:
            e = dict(d); e["v"] = vn; vn += 1; e["m0c"] = d["m0c"] + subbytes(c)
            a("v_add_u32 v%d, %d, v%d" % (e["v"], (16384 if c.ablk else 128) if d["t"] == "A" else 64 * c.ldb, d["v"]))
            ex.append(e)
        dmas += ex
    assert vn <= 24
    groups = []
    for d in dmas:
        key = (d["m0c"], d["m0w"])
        if key not in groups: groups.append(key)
        d["g"] = groups.index(key)
    assert len(groups) <= 6
    for g, (m0c, m0w) in enumerate(groups):
        a("s_mul_i32 s%d, s%d, %d" % (S_G + g, W, m0w))
        if m0c: a("s_add_u32 s%d, s%d, %d" % (S_G + g, S_G + g, m0c))
    a("s_mov_b32 s%d, s%d" % (S_BA, S_SOFA)); a("s_mov_b32 s%d, s%d" % (S_BW, S_SOFW))
    if c.halo:
        a("s_mov_b32 s%d, s%d" % (S_BH, S_SOFH))
        if c.ones:
            a("s_cmp_eq_u32 s%d, 0" % W); a("s_cselect_b32 s%d, 0xffffff00, -1" % S_HM)
    if c.order == "rot": a("s_add_u32 s%d, s%d, s%d" % (S_PHI, S_MT, S_NT))
    elif c.order == "class":
        a("s_add_u32 s%d, s%d, s%d" % (S_PHI, S_IR, S_IC)); a("s_and_b32 s%d, s%d, 3" % (S_PHI, S_PHI))
        for cl in range(4):
            tb = class_table(nst(c), c.permoff, cl)
            if cl == 0:
                a("s_mov_b32 s%d, 0x%x" % (S_TAB, tb & 0xffffffff)); a("s_mov_b32 s%d, 0x%x" % (S_TAB + 1, tb >> 32))
            else:
                a("s_cmp_eq_u32 s%d, %d" % (S_PHI, cl))
                a("s_cselect_b32 s%d, 0x%x, s%d" % (S_TAB, tb & 0xffffffff, S_TAB)); a("s_cselect_b32 s%d, 0x%x, s%d" % (S_TAB + 1, tb >> 32, S_TAB + 1))
    c.dmas = dmas; c.ndma = len(dmas)

def class_table(N, po, cl):
    M = N - po
    key = lambda X: X - 4.5 if (X % 4 == cl and X >= 4) else X
    seq = list(range(po)) + [po + X for X in sorted(range(M), key=key)]
    tb = 0
    for p, s in enumerate(seq):
        code = {-1: 0, 0: 1, 3: 2, 4: 3}[s - p]
        tb |= code << (2 * p)
    assert sorted(seq) == list(range(N)) and tb < (1 << 64)
    return tb

def loader_run(a, c):
    NS = c.NS; NST = nst(c); SL = slotbytes(c); dmas = c.dmas; n = len(dmas)
    ka, kw = (16384 if c.ablk else 128) * c.sub, 64 * c.sub * c.ldb
    def head(lock=False):
        if c.order == "rot":
            a("s_add_u32 s%d, s%d, s%d" % (S_WA, S_KS, S_PHI)); a("s_and_b32 s%d, s%d, %d" % (S_WA, S_WA, NST - 1))
        elif c.order == "class" and not lock:
            a("s_and_b32 s%d, s%d, 1" % (S_WA, S_TAB)); a("s_and_b32 s%d, s%d, 2" % (S_WW, S_TAB)); a("s_lshl1_add_u32 s%d, s%d, s%d" % (S_WA, S_WW, S_WA))
            a("s_add_u32 s%d, s%d, s%d" % (S_WA, S_WA, S_KS)); a("s_sub_u32 s%d, s%d, 1" % (S_WA, S_WA))
            a("s_lshr_b64 s[%d:%d], s[%d:%d], 2" % (S_TAB, S_TAB + 1, S_TAB, S_TAB + 1))
        else:
            a("s_mov_b32 s%d, s%d" % (S_WA, S_KS))
        a("s_mul_i32 s%d, s%d, %d" % (S_WW, S_WA, kw)); a("s_mul_i32 s%d, s%d, %d" % (S_WA, S_WA, ka))
        a("s_add_u32 s%d, s%d, s%d" % (S_SOFA, S_BA, S_WA)); a("s_add_u32 s%d, s%d, s%d" % (S_SOFW, S_BW, S_WW))
        if c.halo: a("s_add_u32 s%d, s%d, s%d" % (S_SOFH, S_BH, S_WA))
        a("s_add_u32 s%d, s%d, 1" % (S_KS, S_KS))
    def tail():
        a("s_add_u32 s%d, s%d, %d" % (S_SLOT, S_SLOT, SL)); a("s_cmp_eq_u32 s%d, %d" % (S_SLOT, NS * SL)); a("s_cselect_b32 s%d, 0, s%d" % (S_SLOT, S_SLOT))
    def setm0(d): a("s_add_u32 m0, s%d, s%d" % (S_SLOT, S_G + d["g"]))
    def one(d, cur):
        if c.nodma: return d["g"]
        if d["g"] != cur:
            setm0(d)
            if not d["half"]: a("s_nop 0")
        if d["half"]:
            a("s_mov_b32 exec_hi, 0")
            if c.ones: a("s_mov_b32 exec_lo, s%d" % S_HM)
        a("buffer_load_dwordx4 v%d, s[%d:%d], s%d offen offset:%d %s lds" % (d["v"], d["srd"], d["srd"] + 3, d["soff"], d["imm"], d["fl"]))
        if d["half"]: a("s_mov_b64 exec, -1")
        return d["g"]
    def emit(i0, i1, fill=(), m0ok=True):
        fill = list(fill); k = i1 - i0
        cur = dmas[i0 % n]["g"] if m0ok else None
        for t, i in enumerate(range(i0, i1)):
            j = i % n
            cur = one(dmas[j], cur)
            if j == n - 1:
                tail(); head(); cur = None
            take = -(-len(fill) // (k - t))
            for g in fill[:take]:
                for l in g: a(l)
            fill = fill[take:]
        if dmas[i1 % n]["g"] != cur: setm0(dmas[i1 % n])
    ops = []
    a("s_mov_b32 s%d, 0" % S_SLOT); a("s_mov_b32 s%d, 0" % S_KS)
    if c.wres:
        wd = [d for d in dmas if d["t"] == "W"]
        dmas[:] = [d for d in dmas if d["t"] == "A"]; n = len(dmas)
        WB = wbytes(c)
        a("s_mov_b64 s[48:49], s[%d:%d]" % (S_TAB, S_TAB + 1))
        L = a.newlabel("Lwr"); a("s_mov_b32 s%d, %d" % (S_CNT, c.wres)); a.label(L)
        head(); cur = None
        for d in wd: cur = one(d, cur)
        a("s_add_u32 s%d, s%d, %d" % (S_SLOT, S_SLOT, WB))
        a("s_sub_u32 s%d, s%d, 1" % (S_CNT, S_CNT)); a("s_cmp_lg_u32 s%d, 0" % S_CNT); a("s_cbranch_scc1 %s" % L)
        for j in range(NST - c.wres):
            head(); a("s_mov_b32 s%d, s%d" % (16 + j, S_SOFW))
            def wlate(a, c, j=j):
                a("s_add_u32 m0, s%d, %d" % (S_G + wd[0]["g"], j * WB)); a("s_nop 0")
                for d in wd: a("buffer_load_dwordx4 v%d, s[%d:%d], s%d offen offset:%d %s lds" % (d["v"], d["srd"], d["srd"] + 3, 16 + j, d["imm"], d["fl"]))
            c.special.setdefault(j + 1, []).append(("post", wlate, len(wd)))
        a("s_mov_b64 s[%d:%d], s[48:49]" % (S_TAB, S_TAB + 1))
        c.hook("loader_wait", a, c)
        if c.dep: c.dep(a, c)
        trace(a, c)
        a("s_mov_b32 s%d, 0" % S_SLOT); a("s_mov_b32 s%d, 0" % S_KS)
        ramp = [NS * n]; pos = ramp[0]
        head(); emit(0, pos, m0ok=False)
        ops = [(i // n, 1) for i in range(pos)]
    elif c.dep is None:
        ramp = c.ramp or [2 * n]
        pos = ramp[0]
        head(); emit(0, pos, m0ok=False)
        ops = [(i // n, 1) for i in range(pos)]
    else:
        P = 2
        for typ in ("W", "A"):
            if typ == "A":
                c.hook("loader_wait", a, c)
                c.dep(a, c)
                trace(a, c)
                a("s_mov_b32 s%d, 0" % S_SLOT); a("s_mov_b32 s%d, 0" % S_KS)
            for st in range(P):
                head(lock=(typ == "W")); cur = None
                for d in dmas:
                    if d["t"] == typ:
                        cur = one(d, cur)
                        if typ == "A": ops.append((st, 1))
                tail()
        head(); setm0(dmas[0])
        pos = P * n; ramp = [pos] + list(getattr(c, 'dramp', []))
    m0dirty = False
    for (when, fn, nvm) in c.special.get(-1, []):
        fn(a, c); ops.append((None, nvm))
    plan = []
    for s in range(NST):
        idx = max(i for i, (st, k) in enumerate(ops) if st == s)
        w = sum(k for st, k in ops[idx + 1:])
        limit = min((NS - 1 if s == 0 else s - 1 + NS) + 1, NST) * n
        want = ramp[s + 1] if s + 1 < len(ramp) else (n if NS == 3 else 2 * n)
        k = max(0, min(want, limit - pos))
        sp = c.special.get(s, [])
        for (when, fn, nvm) in sp:
            if when != "post": ops.append((None, nvm))
        for i in range(pos, pos + k): ops.append((i // n, 1))
        for (when, fn, nvm) in sp:
            if when == "post": ops.append((None, nvm))
        plan.append((min(w, 63), pos % n, k, s if sp else None))
        pos += k
    i = 0
    while i < NST:
        j = i
        while j + 1 < NST and plan[j + 1] == plan[i] and plan[i][2] % n == 0: j += 1
        w, p0, k, sp = plan[i]
        def body(loopctl=()):
            trace(a, c)
            a("s_waitcnt vmcnt(%d)" % w)
            trace(a, c)
            a("s_barrier")
            trace(a, c)
            acts = c.special.get(sp, [])
            for (when, fn, nvm) in acts:
                if when == "pre": fn(a, c)
            fill = []
            for (when, fn, nvm) in acts:
                if when == "weave": fill += record(a, fn, c)
            if k: emit(p0, p0 + k, fill, m0ok=not (c.trace or c.wres))
            else:
                for g in fill:
                    for l in g: a(l)
            for (when, fn, nvm) in acts:
                if when == "post": fn(a, c)
        if j > i:
            L = a.newlabel("Lld"); a("s_mov_b32 s%d, %d" % (S_CNT, j - i + 1)); a.label(L)
            body()
            a("s_sub_u32 s%d, s%d, 1" % (S_CNT, S_CNT)); a("s_cmp_lg_u32 s%d, 0" % S_CNT); a("s_cbranch_scc1 %s" % L)
        else: body()
        i = j + 1
    trace(a, c)
    a("s_barrier")
    trace(a, c)

def trace_dump(a, c):
    if not c.trace: return
    trace(a, c)
    srd(a, S_SRDS, "ws", WS_STAMP + (1 << 20), 1 << 20)
    a("s_lshl_b32 s97, s2, 2"); a("s_add_u32 s97, s97, s%d" % S_LW); a("s_lshl_b32 s97, s97, 8"); a("s_add_u32 s97, s97, %d" % (c.kidx << 18))
    a("v_lshlrev_b32 v121, 2, v1")
    a("buffer_store_dword v120, v121, s[%d:%d], s97 offen" % (S_SRDS, S_SRDS + 3))
    a("s_mov_b32 s97, 0")

V_ADDR = 2
V_ACC = 16

def compute_setup(a, c):
    a("v_and_b32 v16, 15, v1"); a("v_lshrrev_b32 v17, 4, v1")
    a("v_bfe_u32 v18, v16, 1, 3"); a("v_xor_b32 v18, v18, v17"); a("v_lshlrev_b32 v18, 4, v18")
    a("v_lshl_add_u32 v19, v16, 7, v18")
    for i, fn in enumerate(c.aregs):
        fn(a, S_T0)
        if c.wres: a("s_add_u32 s%d, s%d, %d" % (S_T0, S_T0, abase(c)))
        a("v_add_u32 v%d, s%d, v19" % (V_ADDR + 2 * i, S_T0)); a("v_xor_b32 v%d, 64, v%d" % (V_ADDR + 2 * i + 1, V_ADDR + 2 * i))
    nA = 2 * len(c.aregs)
    a("v_bfe_u32 v18, v1, 2, 2"); a("v_lshl_add_u32 v18, v17, 3, v18")
    a("v_bfe_u32 v19, v1, 1, 1"); a("v_and_b32 v20, 1, v1"); a("v_lshlrev_b32 v20, 3, v20")
    a("v_bfe_u32 v21, v1, 3, 2"); a("v_lshlrev_b32 v21, 1, v21"); a("v_xor_b32 v21, v21, v19")
    a("v_lshl_add_u32 v21, v21, 4, v20"); a("v_lshl_add_u32 v21, v18, 7, v21")
    if 32 in c.segw:
        a("v_bfe_u32 v17, v1, 4, 1"); a("v_lshlrev_b32 v17, 1, v17"); a("v_xor_b32 v17, v17, v19")
        a("v_lshl_add_u32 v17, v17, 4, v20"); a("v_lshl_add_u32 v17, v18, 6, v17")
    so = segoffs(c)
    for i, (seg, segwc, pc, pwc) in enumerate(c.wregs):
        src = 21 if c.segw[seg] == 64 else 17
        d = V_ADDR + nA + i
        assert d < 16
        if callable(pwc):
            pwc(a, S_T0); a("v_xor_b32 v%d, s%d, v%d" % (d, S_T0, src))
        elif pwc:
            a("s_mul_i32 s%d, s%d, %d" % (S_T0, S_WC, pwc * 32))
            if pc: a("s_add_u32 s%d, s%d, %d" % (S_T0, S_T0, pc * 32))
            a("v_xor_b32 v%d, s%d, v%d" % (d, S_T0, src))
        else: a("v_xor_b32 v%d, %d, v%d" % (d, pc * 32, src))
        if segwc:
            a("s_mul_i32 s%d, s%d, %d" % (S_T0, S_WC, segwc * 8192)); a("s_add_u32 s%d, s%d, %d" % (S_T0, S_T0, so[seg]))
            a("v_add_u32 v%d, s%d, v%d" % (d, S_T0, d))
        else: a("v_add_u32 v%d, %d, v%d" % (d, so[seg], d))
    c.nA = nA; c.naddr = nA + len(c.wregs)

def frag_regs(c):
    MB = len(c.mblk); NB = len(c.nblk); kpb = 2 if c.wres else c.sub
    per = (MB + NB) * 4 * kpb
    return (lambda s, kk, mb: s * per + (kk * (MB + NB) + mb) * 4), (lambda s, kk, nb: s * per + (kk * (MB + NB) + MB + nb) * 4), 2 * per

def fr(i, n):
    return ar(i, n) if i < 88 else vr(140 + i - 88, n)

def reads(c, s, blk):
    fa, fw, _ = frag_regs(c); out = []
    lst = [(0, 0, 0), (1, 1, 0)] if c.wres else [(0, blk, 0)] if c.sub == 1 else [(0, 0, blk * subbytes(c)), (1, 1, blk * subbytes(c))]
    for kk, kabs, so in lst:
        for mb, (ap, row) in enumerate(c.mblk):
            out.append("ds_read_b128 %s, v%d offset:%d" % (fr(fa(s, kk, mb), 4), V_ADDR + 2 * ap + kabs, so + row * 128))
        for nb, (wreg, immseg, rs) in enumerate(c.nblk):
            for h in range(2):
                out.append("ds_read_b64_tr_b16 %s, v%d offset:%d" % (fr(fw(s, kk, nb) + 2 * h, 2), V_ADDR + c.nA + wreg, so + immseg + (32 * kabs + 4 * h) * rs))
    return [] if c.noread else out

def mfmas(c, s):
    fa, fw, _ = frag_regs(c); out = []
    for kk in range(2 if c.wres else c.sub):
        for i, (mb, nb, swap) in enumerate(c.mf):
            acc = vr(V_ACC + 4 * i, 4)
            A, B = fr(fw(s, kk, nb), 4), fr(fa(s, kk, mb), 4)
            if swap: A, B = B, A
            out.append("v_mfma_f32_16x16x32_bf16 %s, %s, %s, %s" % (acc, A, B, acc))
    return [] if c.nomfma else out

def weave(main, first, rest, rpm, start=0):
    out = []; q = list(first); r = list(rest)
    for i, m in enumerate(main):
        out.append(m)
        if i < start: continue
        if q:
            for _ in range(rpm):
                if q: out.append(q.pop(0))
        elif r:
            out.append(r.pop(0))
            if len(r) > len(main) - i - 1: out.append(r.pop(0))
    return out + q + r

def compute_loop(a, c):
    NST = nst(c); SL = slotbytes(c); NS = c.NS
    for i in range(0, len(c.mf) * 4, 2): a("v_mov_b64 v[%d:%d], 0" % (V_ACC + i, V_ACC + i + 1))
    a("s_mov_b32 s%d, 0" % S_SLOT); a("s_mov_b32 s%d, %d" % (S_T2, SL)); a("s_mov_b32 s%d, %d" % (S_T3, (-(NS - 1) * SL) & 0xffffffff))
    if c.prio: a("s_setprio %d" % c.prio)
    adv_s = ["s_add_u32 s%d, s%d, %d" % (S_SLOT, S_SLOT, SL), "s_cmp_eq_u32 s%d, %d" % (S_SLOT, NS * SL),
             "s_cselect_b32 s%d, s%d, s%d" % (S_DELTA, S_T3, S_T2), "s_cselect_b32 s%d, 0, s%d" % (S_SLOT, S_SLOT)]
    adv_v = ["v_add_u32 v%d, s%d, v%d" % (V_ADDR + i, S_DELTA, V_ADDR + i) for i in range(c.naddr)]
    cnt = ["s_sub_u32 s%d, s%d, 1" % (S_CNT, S_CNT), "s_cmp_lg_u32 s%d, 0" % S_CNT]
    L = a.newlabel("Lc")
    flag = []
    if c.flagiter:
        Lf, Lb = a.newlabel("Lfg"), a.newlabel("Lfb")
        a("s_mov_b32 s%d, %d" % (S_FIT, c.flagiter[0]))
        flag = ["s_cmp_eq_u32 s%d, s%d\ns_cbranch_scc1 %s\n%s:" % (S_CNT, S_FIT, Lf, Lb)]
    hookA = []
    if getattr(c, "hookA", None):
        c.LA = (a.newlabel("Lha"), a.newlabel("Lhb"))
        hookA = ["s_cmp_eq_u32 s%d, %d\ns_cbranch_scc1 %s\n%s:" % (S_CNT, NST, c.LA[0], c.LA[1])]
    def emit(l):
        for x in l: a(x)
    if c.dep:
        a("s_waitcnt vmcnt(0)"); a("s_barrier"); a("s_barrier")
    stamp_w0(a, c, 1)
    a("s_barrier")
    stamp_w0(a, c, 2)
    if c.wres:
        WB = wbytes(c)
        a("s_mov_b32 s40, 0"); a("s_mov_b32 s41, %d" % WB); a("s_mov_b32 s42, %d" % ((-(c.wres - 1) * WB) & 0xffffffff))
        adv_w = ["s_add_u32 s40, s40, %d" % WB, "s_cmp_eq_u32 s40, %d" % (c.wres * WB), "s_cselect_b32 s43, s42, s41", "s_cselect_b32 s40, 0, s40"]
        adv = adv_s + adv_v[:c.nA] + adv_w + [x.replace("s%d," % S_DELTA, "s43,") for x in adv_v[c.nA:]]
        emit(reads(c, 0, 0)); emit(adv)
        a("s_mov_b32 s%d, %d" % (S_CNT, NST // 2))
        a.label(L)
        for s in range(2):
            a("s_waitcnt lgkmcnt(0)"); a("s_barrier")
            emit(weave(mfmas(c, s), reads(c, 1 - s, 0), adv + (cnt if s == 1 else []), c.rpm, c.read_start))
        a("s_cbranch_scc1 %s" % L)
    else:
        emit(reads(c, 0, 0))
        a("s_mov_b32 s%d, %d" % (S_CNT, NST))
        a.label(L)
        a("s_waitcnt lgkmcnt(0)")
        late = [x for i, x in enumerate(adv_v) if c.sub == 1 and i < c.nA and i % 2 == 1]
        early = [x for x in adv_v if x not in late]
        emit(weave(mfmas(c, 0), reads(c, 1, 1), adv_s + early, c.rpm, c.read_start) + hookA)
        a("s_waitcnt lgkmcnt(0)"); a("s_barrier")
        emit(weave(mfmas(c, 1), reads(c, 0, 0), late + flag + cnt, c.rpm, c.read_start))
        a("s_cbranch_scc1 %s" % L)
    a("s_waitcnt lgkmcnt(0)")
    if c.prio: a("s_setprio 0")
    if c.xbar and not getattr(c, "own_xbar", False): a("s_barrier")
    a("s_nop 7")
    stamp_w0(a, c, 3)
    if c.flagiter:
        c.outofline = (Lf, Lb)

def out_of_line(a, c):
    if getattr(c, "hookA", None):
        a.label(c.LA[0]); c.hookA(a, c); a("s_branch %s" % c.LA[1])
    if c.flagiter:
        Lf, Lb = c.outofline
        a.label(Lf); c.flagiter[1](a, c); a("s_branch %s" % Lb)

def signal(a, c):
    a("s_waitcnt vmcnt(0)")
    if c.sig is not None: a("s_barrier")

def sig_addr(a, c):
    a("s_lshl_b32 s%d, s%d, 8" % (S_SIG, S_MT)); a("s_lshl_b32 s%d, s%d, %d" % (S_T0, S_NT, c.flagshift)); a("s_add_u32 s%d, s%d, s%d" % (S_SIG, S_SIG, S_T0))
    a("s_add_u32 s%d, s%d, %d" % (S_SIG, S_SIG, c.sig * 4096))

def emit_kernel(name, phases):
    a = Asm(); a.lbl = phases[0].kidx * 1000
    a.lines.append(kernel_header(name).rstrip())
    a("s_cmp_ge_u32 s2, 256"); a("s_cbranch_scc1 %s_end" % name)
    a("s_load_dwordx16 s[76:91], s[0:1], 0"); a("s_load_dwordx2 s[92:93], s[0:1], 64")
    a("v_lshrrev_b32 v1, 6, v0")
    tile_map(a, phases[0])
    a("v_readfirstlane_b32 s%d, v1" % S_WAVE)
    a("v_and_b32 v1, 63, v0")
    a("s_cmp_ge_u32 s%d, 4" % S_WAVE); a("s_cbranch_scc1 %s_loader" % name)
    for i, c in enumerate(phases):
        a.label("%s_c" % c.name)
        if i: tile_map(a, c)
        a("s_lshr_b32 s%d, s%d, %d" % (S_WR, S_WAVE, c.wc_bits)); a("s_and_b32 s%d, s%d, %d" % (S_WC, S_WAVE, (1 << c.wc_bits) - 1))
        if i == 0:
            a("s_setprio 3")
            a("s_waitcnt lgkmcnt(0)")
            c.hook("compute_first", a, c)
            a("s_setprio 0")
            if c.stamps: srd(a, S_SRDS, "ws", WS_STAMP, 1 << 20)
        compute_setup(a, c)
        stamp_w0(a, c, 0)
        c.hook("compute_pre", a, c)
        compute_loop(a, c)
        a.label("%s_epi" % c.name)
        c.epilogue(a, c)
        if c.stamps or getattr(c, "dbgstamp", None) is not None:
            a("s_waitcnt vmcnt(0)"); stamp_w0(a, c, 4)

    a("s_endpgm")
    for c in phases: out_of_line(a, c)
    a.label("%s_loader" % name)
    a("s_sub_u32 s%d, s%d, 4" % (S_LW, S_WAVE))
    a("v_lshrrev_b32 v2, 3, v1"); a("v_and_b32 v3, 7, v1"); a("v_lshrrev_b32 v4, 4, v1")
    for i, c in enumerate(phases):
        a.label("%s_l" % c.name)
        if i:
            phases[i - 1].hook("loader_share", a, phases[i - 1])
            sig_addr(a, phases[i - 1]); tile_map(a, c)
        if c.trace:
            a("s_mov_b32 s97, 0"); a("v_mov_b32 v120, 0"); trace(a, c)
        loader_setup(a, c)
        if i == 0:
            a("s_waitcnt lgkmcnt(0)")
            if c.lprio: a("s_setprio %d" % c.lprio)
        srd(a, S_SRDA, *c.A); srd(a, S_SRDW, *c.W)
        if i and phases[i - 1].xbar and not getattr(phases[i - 1], "loader_share", None): a("s_barrier")
        loader_run(a, c)
        if i == len(phases) - 1:
            if c.xbar: a("s_barrier")
            c.hook("loader_post", a, c)
        trace_dump(a, c)
    a.label("%s_end" % name)
    a("s_endpgm")
    a.label("%s_last" % name)
    return a.text()

def code_touch(a, start, end, vt, maxbytes):
    L = a.newlabel("Lpc")
    a("s_getpc_b64 s[48:49]")
    a.label(L)
    a("s_sub_u32 s48, s48, %s-%s" % (L, start)); a("s_subb_u32 s49, s49, 0")
    n = -(-maxbytes // 8192)
    for t in range(n):
        a("v_lshlrev_b32 v%d, 7, v1" % vt)
        if t: a("v_add_u32 v%d, %d, v%d" % (vt, 8192 * t, vt))
        a("v_min_u32 v%d, %s-%s-4, v%d" % (vt, end, start, vt))
        a("global_load_dword v%d, v%d, s[48:49]" % (vt + 1, vt))
    return n

def pk(x): return "v[%d:%d]" % (x, x + 1)
def pack_pair(a, x, y, t):
    a("v_cvt_pk_bf16_f32 v%d, v%d, v%d" % (t, x, x + 1)); a("v_cvt_pk_bf16_f32 v%d, v%d, v%d" % (t + 1, x + 2, x + 3))
    a("v_cvt_pk_bf16_f32 v%d, v%d, v%d" % (t + 2, y, y + 1)); a("v_cvt_pk_bf16_f32 v%d, v%d, v%d" % (t + 3, y + 2, y + 3))
def swap_pair(a, t):
    a("v_permlane32_swap_b32 v%d, v%d" % (t, t + 2)); a("v_permlane32_swap_b32 v%d, v%d" % (t + 1, t + 3))
    a("s_nop 0")
    a("v_permlane16_swap_b32 v%d, v%d" % (t, t + 2)); a("v_permlane16_swap_b32 v%d, v%d" % (t + 1, t + 3))
def acc_of(c, mb, nb):
    for i, (m, n, s) in enumerate(c.mf):
        if m == mb and n == nb: return V_ACC + 4 * i
    raise KeyError

def build(kernels, path):
    hdr = "".join("; @launch kernel=%s grid=(256,1,1) block=(512,1,1) lds=%d\n" % (k[0], k[4]) for k in kernels)
    if len(kernels) == 1 and kernels[0][0].startswith("sequential"):
        hdr = "; @launch grid=(256,1,1) block=(512,1,1) lds=%d\n" % kernels[0][4]
    s = hdr + '.amdgcn_target "amdgcn-amd-amdhsa--gfx950"\n.text\n'
    for k in kernels: s += k[1]
    s += '.section .rodata,"a"\n'
    for k in kernels: s += kernel_desc(k[0], k[2], k[3])
    open(path, "w").write(s)
```

```python
from g9 import *

def rows_wr(mult, add=0):
    def f(a, d):
        a("s_mul_i32 s%d, s%d, %d" % (d, S_WR, mult * 128))
        if add: a("s_add_u32 s%d, s%d, %d" % (d, d, add * 128))
    return f
def rows_zero(a, d): a("s_mov_b32 s%d, 0" % d)

def trlane(a, d, t):
    a("v_bfe_u32 v%d, v1, 4, 1" % t); a("v_lshlrev_b32 v%d, 3, v%d" % (t, t))
    a("v_bfe_u32 v%d, v1, 5, 1" % (t + 1)); a("v_lshl_add_u32 v%d, v%d, 2, v%d" % (t, t + 1, t))
    a("v_bfe_u32 v%d, v1, 2, 2" % (t + 1)); a("v_add_u32 v%d, v%d, v%d" % (t, t, t + 1))
    a("v_bfe_u32 v%d, v1, 3, 2" % (t + 1)); a("v_lshlrev_b32 v%d, 1, v%d" % (t + 1, t + 1))
    a("v_bfe_u32 v%d, v1, 1, 1" % (t + 2)); a("v_xor_b32 v%d, v%d, v%d" % (t + 1, t + 1, t + 2))
    a("v_and_b32 v%d, 1, v1" % (t + 2)); a("v_lshlrev_b32 v%d, 3, v%d" % (t + 2, t + 2))
    a("v_lshl_add_u32 v%d, v%d, 4, v%d" % (t + 1, t + 1, t + 2)); a("v_lshl_add_u32 v%d, v%d, 7, v%d" % (d, t, t + 1))

def reduce4(a, X):
    a("s_nop 1")
    a("v_permlane32_swap_b32 v%d, v%d" % (X[0], X[2])); a("v_permlane32_swap_b32 v%d, v%d" % (X[1], X[3])); a("s_nop 0")
    a("v_add_f32 v%d, v%d, v%d" % (X[0], X[0], X[2])); a("v_add_f32 v%d, v%d, v%d" % (X[1], X[1], X[3])); a("s_nop 1")
    a("v_permlane16_swap_b32 v%d, v%d" % (X[0], X[1])); a("s_nop 0")
    a("v_add_f32 v%d, v%d, v%d" % (X[0], X[0], X[1]))

def finish_stats(a, s, q, t):
    a("v_mul_f32 v%d, 0x%x, v%d" % (s, f2u(1.0 / 1024), s)); a("v_mul_f32 v%d, 0x%x, v%d" % (q, f2u(1.0 / 1024), q))
    a("v_fma_f32 v%d, -v%d, v%d, v%d" % (q, s, s, q)); a("v_max_f32 v%d, 0, v%d" % (q, q))
    a("v_cvt_pk_bf16_f32 v%d, v%d, v%d" % (t, s, q))
    a("v_lshlrev_b32 v%d, 16, v%d" % (t + 1, t)); a("v_and_b32 v%d, 0xffff0000, v%d" % (q, t))
    a("v_add_f32 v%d, 0x%x, v%d" % (q, f2u(1e-5), q)); a("v_cvt_pk_bf16_f32 v%d, v%d, v%d" % (t, q, q)); a("v_and_b32 v%d, 0xffff0000, v%d" % (q, t))
    a("v_sqrt_f32 v%d, v%d" % (q, q)); a("s_nop 0"); a("v_cvt_pk_bf16_f32 v%d, v%d, v%d" % (t, q, q)); a("v_and_b32 v%d, 0xffff0000, v%d" % (q, t))
    a("v_rcp_f32 v%d, v%d" % (s, q)); a("v_sub_f32 v%d, 0, v%d" % (q, t + 1))

def flat_touch(a, c, ptr, nbytes, vt):
    srd(a, S_SRDP, ptr, 0, nbytes)
    per = nbytes // 1024
    a("s_lshl_b32 s%d, s2, 2" % S_T0); a("s_add_u32 s%d, s%d, s%d" % (S_T0, S_T0, S_LW)); a("s_mul_i32 s%d, s%d, %d" % (S_T0, S_T0, per))
    a("v_min_u32 v%d, %d, v1" % (vt, per // 128 - 1)); a("v_lshlrev_b32 v%d, 7, v%d" % (vt, vt))
    a("buffer_load_dword v%d, v%d, s[%d:%d], s%d offen" % (vt + 1, vt, S_SRDP, S_SRDP + 3, S_T0))
def tail_pf(a, c):
    for (ptr, nb) in c.tail_pf: flat_touch(a, c, ptr, nb, 98)
    for cp in c.codepf: code_touch(a, *cp)
def n_tail(c): return len(c.tail_pf) + sum(-(-cp[3] // 8192) for cp in c.codepf)

def cnt_add(a, word, sreg):
    a("s_mov_b32 s%d, 1" % sreg)
    a("s_atomic_add s%d, s[%d:%d], %d" % (sreg, PTR["dbg"], PTR["dbg"] + 1, 4 * word))
def cnt_poll(word, v=44):
    def f(a, c):
        srd(a, S_SRDP, "dbg", 0, 256)
        a("v_mov_b32 v%d, %d" % (v + 2, 4 * word))
        a("buffer_load_dword v%d, v%d, s[%d:%d], 0 offen sc1" % (v, v + 2, S_SRDP, S_SRDP + 3))
    return f
def cnt_check(a, v=44):
    L = a.newlabel("Lpo"); Ld = a.newlabel("Lpd")
    a("s_mov_b32 s%d, %d" % (S_DN, SPIN))
    a.label(L)
    a("v_cmp_gt_u32 vcc, 0x100, v%d" % v)
    a("s_cbranch_vccz %s" % Ld)
    a("s_sub_u32 s%d, s%d, 1" % (S_DN, S_DN)); a("s_cbranch_scc1 %s" % Ld)
    a("s_sleep 4")
    a("buffer_load_dword v%d, v%d, s[%d:%d], 0 offen sc1" % (v, v + 2, S_SRDP, S_SRDP + 3))
    a("s_waitcnt vmcnt(0)")
    a("s_branch %s" % L)
    a.label(Ld)

AUX1_W1 = 2048
XCH = 98304
def k1_setup(a, c):
    srd(a, S_SRDX, "ws", WS_RSP, 2048 * 8)
    a("v_mov_b32 v46, 0x3f803f80"); a("v_and_b32 v47, 31, v1"); a("v_lshlrev_b32 v47, 2, v47")
    a("ds_write_b32 v47, v46"); a("ds_write_b32 v47, v46 offset:%d" % slotbytes(c))
    a("v_add_u32 v47, %d, v47" % (2 * slotbytes(c))); a("ds_write_b32 v47, v46")
    a("s_waitcnt lgkmcnt(0)")
XR = 128
def rows_load(a, c):
    srd(a, S_SRDX, "x", 0, 4 << 20)
    a("s_lshl_b32 s42, s2, 2"); a("s_add_u32 s42, s42, s%d" % S_WAVE); a("s_lshl_b32 s41, s42, 12"); a("s_lshl_b32 s42, s42, 4")
    a("v_lshlrev_b32 v144, 4, v1")
    for i in range(4): a("buffer_load_dwordx4 v[%d:%d], v144, s[%d:%d], s41 offen offset:%d" % (XR + 4 * i, XR + 3 + 4 * i, S_SRDX, S_SRDX + 3, 1024 * i))
def rows_pub(a, c):
    if c.wtouch:
        k0 = c.wtouch * 64
        per = (1024 - k0) * 48 // 1024
        srd(a, S_SRDP, "wqkv", 0, 6 << 20)
        a("s_mul_i32 s41, s42, %d" % (per * 8)); a("s_add_u32 s41, s41, %d" % (k0 * 6144))
        a("v_min_u32 v8, %d, v1" % (per - 1)); a("v_lshlrev_b32 v8, 7, v8")
        a("buffer_load_dword v167, v8, s[%d:%d], s41 offen" % (S_SRDP, S_SRDP + 3))
    a("s_waitcnt vmcnt(%d)" % (1 if c.wtouch else 0))
    for d in range(8):
        for r in range(2):
            S, Q, t, x = 8 + 4 * r, 10 + 4 * r, 144 + 2 * r, XR + 8 * r + d
            a("v_lshlrev_b32 v%d, 16, v%d" % (t, x)); a("v_and_b32 v%d, 0xffff0000, v%d" % (t + 1, x))
            if d == 0:
                a("v_mov_b64 %s, %s" % (pk(S), pk(t))); a("v_pk_mul_f32 %s, %s, %s" % (pk(Q), pk(t), pk(t)))
            else:
                a("v_pk_add_f32 %s, %s, %s" % (pk(S), pk(S), pk(t))); a("v_pk_fma_f32 %s, %s, %s, %s" % (pk(Q), pk(t), pk(t), pk(Q)))
    for S in (8, 12, 10, 14): a("v_add_f32 v%d, v%d, v%d" % (S, S, S + 1))
    srd(a, S_SRDX, "ws", WS_RSP, 2048 * 8)
    a("v_permlane32_swap_b32 v8, v12"); a("v_permlane32_swap_b32 v10, v14"); a("s_nop 0")
    a("v_add_f32 v8, v8, v12"); a("v_add_f32 v9, v10, v14"); a("s_nop 0")
    a("v_mov_b32 v10, v8"); a("v_mov_b32 v11, v9"); a("s_nop 1")
    a("v_permlane16_swap_b32 v8, v10"); a("v_permlane16_swap_b32 v9, v11"); a("s_nop 0")
    a("v_add_f32 v8, v8, v10"); a("v_add_f32 v9, v9, v11")
    for sh in ("row_ror:1", "row_ror:2", "row_ror:4", "row_ror:8"):
        a("s_nop 1")
        a("v_add_f32_dpp v8, v8, v8 %s row_mask:0xf bank_mask:0xf" % sh); a("v_add_f32_dpp v9, v9, v9 %s row_mask:0xf bank_mask:0xf" % sh)
    finish_stats(a, 8, 9, 10)
    a("v_lshrrev_b32 v10, 5, v1"); a("v_lshlrev_b32 v10, 3, v10")
    a("s_mov_b32 exec_lo, 1"); a("s_mov_b32 exec_hi, 1")
    a("buffer_store_dwordx2 v[8:9], v10, s[%d:%d], s42 offen sc1" % (S_SRDX, S_SRDX + 3))
    if c.fused:
        srd(a, S_SRDP, "ws", WS_FLAG, 16384)
        a("s_mov_b64 exec, 15")
        a("v_mov_b32 v12, 0"); a("v_lshlrev_b32 v13, 2, v1")
        a("buffer_store_dword v12, v13, s[%d:%d], s42 offen sc1" % (S_SRDP, S_SRDP + 3))
    a("s_mov_b64 exec, -1")
    a("s_nop 3")
def k1_drain(a, c): a("s_waitcnt vmcnt(0)")
def lw0_cnt(word):
    def f(a, c):
        L = a.newlabel("Lc1f")
        a("s_cmp_lg_u32 s%d, 0" % S_LW); a("s_cbranch_scc1 %s" % L)
        cnt_add(a, word, S_T0)
        a.label(L)
    return f
def k1_prep(a, c):
    trlane(a, 24, 64)
    a("s_mul_i32 s%d, s%d, 36" % (S_T0, S_LW)); a("v_add_u32 v33, s%d, v1" % S_T0)
    a("s_lshl_b32 s%d, s%d, 7" % (S_T1, S_MT)); a("s_sub_i32 s%d, s%d, 16" % (S_T1, S_T1))
    a("v_add_u32 v34, s%d, v33" % S_T1); a("v_max_i32 v34, 0, v34"); a("v_lshlrev_b32 v34, 3, v34")
    a("v_lshlrev_b32 v33, 2, v33"); a("v_add_u32 v33, %d, v33" % auxbase(c))
    a("s_lshl_b32 s%d, s2, 2" % S_T0); a("s_add_u32 s%d, s%d, s%d" % (S_T0, S_T0, S_LW))
    a("s_mul_hi_u32 s46, s%d, %d" % (S_T0, (1 << 32) // 56 + 1)); a("s_mul_i32 s%d, s46, 56" % S_T1); a("s_sub_u32 s47, s%d, s%d" % (S_T0, S_T1))
    a("s_mul_i32 s44, s46, %d" % (64 * 7168)); a("s_lshl_b32 s%d, s47, 7" % S_T1); a("s_add_u32 s44, s44, s%d" % S_T1)
    a("v_and_b32 v96, 1, v4"); a("v_lshlrev_b32 v96, 1, v96"); a("v_xor_b32 v96, v96, v3")
    a("v_mul_u32_u24 v97, 7168, v2"); a("v_lshl_add_u32 v96, v96, 4, v97"); a("v_xor_b32 v97, 64, v96")
def k1_tail(a, c):
    cnt_check(a)
    a("buffer_load_dwordx2 v[36:37], v34, s[%d:%d], 0 offen sc1" % (S_SRDX, S_SRDX + 3))
    srd(a, S_SRDW, "w1", 0, 1024 * 7168)
    a("s_lshl_b32 s%d, s%d, 13" % (S_T1, S_LW)); a("s_add_u32 s%d, s%d, %d" % (S_T1, S_T1, auxbase(c) + AUX1_W1))
    for i in range(8):
        a("s_mov_b32 m0, s%d" % S_T1); a("s_add_u32 s%d, s%d, 1024" % (S_T1, S_T1))
        a("buffer_load_dwordx4 v%d, s[%d:%d], s44 offen lds" % (96 + (i & 1), S_SRDW, S_SRDW + 3))
        if i < 7: a("s_add_u32 s44, s44, %d" % (8 * 7168))
    tail_pf(a, c)
def k1_fin(a, c):
    a("s_waitcnt vmcnt(%d)" % (8 + n_tail(c)))
    a("s_mov_b32 exec_hi, 15")
    a("ds_write_b32 v33, v36 offset:%d" % c.aux[0]); a("ds_write_b32 v33, v37 offset:%d" % c.aux[1])
    a("s_mov_b32 exec_hi, -1")
    a("s_waitcnt lgkmcnt(0)")
def k1_post_f(base, nafter):
    def f(a, c):
        srd(a, S_SRDY, "ws", WS_CS1, 16 * 3584 * 4)
        a("s_lshl_b32 s%d, s%d, 13" % (S_T1, S_LW)); a("s_add_u32 s%d, s%d, %d" % (S_T1, S_T1, base + AUX1_W1))
        for p in range(4):
            a("v_xor_b32 v%d, %d, v24" % (28 + p, 32 * p)); a("v_add_u32 v%d, s%d, v%d" % (28 + p, S_T1, 28 + p))
        for r in range(32, 40): a("v_mov_b32 v%d, 0" % r)
        a("s_mov_b32 s70, 0x3f803f80")
        a("s_waitcnt vmcnt(%d)" % nafter(c))
        for q in range(4):
            for p in range(4): a("ds_read_b64_tr_b16 v[%d:%d], v%d offset:%d" % (48 + 8 * q + 2 * p, 49 + 8 * q + 2 * p, 28 + p, 2048 * q))
        a("s_waitcnt lgkmcnt(0)")
        for q in range(4):
            for p in range(4):
                for d in range(2): a("v_dot2c_f32_bf16 v%d, s70, v%d" % (32 + 2 * p + d, 48 + 8 * q + 2 * p + d))
        a("s_nop 2")
        for p in range(4): a("v_add_f32 v%d, v%d, v%d" % (32 + 2 * p, 32 + 2 * p, 33 + 2 * p))
        reduce4(a, [32, 34, 36, 38])
        a("s_mul_i32 s%d, s46, %d" % (S_T0, 3584 * 4)); a("s_lshl_b32 s%d, s47, 8" % S_T1); a("s_add_u32 s%d, s%d, s%d" % (S_T0, S_T0, S_T1))
        a("v_lshlrev_b32 v28, 2, v1")
        a("buffer_store_dword v32, v28, s[%d:%d], s%d offen sc1" % (S_SRDY, S_SRDY + 3, S_T0))
    return f

BIAS = 148
def pre_k1(a, c):
    srd(a, S_SRDO, *c.O)
    a("v_and_b32 v12, 15, v1"); a("v_lshrrev_b32 v13, 4, v1")
    a("v_lshlrev_b32 v14, 2, v13"); a("v_sub_u32 v14, v12, v14")
    a("s_mov_b32 s%d, 0x%x" % (S_T0, f2u(-1e30))); a("v_mov_b32 v12, s%d" % S_T0)
    for half in range(2):
        for r in range(4):
            a("v_add_u32 v13, %d, v14" % ((16 if half == 0 else 0) - r)); a("v_and_b32 v13, 0xfffffff1, v13")
            a("v_cmp_ne_u32 vcc, 0, v13"); a("s_nop 1")
            a("v_cndmask_b32 v%d, 0, v12, vcc" % (BIAS + 4 * half + r))
    a("s_or_b32 s%d, s%d, s%d" % (S_T1, S_MT, S_WR)); a("s_cmp_eq_u32 s%d, 0" % S_T1); a("s_cselect_b32 s%d, s%d, 0" % (S_T1, S_T0))
    for r in range(4): a("v_add_f32 v%d, s%d, v%d" % (BIAS + 8 + r, S_T1, BIAS + r))
    base = auxbase(c); CSB = base + c.aux[2]
    a("v_lshlrev_b32 v12, 4, v1")
    a("s_mul_i32 s%d, s%d, 6144" % (S_T0, S_WAVE)); a("s_add_u32 s%d, s%d, %d" % (S_T0, S_T0, XCH))
    a("s_xor_b32 s%d, s%d, 2" % (S_T1, S_WAVE)); a("s_mul_i32 s%d, s%d, 6144" % (S_T1, S_T1)); a("s_add_u32 s%d, s%d, %d" % (S_T1, S_T1, XCH))
    a("v_add_u32 v160, s%d, v12" % S_T0)
    a("s_cmp_eq_u32 s%d, 0" % S_WR)
    for i, (own, s0, s1) in enumerate(((True, 0, 3), (False, 0, 2), (True, 1, 5), (False, 1, 4))):
        a("s_add_u32 s40, s%d, %d" % (S_T0 if own else S_T1, 1024 * s0)); a("s_add_u32 s41, s%d, %d" % (S_T1, 1024 * s1))
        a("s_cmp_eq_u32 s%d, 0" % S_WR); a("s_cselect_b32 s40, s40, s41")
        a("v_add_u32 v%d, s40, v12" % (161 + i))
    a("s_lshl_b32 s%d, s%d, 7" % (S_T0, S_WC)); a("s_lshl_b32 s%d, s%d, 6" % (S_T1, S_WR)); a("s_add_u32 s%d, s%d, s%d" % (S_T0, S_T0, S_T1)); a("s_add_u32 s%d, s%d, %d" % (S_T0, S_T0, CSB))
    a("v_lshrrev_b32 v13, 4, v1"); a("v_lshlrev_b32 v13, 4, v13"); a("v_add_u32 v165, s%d, v13" % S_T0)
    a("v_and_b32 v13, 15, v1"); a("v_lshlrev_b32 v13, 2, v13"); a("v_add_u32 v166, s%d, v13" % S_T0)

def epi_k1(a, c):
    base = auxbase(c); AUX_A, AUX_NM, AUX_CS = c.aux
    assert (base + AUX_CS) % 128 == 0
    hq, hk, hv = acc_of(c, 0, 0), acc_of(c, 0, 2), acc_of(c, 0, 4)
    A = lambda b, nb: (acc_of(c, b, nb) if b else {2: hk, 3: hq, 4: hv, 5: V_ACC + 108}[nb])
    for i, r in enumerate((hk, hv, A(4, 2), A(4, 3), A(4, 4), A(4, 5))): a("ds_write_b128 v160, v[%d:%d] offset:%d" % (r, r + 3, 1024 * i))
    a("s_mov_b32 exec_lo, 0x10001"); a("s_mov_b32 exec_hi, 0x10001")
    a("ds_write_b128 v165, v[%d:%d]" % (hq, hq + 3)); a("ds_write_b128 v165, v[%d:%d] offset:256" % (hk, hk + 3))
    a("s_mov_b64 exec, 0xffff")
    a("ds_write_b32 v166, v%d offset:512" % hv)
    a("s_mov_b64 exec, -1")
    a("v_and_b32 v2, 15, v1"); a("v_lshrrev_b32 v3, 4, v1")
    a("s_lshl_b32 s%d, s%d, 8" % (S_T0, S_WR)); a("s_add_u32 s%d, s%d, %d" % (S_T0, S_T0, base))
    a("v_lshlrev_b32 v4, 2, v2"); a("v_add_u32 v4, s%d, v4" % S_T0)
    a("v_lshlrev_b32 v5, 4, v3"); a("v_add_u32 v5, s%d, v5" % S_T0)
    a("v_xor_b32 v6, 64, v165"); a("v_xor_b32 v7, 64, v166")
    AN = 128; CQ = 140; CK = 160; CV = 138
    for mb in (1, 2, 3, 4, 0): a("ds_read2_b32 %s, v4 offset0:%d offset1:%d" % (pk(AN + 2 * mb), AUX_A // 4 + 16 * mb, AUX_NM // 4 + 16 * mb))
    a("ds_read_b128 v[8:11], v5 offset:%d" % AUX_A); a("ds_read_b128 v[12:15], v5 offset:%d" % AUX_NM)
    a("s_waitcnt lgkmcnt(7)")
    a("s_barrier")
    a("ds_read_b128 v[%d:%d], v165" % (CQ, CQ + 3)); a("ds_read_b128 v[%d:%d], v6" % (CQ + 4, CQ + 7))
    for i, nb in enumerate((2, 3, 4, 5)): a("ds_read_b128 v[%d:%d], v%d" % (A(0, nb), A(0, nb) + 3, 161 + i))
    a("ds_read_b32 v%d, v166 offset:512" % CV); a("ds_read_b32 v%d, v7 offset:512" % (CV + 1))
    a("ds_read_b128 v[%d:%d], v165 offset:256" % (CK, CK + 3)); a("ds_read_b128 v[%d:%d], v6 offset:256" % (CK + 4, CK + 7))
    def norm_rowlane(x, an, cs):
        for p in range(2): a("v_pk_fma_f32 %s, %s, %s, %s op_sel:[0,1,0] op_sel_hi:[1,1,1]" % (pk(x + 2 * p), pk(cs + 2 * p), pk(an), pk(x + 2 * p)))
    def scale_rowlane(x, an):
        for p in range(2): a("v_pk_mul_f32 %s, %s, %s op_sel_hi:[1,0]" % (pk(x + 2 * p), pk(x + 2 * p), pk(an)))
    def packqk(b, nb0, cs):
        x0, x1 = A(b, nb0), A(b, nb0 + 1)
        norm_rowlane(x0, AN + 2 * b, cs); norm_rowlane(x1, AN + 2 * b, cs + 4); scale_rowlane(x0, AN + 2 * b); scale_rowlane(x1, AN + 2 * b)
        pack_pair(a, x0, x1, x0)
    QP = {b: A(b, 0) for b in range(1, 5)}; KP = {b: A(b, 2) for b in range(5)}
    a("s_waitcnt lgkmcnt(8)")
    for b in range(1, 5): packqk(b, 0, CQ)
    a("s_waitcnt lgkmcnt(0)")
    for b in (1, 2, 3, 4, 0): packqk(b, 2, CK)
    S0 = {b: A(b, 1) for b in range(1, 5)}; S1 = {b: A(b, 3) for b in range(1, 5)}
    for b in (2, 3, 4, 1):
        a("v_mfma_f32_16x16x32_bf16 %s, %s, %s, 0" % (vr(S1[b], 4), vr(KP[b], 4), vr(QP[b], 4)))
        a("v_mfma_f32_16x16x32_bf16 %s, %s, %s, 0" % (vr(S0[b], 4), vr(KP[b - 1], 4), vr(QP[b], 4)))
    VP = [128, 158]
    VP = [128, 160 - 2]
    VB = [(8, 12), (140, 144)]
    a("s_mov_b32 s64, 0x%x" % f2u(32 ** -0.5 * LOG2E)); a("s_mov_b32 s65, s64")
    def vblock(b):
        va, vn = VB[b & 1]
        if b < 4:
            na, nn = VB[(b + 1) & 1]
            a("ds_read_b128 v[%d:%d], v5 offset:%d" % (na, na + 3, AUX_A + 64 * (b + 1))); a("ds_read_b128 v[%d:%d], v5 offset:%d" % (nn, nn + 3, AUX_NM + 64 * (b + 1)))
        a("s_waitcnt lgkmcnt(%d)" % (2 if b < 4 else 0))
        xs = [A(b, 4), A(b, 5)]
        for cc in range(2):
            for p in range(2):
                sel = "op_sel_hi:[1,0,1]" if cc == 0 else "op_sel:[0,1,0] op_sel_hi:[1,1,1]"
                a("v_pk_fma_f32 %s, %s, %s, %s %s" % (pk(xs[cc] + 2 * p), pk(vn + 2 * p), pk(CV), pk(xs[cc] + 2 * p), sel))
        for cc in range(2):
            for p in range(2): a("v_pk_mul_f32 %s, %s, %s" % (pk(xs[cc] + 2 * p), pk(xs[cc] + 2 * p), pk(va + 2 * p)))
    def vpack(b):
        xs = [A(b, 4), A(b, 5)]
        for cc in range(2):
            a("v_cvt_pk_bf16_f32 v%d, v%d, v%d" % (VP[cc] + 2 * b, xs[cc], xs[cc] + 1))
            a("v_cvt_pk_bf16_f32 v%d, v%d, v%d" % (VP[cc] + 2 * b + 1, xs[cc] + 2, xs[cc] + 3))
    vblock(0)
    for b in (1, 2, 3, 4):
        vblock(b); vpack(b)
    for b in range(1, 5):
        for h, s in enumerate((S0[b], S1[b])):
            bias = BIAS + 8 if (b == 1 and h == 0) else BIAS + 4 * h
            for p in range(2): a("v_pk_fma_f32 %s, %s, s[64:65], %s" % (pk(s + 2 * p), pk(s + 2 * p), pk(bias + 2 * p)))
    vpack(0)
    M, T = 8, 12
    for st in range(4):
        for b in range(1, 5):
            s, u = S0[b], S1[b]; m = M + b - 1
            a(["v_max3_f32 v%d, v%d, v%d, v%d" % (m, s, s + 1, s + 2), "v_max3_f32 v%d, v%d, v%d, v%d" % (m, m, s + 3, u),
               "v_max3_f32 v%d, v%d, v%d, v%d" % (m, m, u + 1, u + 2), "v_max_f32 v%d, v%d, v%d" % (m, m, u + 3)][st])
    def xreduce(op):
        for sw in ("v_permlane16_swap_b32", "v_permlane32_swap_b32"):
            for b in range(4): a("v_mov_b32 v%d, v%d" % (T + b, M + b))
            for b in range(4): a("%s v%d, v%d" % (sw, M + b, T + b))
            for b in range(4): a("%s v%d, v%d, v%d" % (op, M + b, M + b, T + b))
    xreduce("v_max_f32")
    def bsel(b):
        m = M + b - 1
        return (pk(m & ~1), "op_sel:[0,1] op_sel_hi:[1,1]" if m & 1 else "op_sel_hi:[1,0]")
    for b in range(1, 5):
        r, sel = bsel(b)
        for s in (S0[b], S1[b]):
            for p in range(2): a("v_pk_add_f32 %s, %s, %s %s neg_lo:[0,1] neg_hi:[0,1]" % (pk(s + 2 * p), pk(s + 2 * p), r, sel))
    for b in range(1, 5):
        for s in (S0[b], S1[b]):
            for j in range(4): a("v_exp_f32 v%d, v%d" % (s + j, s + j))
    U = 136
    for b in range(1, 5): a("v_pk_add_f32 %s, %s, %s" % (pk(U + 4 * b), pk(S0[b]), pk(S0[b] + 2)))
    for b in range(1, 5): a("v_pk_add_f32 %s, %s, %s" % (pk(U + 2 + 4 * b), pk(S1[b]), pk(S1[b] + 2)))
    for b in range(1, 5): a("v_pk_add_f32 %s, %s, %s" % (pk(U + 4 * b), pk(U + 4 * b), pk(U + 2 + 4 * b)))
    for b in range(1, 5): a("v_add_f32 v%d, v%d, v%d" % (M + b - 1, U + 4 * b, U + 1 + 4 * b))
    xreduce("v_add_f32")
    for b in range(4): a("v_rcp_f32 v%d, v%d" % (M + b, M + b))
    a("s_lshl_b32 s%d, s%d, 5" % (S_T0, S_MT)); a("s_lshl_b32 s%d, s%d, 1" % (S_T1, S_NT))
    for b in range(1, 5):
        r, sel = bsel(b)
        for s in (S0[b], S1[b]):
            for p in range(2): a("v_pk_mul_f32 %s, %s, %s %s" % (pk(s + 2 * p), pk(s + 2 * p), r, sel))
        pack_pair(a, S0[b], S1[b], QP[b])
    a("s_add_u32 s%d, s%d, s%d" % (S_T0, S_T0, S_T1)); a("s_add_u32 s%d, s%d, s%d" % (S_T0, S_T0, S_WC))
    for b in range(1, 5):
        for cc, o in enumerate((S0[b], S1[b])):
            a("v_mfma_f32_16x16x32_bf16 %s, %s, %s, 0" % (vr(o, 4), vr(VP[cc] + 2 * (b - 1), 4), vr(QP[b], 4)))
    a("s_lshl_b32 s%d, s%d, 1" % (S_T0, S_T0)); a("s_add_u32 s%d, s%d, s%d" % (S_T0, S_T0, S_WR)); a("s_lshl_b32 s%d, s%d, 12" % (S_T0, S_T0))
    a("s_lshl_b32 s%d, s%d, 1" % (S_T1, S_WR)); a("v_xor_b32 v3, s%d, v3" % S_T1)
    a("v_lshlrev_b32 v4, 6, v2"); a("v_lshl_add_u32 v4, v3, 4, v4")
    for b in range(1, 5): pack_pair(a, S0[b], S1[b], KP[b])
    for b in range(1, 5):
        swap_pair(a, KP[b])
        a("buffer_store_dwordx4 v[%d:%d], v4, s[%d:%d], s%d offen offset:%d %s" % (KP[b], KP[b] + 3, S_SRDO, S_SRDO + 3, S_T0, 1024 * (b - 1), c.stfl))

def pairAB(flip):
    def f(a, d):
        a("s_lshl_b32 s%d, s%d, 1" % (d, S_WC)); a("s_add_u32 s%d, s%d, s%d" % (d, d, S_WR))
        if flip: a("s_xor_b32 s%d, s%d, 1" % (d, d))
        a("s_lshl_b32 s%d, s%d, 5" % (d, d))
    return f
def cfg_p1(**kw):
    c = Cfg(name="p1", K=1024, lda=2048, ldb=6144, halo=16, ones=True,
            A=("x", 0, 4 << 20), W=("wqkv", 0, 1024 * 6144), O=("ws", WS_O, 4 << 20),
            segw=[64, 64, 64], col0=[0, 1024, 2048], cstep=64, wc_bits=1,
            aregs=[rows_wr(64, 16), rows_zero], mblk=[(1, 0), (0, 0), (0, 16), (0, 32), (0, 48)],
            wregs=[(0, 0, 0, pairAB(0)), (0, 0, 0, pairAB(1))],
            nblk=[(0, 0, 128), (1, 0, 128), (0, 8192, 128), (1, 8192, 128), (0, 16384, 128), (1, 16384, 128)],
            xa=8, xb=4, NS=3, order="rot", aux=(0, 576, 1152), own_xbar=True, stampv=8, wtouch=0,
            tail_pf=[("wo", 2 << 20)], codepf=[], ramp=[17, 12, 12, 12, 13])
    c.mf = []
    for base, sw in ((0, False), (2, False), (4, True)):
        c.mf += [(mb, base, sw) for mb in range(5)] + [(mb, base + 1, sw) for mb in range(1, 5)]
    c.epilogue = epi_k1; c.compute_pre = pre_k1; c.compute_first = rows_load; c.hookA = rows_pub
    c.__dict__.update(kw)
    c.xbar = True
    c.special = {-1: [("post", k1_setup, 0)], 5: [("post", lw0_cnt(0), 0)], 13: [("weave", k1_prep, 0)], 12: [("pre", cnt_poll(0), 1)],
                 14: [("post", k1_tail, 9 + n_tail(c))], 15: [("post", k1_fin, 0)]}
    c.flagiter = (16 - 3, k1_drain)
    return c

def res_tail(a, c):
    srd(a, S_SRDX, *c.R)
    if c.splitk:
        blk_pattern(a, 30)
        a("s_lshl_b32 s%d, s%d, 3" % (S_T0, S_MT)); a("s_add_u32 s%d, s%d, s%d" % (S_T0, S_T0, S_NT)); a("s_lshl_b32 s%d, s%d, 1" % (S_T0, S_T0))
        a("s_and_b32 s%d, s%d, 1" % (S_T1, S_LW)); a("s_add_u32 s%d, s%d, s%d" % (S_T0, S_T0, S_T1)); a("s_lshl_b32 s%d, s%d, 14" % (S_T0, S_T0))
        a("s_and_b32 s%d, s%d, 2" % (S_T1, S_LW)); a("s_add_u32 s%d, s%d, s%d" % (S_T1, S_T1, S_KH)); a("s_lshl_b32 s%d, s%d, 11" % (S_T1, S_T1))
        a("s_add_u32 s%d, s%d, s%d" % (S_T0, S_T0, S_T1))
    elif c.rblk:
        blk_pattern(a, 30)
        a("s_lshl_b32 s%d, s%d, 4" % (S_T0, S_MT)); a("s_add_u32 s%d, s%d, s%d" % (S_T0, S_T0, S_NT)); a("s_lshl_b32 s%d, s%d, 14" % (S_T0, S_T0))
        a("s_lshl_b32 s%d, s%d, 11" % (S_T1, S_LW)); a("s_add_u32 s%d, s%d, s%d" % (S_T0, S_T0, S_T1))
    else:
        a("v_xor_b32 v5, v4, v3"); a("v_lshlrev_b32 v30, 11, v2"); a("v_lshl_add_u32 v30, v5, 4, v30")
        a("v_xor_b32 v31, 64, v30"); a("v_add_u32 v31, %d, v31" % (8 * 2048 - 1024))
        a("v_add_u32 v32, %d, v30" % (16 * 2048 - 2048)); a("v_add_u32 v33, %d, v31" % (16 * 2048 - 2048))
        a("s_lshl_b32 s%d, s%d, 2" % (S_T0, S_MT)); a("s_add_u32 s%d, s%d, s%d" % (S_T0, S_T0, S_LW)); a("s_lshl_b32 s%d, s%d, 16" % (S_T0, S_T0))
        a("s_lshl_b32 s%d, s%d, 7" % (S_T1, S_NT)); a("s_add_u32 s%d, s%d, s%d" % (S_T0, S_T0, S_T1))
    a("s_lshl_b32 s%d, s%d, 12" % (S_T1, S_LW)); a("s_add_u32 m0, s%d, %d" % (S_T1, c.resb)); a("s_nop 0")
    for j in range(4): a("buffer_load_dwordx4 v%d, s[%d:%d], s%d offen offset:%d %s lds" % (30 + j, S_SRDX, S_SRDX + 3, S_T0, 1024 * j, c.flr))
    tail_pf(a, c)
def res_fin(a, c): a("s_waitcnt vmcnt(%d)" % n_tail(c))
def pre_k24(a, c):
    srd(a, S_SRDO, *c.O)
    if c.dostats: srd(a, S_SRDY, "ws", WS_STATS, 16 * 2048 * 8)
    a("v_and_b32 v80, 15, v1"); a("v_lshrrev_b32 v81, 4, v1")
    if c.oblk:
        a("s_lshl_b32 s%d, s%d, 4" % (S_T0, S_MT)); a("s_add_u32 s%d, s%d, s%d" % (S_T0, S_T0, S_NT)); a("s_lshl_b32 s%d, s%d, 14" % (S_T0, S_T0))
        a("s_lshl_b32 s%d, s%d, 11" % (S_T1, S_WR)); a("s_add_u32 s64, s%d, s%d" % (S_T0, S_T1)); a("s_add_u32 s65, s64, 8192")
        a("v_lshlrev_b32 v82, 6, v80"); a("v_lshl_add_u32 v84, v81, 4, v82")
    else:
        if c.splitk:
            keep_rows(a, S_T1)
            a("s_lshl_b32 s%d, s%d, 14" % (S_T0, S_MT)); a("s_add_u32 s%d, s%d, s%d" % (S_T0, S_T0, S_T1)); a("s_lshl_b32 s%d, s%d, 4" % (S_T0, S_T0))
            a("s_lshl_b32 s%d, s%d, 1" % (S_T1, S_NT)); a("s_add_u32 s%d, s%d, s%d" % (S_T1, S_T1, S_WC)); a("s_lshl_b32 s%d, s%d, 7" % (S_T1, S_T1))
            a("s_add_u32 s64, s%d, s%d" % (S_T0, S_T1))
            a("v_lshrrev_b32 v85, 3, v1"); a("v_lshlrev_b32 v85, 11, v85"); a("v_and_b32 v82, 7, v1"); a("v_lshl_add_u32 v85, v82, 4, v85")
        else:
            a("s_lshl_b32 s%d, s%d, 7" % (S_T0, S_MT)); a("s_lshl_b32 s%d, s%d, 5" % (S_T1, S_WR))
            a("s_add_u32 s%d, s%d, s%d" % (S_T0, S_T0, S_T1)); a("s_lshl_b32 s%d, s%d, 11" % (S_T0, S_T0))
            a("s_lshl_b32 s%d, s%d, 7" % (S_T1, S_NT)); a("s_add_u32 s64, s%d, s%d" % (S_T0, S_T1))
        for i in range(1, 4): a("s_add_u32 s%d, s64, %d" % (64 + i, i * 8 * 2048))
        a("v_and_b32 v82, 7, v80"); a("v_lshlrev_b32 v82, 11, v82"); a("v_lshl_add_u32 v84, v81, 4, v82")
        a("v_lshrrev_b32 v82, 3, v80"); a("v_lshl_add_u32 v84, v82, 6, v84")
    a("v_bfe_u32 v82, v80, 1, 3"); a("v_lshrrev_b32 v83, 1, v81"); a("v_xor_b32 v82, v82, v83"); a("v_lshlrev_b32 v82, 4, v82")
    a("v_and_b32 v83, 1, v81"); a("v_lshl_add_u32 v82, v83, 3, v82"); a("v_lshl_add_u32 v82, v80, 7, v82")
    a("s_lshl_b32 s%d, s%d, 12" % (S_T0, S_WAVE)); a("s_add_u32 s%d, s%d, %d" % (S_T0, S_T0, c.resb))
    for nb in range(4):
        a("v_xor_b32 v%d, %d, v82" % (c.RA + nb, 32 * nb)); a("v_add_u32 v%d, s%d, v%d" % (c.RA + nb, S_T0, c.RA + nb))
    if c.dostats:
        a("v_and_b32 v113, 31, v1"); a("v_lshlrev_b32 v113, 3, v113"); a("v_lshrrev_b32 v114, 5, v1"); a("v_lshl_add_u32 v116, v114, 2, v113")
        a("s_lshl_b32 s%d, s%d, 14" % (S_T0, S_NT)); a("s_lshl_b32 s%d, s%d, 10" % (S_T1, S_MT)); a("s_add_u32 s%d, s%d, s%d" % (S_T0, S_T0, S_T1))
        a("s_lshl_b32 s%d, s%d, 8" % (S_T1, S_WR)); a("s_add_u32 s68, s%d, s%d" % (S_T0, S_T1))
def epi_k24(a, c):
    RES = c.RES; T = 96
    for mb in range(2):
        for nb in range(4): a("ds_read_b64 %s, v%d offset:%d" % (pk(RES + (mb * 4 + nb) * 2), c.RA + nb, 2048 * mb))
    if c.splitk:
        for i in range(4):
            x, y = acc_of(c, 2 + (i >> 1), 2 * (i & 1)), acc_of(c, 2 + (i >> 1), 2 * (i & 1) + 1)
            pack_pair(a, x, y, x)
            for d in range(4): a("v_min_u32 v%d, -2, v%d" % (x + d, x + d))
            a("s_xor_b32 s%d, s%d, %d" % (S_T0, 64 + i, 32 * 2048))
            a("buffer_store_dwordx4 v[%d:%d], v85, s[%d:%d], s%d offen sc1" % (x, x + 3, S_SRDO, S_SRDO + 3, S_T0))
        def addpk(r, x, t):
            for d in range(2):
                a("v_lshlrev_b32 v%d, 16, v%d" % (t + 2 * d, r + d)); a("v_and_b32 v%d, 0xffff0000, v%d" % (t + 2 * d + 1, r + d))
            for d in range(2): a("v_pk_add_f32 %s, %s, %s" % (pk(x + 2 * d), pk(x + 2 * d), pk(t + 2 * d)))
        a("s_waitcnt lgkmcnt(0)")
        for mb in range(2):
            for nb in range(4): addpk(RES + (mb * 4 + nb) * 2, acc_of(c, mb, nb), 86 + 4 * (nb & 1))
        if c.xsleep: a("s_sleep %d" % c.xsleep)
        L = a.newlabel("Lxp"); Le = a.newlabel("Lxe")
        a("s_mov_b32 s%d, %d" % (S_DN, SPIN))
        a.label(L)
        for i in range(4): a("buffer_load_dwordx4 v[%d:%d], v85, s[%d:%d], s%d offen sc1" % (RES + 4 * i, RES + 4 * i + 3, S_SRDO, S_SRDO + 3, 64 + i))
        a("s_sub_u32 s%d, s%d, 1" % (S_DN, S_DN)); a("s_cbranch_scc1 %s" % Le)
        a("s_waitcnt vmcnt(0)")
        a("v_max3_u32 v86, v%d, v%d, v%d" % (RES, RES + 1, RES + 2))
        for j in range(3, 15, 2): a("v_max3_u32 v86, v86, v%d, v%d" % (RES + j, RES + j + 1))
        a("v_max_u32 v86, v86, v%d" % (RES + 15))
        a("v_cmp_eq_u32 vcc, -1, v86")
        a("s_cbranch_vccnz %s" % L)
        a.label(Le)
    if c.dostats:
        a("s_mov_b32 s%d, 0x3f803f80" % S_T0)
        for r in range(112, 116): a("v_mov_b32 v%d, 0" % r)
    for mb in range(2):
        if not c.splitk: a("s_waitcnt lgkmcnt(%d)" % (4 - 4 * mb))
        for nb in range(4):
            r = RES + (mb * 4 + nb) * 2; x = acc_of(c, mb, nb); t = 86 + 4 * (nb & 1)
            for d in range(2):
                a("v_lshlrev_b32 v%d, 16, v%d" % (t + 2 * d, r + d)); a("v_and_b32 v%d, 0xffff0000, v%d" % (t + 2 * d + 1, r + d))
            for d in range(2): a("v_pk_add_f32 %s, %s, %s" % (pk(x + 2 * d), pk(x + 2 * d), pk(t + 2 * d)))
        for p in range(2): pack_pair(a, acc_of(c, mb, 2 * p), acc_of(c, mb, 2 * p + 1), T + (mb * 2 + p) * 4)
        if c.dostats:
            for j in range(8):
                d = T + mb * 8 + j
                a("v_dot2c_f32_bf16 v%d, s%d, v%d" % (112 + 2 * mb, S_T0, d)); a("v_dot2c_f32_bf16 v%d, v%d, v%d" % (113 + 2 * mb, d, d))
        else: a("s_nop 1")
        if c.oblk:
            for p in range(2):
                t = T + (mb * 2 + p) * 4
                swap_pair(a, t)
                a("buffer_store_dwordx4 v[%d:%d], v84, s[%d:%d], s%d offen offset:%d %s" % (t, t + 3, S_SRDO, S_SRDO + 3, 64 + p, 1024 * mb, c.stfl))
        else:
            X, Y, U = T + mb * 8, T + mb * 8 + 4, 120
            swap_pair(a, X); swap_pair(a, Y)
            for d in range(4): a("v_mov_b32 v%d, v%d" % (U + d, X + d))
            for d in range(4): a("v_mov_b32_dpp v%d, v%d row_ror:8 row_mask:0xf bank_mask:0xc" % (X + d, Y + d))
            for d in range(4): a("v_mov_b32_dpp v%d, v%d row_ror:8 row_mask:0xf bank_mask:0x3" % (Y + d, U + d))
            a("buffer_store_dwordx4 v[%d:%d], v84, s[%d:%d], s%d offen %s" % (X, X + 3, S_SRDO, S_SRDO + 3, 64 + 2 * mb, c.stfl))
            a("buffer_store_dwordx4 v[%d:%d], v84, s[%d:%d], s%d offen %s" % (Y, Y + 3, S_SRDO, S_SRDO + 3, 65 + 2 * mb, c.stfl))
    if c.dostats:
        a("v_permlane32_swap_b32 v112, v113"); a("v_permlane32_swap_b32 v114, v115"); a("s_nop 0")
        a("v_add_f32 v112, v112, v113"); a("v_add_f32 v114, v114, v115"); a("s_nop 1")
        a("v_permlane16_swap_b32 v112, v114"); a("s_nop 0")
        a("v_add_f32 v112, v112, v114")
        a("buffer_store_dword v112, v116, s[%d:%d], s68 offen sc1" % (S_SRDY, S_SRDY + 3))

def cfg_p24(**kw):
    c = Cfg(segw=[64], col0=[0], cstep=64, wc_bits=0, aregs=[rows_wr(32)], mblk=[(0, 0), (0, 16)],
            wregs=[(0, 0, 0, 0), (0, 0, 1, 0), (0, 0, 2, 0), (0, 0, 3, 0)],
            nblk=[(0, 0, 128), (1, 0, 128), (2, 0, 128), (3, 0, 128)],
            xa=4, xb=8, NS=3, sub=2, rpm=2, order="class", tail_pf=[], codepf=[], ramp=[20], flr="", resb=147456, RA=48, RES=64)
    c.mf = [(mb, nb, False) for nb in range(4) for mb in range(2)]
    c.compute_pre = pre_k24; c.epilogue = epi_k24
    c.__dict__.update(kw)
    if c.wres:
        c.sub = 1
        if c.NS == 4: c.resb = 45056
    N = nst(c)
    c.special = {N - 2: [("post", res_tail, 4 + n_tail(c))], N - 1: [("post", res_fin, 0)]}
    return c
def cfg_p2(**kw):
    return cfg_p24(name="p2", K=1024, lda=2048, ldb=2048, A=("ws", WS_O - 4096, (4 << 20) + 4096), ablk=32, W=("wo", 0, 2 << 20), O=("ws", WS_H, 4 << 20), oblk=True, R=("x", 0, 4 << 20), rblk=False, dostats=True, **kw)
def cfg_p4(**kw):
    return cfg_p24(name="p4", K=3584, lda=7168, ldb=2048, A=("ws", WS_H1 - 4096, 2048 * 7168 + 4096), ablk=112, W=("w2", 0, 3584 * 2048), O=("out", 0, 4 << 20), oblk=False, R=("ws", WS_H - 4096, (4 << 20) + 4096), rblk=True, dostats=False, **kw)

def keep_rows(a, d):
    a("s_lshl_b32 s%d, s%d, 1" % (d, S_WR)); a("s_add_u32 s%d, s%d, s%d" % (d, d, S_KH)); a("s_lshl_b32 s%d, s%d, 12" % (d, d))
def send_rows(a, d):
    keep_rows(a, d); a("s_xor_b32 s%d, s%d, 4096" % (d, d))
def cfg_p4s(**kw):
    d = dict(name="p4", K=1792, lda=7168, ldb=2048, A=("ws", WS_H1 - 4096, 2048 * 7168 + 4096), ablk=112, W=("w2", 0, 3584 * 2048), O=("out", 0, 4 << 20),
             oblk=False, R=("ws", WS_H - 4096, (4 << 20) + 4096), rblk=True, dostats=False, splitk=True,
             segw=[64, 64], col0=[0, 64], cstep=128, wc_bits=1, aregs=[keep_rows, send_rows], mblk=[(0, 0), (0, 16), (1, 0), (1, 16)],
             wregs=[(0, 1, 0, 0), (0, 1, 1, 0), (0, 1, 2, 0), (0, 1, 3, 0)], NS=4, sub=1, rpm=1, ramp=None, resb=131072, RA=124, RES=128, stampv=148, xsleep=0, samexcd=False, dramp=[10, 10, 10, 10],
             mf=[(mb, nb, False) for nb in range(4) for mb in range(4)])
    d.update(kw)
    return cfg_p24(**d)
def sentinel(a, c):
    srd(a, S_SRDP, "out", 0, 4 << 20)
    a("s_lshl_b32 s%d, s2, 2" % S_T0); a("s_add_u32 s%d, s%d, s%d" % (S_T0, S_T0, S_LW)); a("s_lshl_b32 s%d, s%d, 12" % (S_T0, S_T0))
    a("v_lshlrev_b32 v104, 4, v1")
    for r in range(108, 112): a("v_mov_b32 v%d, -1" % r)
    for i in range(4): a("buffer_store_dwordx4 v[108:111], v104, s[%d:%d], s%d offen offset:%d sc1" % (S_SRDP, S_SRDP + 3, S_T0, 1024 * i))

def pre_k3(a, c): srd(a, S_SRDO, *c.O)
def k3_cs(a, c):
    srd(a, S_SRDX, "ws", WS_CS1, 16 * 3584 * 4)
    if c.fused:
        cnt_poll(32)(a, c); a("s_waitcnt vmcnt(0)"); cnt_check(a)
    a("s_mul_i32 s44, s%d, 896" % S_NT); a("s_mul_i32 s45, s%d, 224" % S_LW)
    a("v_lshlrev_b32 v31, 2, v1"); a("s_and_b32 s%d, s%d, %d" % (S_T0, S_NT, 1 if c.oddalign else 0)); a("s_lshl_b32 s%d, s%d, 7" % (S_T0, S_T0)); a("s_add_u32 s%d, s%d, s45" % (S_T0, S_T0))
    a("v_add_u32 v30, s%d, v31" % S_T0); a("v_subrev_u32 v32, 896, v30"); a("v_min_u32 v30, v30, v32")
    for p in range(16):
        a("buffer_load_dword v%d, v30, s[%d:%d], s44 offen sc1" % (64 + p, S_SRDX, S_SRDX + 3))
        if p < 15: a("s_add_u32 s44, s44, %d" % (3584 * 4))
    a("s_add_u32 s45, s45, %d" % (auxbase(c) + c.aux[2])); a("v_add_u32 v31, s45, v31")
def k3_cs2(a, c):
    for st in (8, 4, 2, 1):
        for j in range(st): a("v_add_f32 v%d, v%d, v%d" % (64 + j, 64 + j, 64 + j + st))
    a("s_mov_b32 exec_hi, 0xffffff")
    a("ds_write_b32 v31, v64")
    a("s_mov_b32 exec_hi, -1")
def k3_stats(a, c):
    srd(a, S_SRDY, "ws", WS_STATS, 16 * 2048 * 8)
    a("v_and_b32 v28, 31, v1"); a("v_lshlrev_b32 v29, 3, v28"); a("v_lshrrev_b32 v30, 5, v1"); a("v_lshl_add_u32 v29, v30, 17, v29")
    a("s_lshl_b32 s44, s%d, 10" % S_MT); a("s_lshl_b32 s%d, s%d, 8" % (S_T0, S_LW)); a("s_add_u32 s44, s44, s%d" % S_T0)
    for j in range(8):
        a("buffer_load_dwordx2 %s, v29, s[%d:%d], s44 offen sc1" % (pk(48 + 2 * j), S_SRDY, S_SRDY + 3))
        if j < 7: a("s_add_u32 s44, s44, 16384")
def k3_fin(a, c):
    for st in (8, 4, 2):
        for j in range(st): a("v_add_f32 v%d, v%d, v%d" % (48 + j, 48 + j, 48 + j + st))
    a("s_lshl_b32 s%d, s%d, 7" % (S_T0, S_LW)); a("s_add_u32 s%d, s%d, %d" % (S_T0, S_T0, auxbase(c)))
    a("v_mov_b32 v50, v48"); a("v_mov_b32 v51, v49")
    a("v_lshlrev_b32 v28, 2, v28"); a("v_add_u32 v28, s%d, v28" % S_T0)
    a("v_permlane32_swap_b32 v48, v50"); a("v_permlane32_swap_b32 v49, v51"); a("s_nop 0")
    a("v_add_f32 v48, v48, v50"); a("v_add_f32 v49, v49, v51")
    finish_stats(a, 48, 49, 50)
    a("ds_write_b32 v28, v49 offset:%d" % c.aux[1]); a("ds_write_b32 v28, v48 offset:%d" % c.aux[0])
def lgkm0(a, c): a("s_waitcnt lgkmcnt(0)")
def epi_k3(a, c, half=0):
    base = auxbase(c); AUX_A, AUX_NM, AUX_CS = c.aux
    AB = 128; CS = 136; E = 8
    alljobs = [(m, q) for m in range(4) for q in range(4) if q < 3 or m < 2]
    mine = alljobs
    if c.share:
        theirs = [(3, 0), (3, 1), (3, 2), (2, 0), (2, 1), (2, 2), (1, 3)][:c.share]
        mine = theirs if half else [j for j in alljobs if j not in theirs]
        W = S_LW if half else S_WAVE
        if half:
            a("s_lshr_b32 s%d, s%d, 1" % (S_WR, S_LW)); a("s_and_b32 s%d, s%d, 1" % (S_WC, S_LW)); srd(a, S_SRDO, *c.O)
        a("s_mul_i32 s%d, s%d, 24576" % (S_T0, W)); a("v_lshlrev_b32 v9, 4, v1"); a("v_add_u32 v9, s%d, v9" % S_T0)
        blocks = [acc_of(c, m, 2 * q + e) for (m, q) in theirs for e in range(2)]
        if not half:
            for i, x in enumerate(blocks): a("ds_write_b128 v9, v[%d:%d] offset:%d" % (x, x + 3, 1024 * i))
    a("v_and_b32 v2, 15, v1"); a("v_lshrrev_b32 v3, 4, v1")
    a("s_lshl_b32 s%d, s%d, 1" % (S_T0, S_WR)); a("s_add_u32 s%d, s%d, s%d" % (S_T0, S_T0, S_WC))
    a("s_lshl_b32 s%d, s%d, 7" % (S_T1, S_T0)); a("s_add_u32 s%d, s%d, %d" % (S_T1, S_T1, base))
    a("v_lshlrev_b32 v4, 2, v2"); a("v_add_u32 v4, s%d, v4" % S_T1); a("v_xor_b32 v10, 128, v4")
    a("v_lshlrev_b32 v5, 4, v3"); a("v_add_u32 v5, %d, v5" % (base + AUX_CS))
    a("s_lshl_b32 s%d, s%d, 8" % (S_T1, S_WC)); a("v_add_u32 v6, s%d, v5" % S_T1)
    a("s_lshl_b32 s%d, s%d, 7" % (S_T1, S_WC)); a("v_add_u32 v7, s%d, v5" % S_T1)
    ms = sorted(set(m for m, q in mine)); qs = sorted(set(q for m, q in mine))
    for m in ms: a("ds_read2_b32 %s, v%d offset0:%d offset1:%d" % (pk(AB + 2 * m), 4 if m < 2 else 10, AUX_A // 4 + 16 * (m & 1), AUX_NM // 4 + 16 * (m & 1)))
    for t in range(8):
        v, off = (6, 64 * t) if t < 4 else ((7, 512 + 64 * (t - 4)) if t < 6 else (5, 768 + 64 * (t - 6)))
        a("ds_read_b128 v[%d:%d], v%d offset:%d" % (CS + 4 * t, CS + 4 * t + 3, v, off))
    nrd = len(ms) + 8
    if c.share and not half:
        a("s_waitcnt lgkmcnt(%d)" % nrd); a("s_barrier")
    a("v_lshlrev_b32 v5, 6, v2"); a("v_lshl_add_u32 v5, v3, 4, v5"); a("s_lshl_b32 s%d, s%d, 11" % (S_T0, S_T0)); a("v_add_u32 v5, s%d, v5" % S_T0); a("v_xor_b32 v6, 0x800, v5")
    a("s_mul_i32 s%d, s%d, 112" % (S_T0, S_MT)); a("s_mul_i32 s%d, s%d, 7" % (S_T1, S_NT)); a("s_add_u32 s%d, s%d, s%d" % (S_T0, S_T0, S_T1))
    a("s_add_u32 s67, s%d, 6" % S_T0)
    if c.oddalign:
        a("s_bitcmp1_b32 s%d, 0" % S_NT); a("s_cselect_b32 s67, s%d, s67" % S_T0); a("s_addc_u32 s%d, s%d, 0" % (S_T0, S_T0))
    a("s_add_u32 s66, s%d, s%d" % (S_T0, S_WC)); a("s_add_u32 s64, s66, s%d" % S_WC); a("s_add_u32 s66, s66, 4"); a("s_add_u32 s65, s64, 1")
    for q in range(4): a("s_lshl_b32 s%d, s%d, 13" % (64 + q, 64 + q))
    a("s_mov_b32 s68, 0x%x" % f2u(-LOG2E)); a("s_mov_b32 s69, s68")
    if c.share and half:
        a("s_barrier")
        for i, x in enumerate(blocks): a("ds_read_b128 v[%d:%d], v9 offset:%d" % (x, x + 3, 1024 * i))
    pend = None
    for i, (m, q) in enumerate(mine):
        if c.share and half: a("s_waitcnt lgkmcnt(%d)" % (len(blocks) - 2 * i - 2))
        elif i == 0: a("s_waitcnt lgkmcnt(0)")
        prs = []
        for t in (2 * q, 2 * q + 1):
            x = acc_of(c, m, t)
            for p in range(2): prs.append((x + 2 * p, AB + 2 * m, CS + 4 * t + 2 * p))
        for (x, ab, cs) in prs: a("v_pk_fma_f32 %s, %s, %s, %s op_sel:[0,1,0] op_sel_hi:[1,1,1]" % (pk(x), pk(cs), pk(ab), pk(x)))
        if pend: pend()
        for (x, ab, cs) in prs: a("v_pk_mul_f32 %s, %s, %s op_sel_hi:[1,0]" % (pk(x), pk(x), pk(ab)))
        for j, (x, ab, cs) in enumerate(prs): a("v_pk_mul_f32 %s, %s, s[68:69]" % (pk(E + 2 * j), pk(x)))
        for j in range(8): a("v_exp_f32 v%d, v%d" % (E + j, E + j))
        for j in range(4): a("v_pk_add_f32 %s, %s, 1.0 op_sel_hi:[1,0]" % (pk(E + 2 * j), pk(E + 2 * j)))
        for j in range(8): a("v_rcp_f32 v%d, v%d" % (E + j, E + j))
        for j, (x, ab, cs) in enumerate(prs): a("v_pk_mul_f32 %s, %s, %s" % (pk(x), pk(x), pk(E + 2 * j)))
        t = prs[0][0]
        pack_pair(a, prs[0][0], prs[2][0], t)
        def fin(t=t, m=m, q=q):
            swap_pair(a, t)
            a("buffer_store_dwordx4 v[%d:%d], v%d, s[%d:%d], s%d offen offset:%d %s" % (t, t + 3, 5 if m < 2 else 6, S_SRDO, S_SRDO + 3, 64 + q, 1024 * (m & 1), c.stfl))
        pend = fin
    a("s_nop 1"); pend()
    if half:
        a("v_lshrrev_b32 v2, 3, v1"); a("v_and_b32 v3, 7, v1"); a("v_lshrrev_b32 v4, 4, v1")

def rows_p3(flip):
    def f(a, d):
        a("s_lshl_b32 s%d, s%d, 1" % (d, S_WR)); a("s_add_u32 s%d, s%d, s%d" % (d, d, S_WC))
        if flip: a("s_xor_b32 s%d, s%d, 1" % (d, d))
        a("s_lshl_b32 s%d, s%d, 12" % (d, d))
    return f
def cfg_p3(**kw):
    c = Cfg(name="p3", K=1024, lda=2048, ldb=7168, A=("ws", WS_H - 4096, (4 << 20) + 4096), ablk=32, W=("w1", 0, 1024 * 7168), O=("ws", WS_H1, 2048 * 7168),
            segw=[64, 64, 64, 32], col0=[0, 64, 128, 192], cstep=224, wc_bits=1,
            aregs=[rows_p3(0), rows_p3(1)], mblk=[(0, 0), (0, 16), (1, 0), (1, 16)],
            wregs=[(0, 1, 0, 0), (0, 1, 1, 0), (0, 1, 2, 0), (0, 1, 3, 0), (2, 0, 0, 2), (2, 0, 1, 2), (3, 0, 0, 0), (3, 0, 1, 0)],
            nblk=[(0, 0, 128), (1, 0, 128), (2, 0, 128), (3, 0, 128), (4, 0, 128), (5, 0, 128), (6, 0, 64), (7, 0, 64)],
            xa=8, xb=4, NS=3, order="class", aux=(0, 512, 1024), stampv=148,
            tail_pf=[("w2", 7 << 20)], codepf=[], ramp=[19, 11, 12, 12, 12], share=0, oddalign=True)
    c.mf = [(mb, nb, False) for nb in range(6) for mb in range(4)] + [(mb, nb, False) for nb in (6, 7) for mb in range(2)]
    c.compute_pre = pre_k3; c.epilogue = epi_k3
    c.__dict__.update(kw)
    if c.share:
        c.own_xbar = True; c.loader_share = lambda a, c: epi_k3(a, c, 1)
    c.special = {-1: [("post", k3_stats, 8)], 14: [("post", tail_pf, n_tail(c)), ("post", k3_fin, 0), ("post", k3_cs2, 0), ("post", lgkm0, 0)]}
    if c.fused: c.loader_wait = k3_cs
    else: c.special[-1].append(("post", k3_cs, 16))
    return c

KNAME = "sequential_preLN__sliding_local_dilated__dense_activation_silu__prompt_kernel"
def multi(path, stamps=False, all={}, p1={}, p2={}, p3={}, p4={}):
    d = dict(stamps=stamps); d.update(all)
    cp = lambda s, e: [(s, e, 100, 16384)]
    c1 = cfg_p1(kidx=0, **{**d, "codepf": cp("p1_epi", "k2_kernel_last"), **p1}); c2 = cfg_p2(kidx=1, **{**d, "codepf": cp("p2_epi", "k3_kernel_last"), **p2})
    c3 = cfg_p3(kidx=2, **{**d, "codepf": cp("p3_epi", "k4_kernel_last"), **p3}); c4 = cfg_p4(kidx=3, **{**d, **p4})
    c1.loader_post = k1_post_f(auxbase(c1), n_tail)
    ks = [("k1_kernel", emit_kernel("k1_kernel", [c1]), 256, 168, 163840), ("k2_kernel", emit_kernel("k2_kernel", [c2]), 256, 168, 163840),
          ("k3_kernel", emit_kernel("k3_kernel", [c3]), 256, 168, auxbase(c3) + 2048), ("k4_kernel", emit_kernel("k4_kernel", [c4]), 256, 168, 163840)]
    build(ks, path)

def prewrite(a, c):
    for (off, nb) in c.prew:
        srd(a, S_SRDP, "ws" if off >= 0 else "out", max(off, 0), nb)
        per = nb // 1024
        a("s_lshl_b32 s%d, s2, 2" % S_T0); a("s_add_u32 s%d, s%d, s%d" % (S_T0, S_T0, S_LW)); a("s_mul_i32 s%d, s%d, %d" % (S_T0, S_T0, per))
        a("v_lshlrev_b32 v104, 4, v1")
        for r in range(108, 112): a("v_mov_b32 v%d, 0" % r)
        for i in range(per // 1024):
            a("buffer_store_dwordx4 v[108:111], v104, s[%d:%d], s%d offen sc1" % (S_SRDP, S_SRDP + 3, S_T0))
            a("s_add_u32 s%d, s%d, 1024" % (S_T0, S_T0))

def fused(path, stamps=False, all={}, p1={}, p2={}, p3={}, p4={}, nocode=False, prew=False, splitk=False):
    d = dict(stamps=stamps, fused=True, xbar=True); d.update(all)
    if nocode:
        p1 = dict(p1, codepf=[]); p2 = dict(p2, codepf=[]); p3 = dict(p3, codepf=[])
    c1 = cfg_p1(kidx=0, sig=0, **{**d, "codepf": [("p1_epi", "p3_c", 100, 8192), ("p1_l", "p3_l", 100, 16384)], **p1})
    c2 = cfg_p2(kidx=1, sig=1, fla="sc1", **{**d, "codepf": [("p2_epi", "p4_c", 100, 8192), ("p2_l", "p4_l", 100, 8192)], **p2})
    c3 = cfg_p3(kidx=2, sig=2, fla="sc1", **{**d, "codepf": [("p3_epi", KNAME + "_loader", 100, 8192), ("p3_l", KNAME + "_last", 100, 8192)], **p3})
    c4 = (cfg_p4s if splitk else cfg_p4)(kidx=3, fla="sc1", flr="sc1", **{**d, "xbar": False, **p4})
    c2.dep = lambda a, c: seam_wait(a, c, c1, 0)
    c3.dep = lambda a, c: seam_wait(a, c, c2, 1)
    c4.dep = lambda a, c: seam_wait(a, c, c3, 2)
    c2.loader_wait = k1_post_f(auxbase(c1), lambda c: 2 * c.wres if c.wres else 2 * 4)
    if splitk:
        k1q = c2.loader_wait
        def lw2(a, c):
            k1q(a, c); sentinel(a, c)
        c2.loader_wait = lw2
    if prew:
        k1p = c2.loader_wait
        c2.prew = [(WS_H1, 14 << 20)]
        def lw(a, c):
            k1p(a, c); prewrite(a, c)
        c2.loader_wait = lw
    c2.special.setdefault(5, []).append(("post", lw0_cnt(32), 0))
    if c3.share: c4.loader_wait = lambda a, c: a("s_waitcnt vmcnt(8)")
    build([(KNAME, emit_kernel(KNAME, [c1, c2, c3, c4]), 256, 168, 163840)], path)
```

```python
from k9 import *
W = dict(wres=12, NS=4)
O = dict(stfl="nt")
fused("f35_a.s", p1=dict(order="class"), p2=W, p4=O, splitk=True, nocode=True)
fused("f35_b.s", p1=dict(order="class"), p2=W, p4=dict(stfl="sc1"), splitk=True, nocode=True)
fused("f35_c.s", p1=dict(order="class", wtouch=3), p2=W, p4=O, splitk=True, nocode=True)
fused("f35_d.s", p1=dict(order="class"), p2=W, p4=dict(stfl="nt", xsleep=6), splitk=True, nocode=True)
```

```python
from asmlib import *
import math, struct
def f2u(x): return struct.unpack("<I", struct.pack("<f", x))[0]
LOG2E = 1.4426950408889634

WS_O = 4 << 20; WS_H = 8 << 20; WS_H1 = 12 << 20
WS_STATS = 28 << 20
WS_RSP = 29 << 20
WS_CSP = 30 << 20
WS_CS1 = 31 << 20
WS_FLAG = 32 << 20
WS_STAMP = 0xF000000

S_SRDA = 4; S_SRDW = 8; S_SRDO = 12; S_SRDX = 16; S_SRDY = 20
S_WAVE = 24; S_MT = 25; S_NT = 26; S_WR = 27; S_WC = 28
S_SOFA = 29; S_SOFW = 30; S_CNT = 31; S_SLOT = 32; S_DELTA = 33
S_T0 = 34; S_T1 = 35; S_T2 = 36; S_T3 = 37; S_SOFH = 38; S_IR = 39
S_BA = 40; S_BW = 41; S_BH = 42; S_PHI = 43
S_KH = 3
S_STAMP = 50
S_IC = 54; S_LW = 55
S_SRDS = 56
S_EXEC = 60
S_FIT = 62; S_DN = 63
S_G = 64
S_SRDP = 72
PTR = dict(x=76, wqkv=78, wo=80, w1=84, w2=86, out=88, dbg=90, ws=92)
S_KS = 94; S_WA = 95; S_WW = 96; S_TAB = 100; S_HM = 27; S_SIG = 28

class Cfg:
    def __init__(self, **kw):
        self.halo = 0; self.NS = 3; self.bps = 2; self.K = 1024
        self.nodma = self.nomfma = self.noread = False
        self.stamps = False; self.kidx = 0; self.trace = False
        self.xa = 8; self.xb = 4; self.splitk = False
        self.fla = ""; self.flw = ""
        self.prio = 3; self.lprio = 2
        self.rpm = 1; self.read_start = 0
        self.ramp = None
        self.stfl = "sc1"
        self.rot = False; self.perm = 0; self.permoff = 2; self.permr = 1; self.permc = 1
        self.special = {}
        self.fused = False; self.dep = None; self.sig = None
        self.flagiter = None
        self.early = False; self.xrot = 0; self.wres = 0; self.ablk = 0; self.flagshift = 4; self.pollsleep = 2; self.ldsflag = 124000; self.xbar = False; self.sub = 1; self.order = None; self.ones = False
        self.__dict__.update(kw)
    def hook(self, name, *args):
        f = getattr(self, name, None)
        if f: return f(*args)

def srd(a, d, ptr, off, size):
    p = PTR[ptr]
    if off:
        a("s_add_u32 s%d, s%d, 0x%x" % (d, p, off)); a("s_addc_u32 s%d, s%d, 0" % (d + 1, p + 1))
    else:
        a("s_mov_b32 s%d, s%d" % (d, p)); a("s_mov_b32 s%d, s%d" % (d + 1, p + 1))
    a("s_mov_b32 s%d, 0x%x" % (d + 2, size)); a("s_mov_b32 s%d, 0x20000" % (d + 3))

def stamp_w0(a, c, idx):
    t = getattr(c, 'stampv', 128)
    if getattr(c, "dbgstamp", None) is not None:
        if idx == 1 or (idx == 0 and c.kidx): return
        word = 1 + (0 if idx == 0 else 3 * c.kidx + idx - 1)
        L = a.newlabel("Lst")
        a("s_lshl_b32 s%d, s2, 3" % S_STAMP); a("s_add_u32 s%d, s%d, s%d" % (S_STAMP, S_STAMP, S_WAVE))
        a("s_cmp_lg_u32 s%d, %d" % (S_STAMP, 8 * c.dbgstamp)); a("s_cbranch_scc1 %s" % L)
        a("s_memrealtime s[%d:%d]" % (S_STAMP, S_STAMP + 1)); a("s_waitcnt lgkmcnt(0)")
        srd(a, S_SRDS, "dbg", 0, 256)
        a("v_mov_b32 v%d, s%d" % (t, S_STAMP)); a("v_mov_b32 v%d, %d" % (t + 1, 4 * word))
        a("s_mov_b64 exec, 1")
        a("buffer_store_dword v%d, v%d, s[%d:%d], 0 offen sc1" % (t, t + 1, S_SRDS, S_SRDS + 3))
        a("s_mov_b64 exec, -1")
        a.label(L)
        return
    if not c.stamps: return
    L = a.newlabel("Lst")
    a("s_cmp_lg_u32 s%d, 0" % S_WAVE); a("s_cbranch_scc1 %s" % L)
    a("s_memrealtime s[%d:%d]" % (S_STAMP, S_STAMP + 1)); a("s_memtime s[%d:%d]" % (S_STAMP + 2, S_STAMP + 3))
    a("s_waitcnt lgkmcnt(0)")
    for i in range(4): a("v_mov_b32 v%d, s%d" % (t + i, S_STAMP + i))
    a("s_lshl_b32 s%d, s2, 7" % S_STAMP); a("s_add_u32 s%d, s%d, %d" % (S_STAMP, S_STAMP, c.kidx * 512 * 128 + idx * 8))
    a("v_mov_b32 v%d, s%d" % (t + 4, S_STAMP))
    a("s_mov_b64 exec, 1")
    a("buffer_store_dwordx2 v[%d:%d], v%d, s[%d:%d], 0 offen" % (t, t + 1, t + 4, S_SRDS, S_SRDS + 3))
    a("buffer_store_dwordx2 v[%d:%d], v%d, s[%d:%d], 0 offen offset:64" % (t + 2, t + 3, t + 4, S_SRDS, S_SRDS + 3))
    a("s_mov_b64 exec, -1")
    a.label(L)

def trace(a, c):
    if not c.trace: return
    a("s_memtime s[98:99]"); a("s_waitcnt lgkmcnt(0)")
    a("s_mov_b32 m0, s97"); a("v_writelane_b32 v120, s98, m0"); a("s_add_u32 s97, s97, 1"); a("s_min_u32 s97, s97, 63")

def tile_map(a, c):
    xa, xb = c.xa, c.xb
    la, lb = int(math.log2(xa)), int(math.log2(xb))
    a("s_and_b32 s%d, s2, 7" % S_T0); a("s_lshr_b32 s%d, s2, 3" % S_T1)
    a("s_lshr_b32 s%d, s%d, %d" % (S_IR, S_T1, lb)); a("s_and_b32 s%d, s%d, %d" % (S_IC, S_T1, xb - 1))
    if c.splitk and c.samexcd:
        a("s_and_b32 s%d, s%d, 1" % (S_KH, S_T1)); a("s_lshr_b32 s%d, s%d, 3" % (S_IR, S_T1)); a("s_bfe_u32 s%d, s%d, 0x20001" % (S_IC, S_T1))
        a("s_lshr_b32 s%d, s%d, 1" % (S_MT, S_T0)); a("s_lshl2_add_u32 s%d, s%d, s%d" % (S_MT, S_MT, S_IR))
        a("s_and_b32 s%d, s%d, 1" % (S_NT, S_T0)); a("s_lshl2_add_u32 s%d, s%d, s%d" % (S_NT, S_NT, S_IC))
        return
    if c.splitk:
        a("s_and_b32 s%d, s%d, 1" % (S_KH, S_T0)); a("s_lshr_b32 s%d, s%d, 1" % (S_MT, S_T0)); a("s_lshl2_add_u32 s%d, s%d, s%d" % (S_MT, S_MT, S_IR))
        a("s_mov_b32 s%d, s%d" % (S_NT, S_IC))
        return
    gcols = 16 // xb; lg = int(math.log2(gcols))
    a("s_lshr_b32 s%d, s%d, %d" % (S_T2, S_T0, lg)); a("s_and_b32 s%d, s%d, %d" % (S_T3, S_T0, gcols - 1))
    a("s_lshl_b32 s%d, s%d, %d" % (S_MT, S_T2, la)); a("s_lshl_b32 s%d, s%d, %d" % (S_NT, S_T3, lb))
    a("s_add_u32 s%d, s%d, s%d" % (S_MT, S_MT, S_IR)); a("s_add_u32 s%d, s%d, s%d" % (S_NT, S_NT, S_IC))

def abytes(c): return (128 + c.halo) * 128
def wbytes(c): return sum(64 * w * 2 for w in c.segw)
def subbytes(c): return abytes(c) + wbytes(c)
def slotbytes(c): return abytes(c) if c.wres else c.sub * subbytes(c)
def abase(c): return c.wres * wbytes(c)
def nst(c): return c.K // 64 // c.sub
def auxbase(c): return c.NS * slotbytes(c)
def segoffs(c):
    o = 0 if c.wres else abytes(c); r = []
    for w in c.segw:
        r.append(o); o += 64 * w * 2
    return r

def record(a, fn, c):
    t = Asm(); t.lbl = a.lbl
    fn(t, c); a.lbl = t.lbl
    groups = []; cur = None
    for l in t.lines:
        s = l.strip()
        if cur is not None:
            cur.append(s)
            if s in ("s_mov_b32 exec_hi, -1", "s_mov_b64 exec, -1"): groups.append(cur); cur = None
        elif s.startswith("s_mov_b32 exec") or s.startswith("s_mov_b64 exec"):
            cur = [s]
        elif (s.startswith("s_addc") or s.startswith("s_cselect") or s.startswith("s_subb")) and groups:
            groups[-1].append(s)
        else:
            groups.append([s])
    assert cur is None
    return groups

LDSFLAG = 163840 - 4 - 16384 - 2048 + 0
def seam_wait(a, c, prev, phase, part=3):
    if part & 1:
        L0 = a.newlabel("Lsv")
        srd(a, S_SRDP, "ws", WS_FLAG, 16384)
        a("v_mov_b32 v110, 0"); a("v_mov_b32 v111, 1")
        a("s_lshl_b32 s44, s%d, 8" % S_MT); a("s_add_u32 s44, s44, %d" % (phase * 4096))
        if c.splitk:
            a("s_lshl_b32 s%d, s%d, %d" % (S_T1, S_KH, 3 + c.flagshift)); a("s_add_u32 s44, s44, s%d" % S_T1)
        a("v_and_b32 v112, %d, v1" % (7 if c.splitk else 15)); a("v_lshlrev_b32 v112, %d, v112" % c.flagshift)
        a("s_cmp_lg_u32 s%d, 0" % S_LW)
        a("s_barrier")
        a("s_cbranch_scc1 %s" % L0)
        a("s_mov_b64 exec, 1")
        a("buffer_store_dword v111, v110, s[%d:%d], s%d offen sc1" % (S_SRDP, S_SRDP + 3, S_SIG))
        a("s_mov_b64 exec, -1")
        a.label(L0)
    if part & 2:
        L1 = a.newlabel("Lsw")
        a("s_cmp_lg_u32 s%d, 0" % S_LW); a("s_cbranch_scc1 %s" % L1)
        trace(a, c)
        spin(a, "v111", "v112", 44, c.pollsleep)
        a.label(L1)
        a("s_barrier")

def wave_flag(a, phase, sreg, v):
    srd(a, S_SRDP, "ws", WS_FLAG + phase * 4096, 4096)
    a("v_mov_b32 v%d, 0" % v); a("v_mov_b32 v%d, 1" % (v + 1))
    a("s_mov_b64 exec, 1")
    a("buffer_store_dword v%d, v%d, s[%d:%d], s%d offen sc1" % (v + 1, v, S_SRDP, S_SRDP + 3, sreg))
    a("s_mov_b64 exec, -1")
def half_flags_addr(a, phase):
    srd(a, S_SRDP, "ws", WS_FLAG, 16384)
    a("s_lshl_b32 s44, s%d, 8" % S_MT); a("s_lshl_b32 s%d, s%d, 7" % (S_T1, S_KH)); a("s_add_u32 s44, s44, s%d" % S_T1)
    a("s_add_u32 s44, s44, %d" % (phase * 4096))
    a("v_and_b32 v112, 31, v1"); a("v_lshlrev_b32 v112, 2, v112")
def early_wait(a, c):
    L1 = a.newlabel("Lsw"); L2 = a.newlabel("Lsx"); L3 = a.newlabel("Lsy")
    a("v_mov_b32 v113, %d" % c.ldsflag)
    a("s_cmp_lg_u32 s%d, 0" % S_LW); a("s_cbranch_scc1 %s" % L1)
    half_flags_addr(a, 3)
    spin(a, "v111", "v112", 44, c.pollsleep)
    a("v_mov_b32 v111, 1"); a("ds_write_b32 v113, v111")
    a("s_branch %s" % L2)
    a.label(L1)
    a("s_mov_b32 s%d, %d" % (S_DN, SPIN * 4))
    a.label(L3)
    a("s_sleep 1")
    a("ds_read_b32 v111, v113"); a("s_sub_u32 s%d, s%d, 1" % (S_DN, S_DN)); a("s_cbranch_scc1 %s" % L2)
    a("s_waitcnt lgkmcnt(0)")
    a("v_cmp_eq_u32 vcc, 0, v111")
    a("s_cbranch_vccnz %s" % L3)
    a.label(L2)
def late_poll(a, c):
    half_flags_addr(a, 2)
    a("buffer_load_dword v111, v112, s[%d:%d], s44 offen sc1" % (S_SRDP, S_SRDP + 3))
def late_check(a, c):
    L = a.newlabel("Llc")
    a("v_cmp_eq_u32 vcc, 0, v111"); a("s_cbranch_vccz %s" % L)
    spin(a, "v111", "v112", 44, 2)
    a.label(L)

SPIN = 1 << 18
def spin(a, vd, va, soff, sleep=0):
    L = a.newlabel("Lpf"); Le = a.newlabel("Lpe")
    a("s_mov_b32 s%d, %d" % (S_DN, SPIN))
    a.label(L)
    if sleep: a("s_sleep %d" % sleep)
    a("buffer_load_dword %s, %s, s[%d:%d], s%d offen sc1" % (vd, va, S_SRDP, S_SRDP + 3, soff))
    a("s_sub_u32 s%d, s%d, 1" % (S_DN, S_DN))
    a("s_cbranch_scc1 %s" % Le)
    a("s_waitcnt vmcnt(0)")
    a("v_cmp_eq_u32 vcc, 0, %s" % vd)
    a("s_cbranch_vccnz %s" % L)
    a.label(Le)

def blk_pattern(a, d):
    a("v_xor_b32 v5, v4, v3"); a("v_lshrrev_b32 v%d, 2, v5" % d); a("v_lshlrev_b32 v%d, 13, v%d" % (d, d)); a("v_and_b32 v5, 3, v5")
    a("v_lshl_add_u32 v%d, v5, 4, v%d" % (d, d)); a("v_lshl_add_u32 v%d, v2, 6, v%d" % (d, d))
    a("v_xor_b32 v%d, 0x2000, v%d" % (d + 1, d)); a("v_add_u32 v%d, %d, v%d" % (d + 1, 4096 - 512, d + 1))
    a("v_add_u32 v%d, %d, v%d" % (d + 2, 4096 - 1024, d)); a("v_add_u32 v%d, -1024, v%d" % (d + 3, d + 1)); a("v_add_u32 v%d, 4096, v%d" % (d, d))

def loader_setup(a, c):
    W = S_LW
    dmas = []
    if c.ablk:
        blk_pattern(a, 8)
    else:
        a("v_xor_b32 v5, v4, v3"); a("v_mul_u32_u24 v6, %d, v2" % c.lda); a("v_lshl_add_u32 v8, v5, 4, v6")
        a("v_xor_b32 v9, 64, v8"); a("v_add_u32 v9, %d, v9" % (8 * c.lda - 1024))
        a("v_add_u32 v10, %d, v8" % (16 * c.lda - 2048)); a("v_add_u32 v11, %d, v9" % (16 * c.lda - 2048))
    for j in range(4):
        dmas.append(dict(t="A", v=8 + j, srd=S_SRDA, soff=S_SOFA, m0c=abase(c) + c.halo * 128, m0w=4096, imm=1024 * j, half=False, fl=c.fla))
    vn = 12
    if c.ablk:
        a("s_mul_i32 s%d, s%d, %d" % (S_SOFA, S_MT, c.ablk * 8192)); a("s_lshl_b32 s%d, s%d, 11" % (S_T0, W)); a("s_add_u32 s%d, s%d, s%d" % (S_SOFA, S_SOFA, S_T0))
    else:
        a("s_lshl_b32 s%d, s%d, 2" % (S_T0, S_MT)); a("s_add_u32 s%d, s%d, s%d" % (S_T0, S_T0, W))
        a("s_mul_i32 s%d, s%d, %d" % (S_SOFA, S_T0, 32 * c.lda))
    if c.halo:
        a("s_lshl_b32 s%d, s%d, 1" % (S_T1, W))
        a("v_add_u32 v5, s%d, v4" % S_T1); a("v_xor_b32 v5, v5, v3"); a("v_and_b32 v5, 7, v5")
        a("v_lshl_add_u32 v%d, v5, 4, v6" % vn)
        a("s_lshl_b32 s%d, s%d, 5" % (S_T0, S_MT)); a("s_add_u32 s%d, s%d, s%d" % (S_T0, S_T0, W))
        a("s_sub_i32 s%d, s%d, 4" % (S_T0, S_T0)); a("s_max_i32 s%d, s%d, 0" % (S_T0, S_T0))
        a("s_mul_i32 s%d, s%d, %d" % (S_SOFH, S_T0, 4 * c.lda))
        dmas.append(dict(t="A", v=vn, srd=S_SRDA, soff=S_SOFH, m0c=0, m0w=512, imm=0, half=True, fl=c.fla))
        vn += 1
    a("v_and_b32 v5, 1, v4"); a("v_lshlrev_b32 v5, 1, v5"); a("v_xor_b32 v5, v5, v3")
    a("v_mul_u32_u24 v6, %d, v2" % c.ldb); a("v_lshl_add_u32 v6, v5, 4, v6")
    a("v_xor_b32 v7, 64, v6"); a("v_add_u32 v7, %d, v7" % (8 * c.ldb - 1024))
    if getattr(c, "oddalign", False):
        a("s_and_b32 s%d, s%d, 1" % (S_T1, S_NT)); a("s_lshl_b32 s%d, s%d, 6" % (S_T1, S_T1))
        a("v_add_u32 v6, s%d, v6" % S_T1); a("v_add_u32 v7, s%d, v7" % S_T1)
    so = segoffs(c)
    for s, w in enumerate(c.segw):
        if w == 64:
            for j in range(2):
                if c.col0[s] == 0: v = 6 + j
                else:
                    v = vn; vn += 1
                    a("v_add_u32 v%d, %d, v%d" % (v, c.col0[s] * 2, 6 + j))
                dmas.append(dict(t="W", v=v, srd=S_SRDW, soff=S_SOFW, m0c=so[s], m0w=2048, imm=1024 * j, half=False, fl=c.flw))
        else:
            a("v_lshrrev_b32 v5, 2, v1"); a("v_mul_u32_u24 v5, %d, v5" % c.ldb)
            a("v_lshrrev_b32 v%d, 5, v1" % vn); a("v_lshlrev_b32 v%d, 1, v%d" % (vn, vn)); a("v_xor_b32 v%d, v%d, v1" % (vn, vn))
            a("v_and_b32 v%d, 3, v%d" % (vn, vn)); a("v_lshl_add_u32 v%d, v%d, 4, v5" % (vn, vn))
            if getattr(c, "oddalign", False):
                a("s_bitcmp1_b32 s%d, 0" % S_NT); a("s_cselect_b32 s%d, 0, %d" % (S_T1, c.col0[s] * 2))
                a("v_add_u32 v%d, s%d, v%d" % (vn, S_T1, vn))
            else:
                a("v_add_u32 v%d, %d, v%d" % (vn, c.col0[s] * 2, vn))
            dmas.append(dict(t="W", v=vn, srd=S_SRDW, soff=S_SOFW, m0c=so[s], m0w=1024, imm=0, half=False, fl=c.flw))
            vn += 1
    a("s_mul_i32 s%d, s%d, %d" % (S_SOFW, W, 16 * c.ldb))
    a("s_mul_i32 s%d, s%d, %d" % (S_T0, S_NT, c.cstep * 2)); a("s_add_u32 s%d, s%d, s%d" % (S_SOFW, S_SOFW, S_T0))
    if c.splitk:
        a("s_mul_i32 s%d, s%d, %d" % (S_T0, S_KH, c.K * 256 if c.ablk else c.K * 2)); a("s_add_u32 s%d, s%d, s%d" % (S_SOFA, S_SOFA, S_T0))
        a("s_mul_i32 s%d, s%d, %d" % (S_T0, S_KH, c.K * c.ldb)); a("s_add_u32 s%d, s%d, s%d" % (S_SOFW, S_SOFW, S_T0))
    if c.sub == 2:
        ex = []
        for d in dmas:
            e = dict(d); e["v"] = vn; vn += 1; e["m0c"] = d["m0c"] + subbytes(c)
            a("v_add_u32 v%d, %d, v%d" % (e["v"], (16384 if c.ablk else 128) if d["t"] == "A" else 64 * c.ldb, d["v"]))
            ex.append(e)
        dmas += ex
    assert vn <= 24
    groups = []
    for d in dmas:
        key = (d["m0c"], d["m0w"])
        if key not in groups: groups.append(key)
        d["g"] = groups.index(key)
    assert len(groups) <= 6
    for g, (m0c, m0w) in enumerate(groups):
        a("s_mul_i32 s%d, s%d, %d" % (S_G + g, W, m0w))
        if m0c: a("s_add_u32 s%d, s%d, %d" % (S_G + g, S_G + g, m0c))
    a("s_mov_b32 s%d, s%d" % (S_BA, S_SOFA)); a("s_mov_b32 s%d, s%d" % (S_BW, S_SOFW))
    if c.halo:
        a("s_mov_b32 s%d, s%d" % (S_BH, S_SOFH))
        if c.ones:
            a("s_cmp_eq_u32 s%d, 0" % W); a("s_cselect_b32 s%d, 0xffffff00, -1" % S_HM)
    if c.order == "rot": a("s_add_u32 s%d, s%d, s%d" % (S_PHI, S_MT, S_NT))
    elif c.order == "class":
        a("s_add_u32 s%d, s%d, s%d" % (S_PHI, S_IR, S_IC)); a("s_and_b32 s%d, s%d, 3" % (S_PHI, S_PHI))
        for cl in range(4):
            tb = class_table(nst(c), c.permoff, cl)
            if cl == 0:
                a("s_mov_b32 s%d, 0x%x" % (S_TAB, tb & 0xffffffff)); a("s_mov_b32 s%d, 0x%x" % (S_TAB + 1, tb >> 32))
            else:
                a("s_cmp_eq_u32 s%d, %d" % (S_PHI, cl))
                a("s_cselect_b32 s%d, 0x%x, s%d" % (S_TAB, tb & 0xffffffff, S_TAB)); a("s_cselect_b32 s%d, 0x%x, s%d" % (S_TAB + 1, tb >> 32, S_TAB + 1))
    if c.order == "class" and c.xrot:
        a("s_and_b32 s%d, s2, 7" % S_PHI); a("s_mul_i32 s%d, s%d, %d" % (S_PHI, S_PHI, c.xrot))
    c.dmas = dmas; c.ndma = len(dmas)

def class_table(N, po, cl):
    M = N - po
    key = lambda X: X - 4.5 if (X % 4 == cl and X >= 4) else X
    seq = list(range(po)) + [po + X for X in sorted(range(M), key=key)]
    tb = 0
    for p, s in enumerate(seq):
        code = {-1: 0, 0: 1, 3: 2, 4: 3}[s - p]
        tb |= code << (2 * p)
    assert sorted(seq) == list(range(N)) and tb < (1 << 64)
    return tb

def loader_run(a, c):
    NS = c.NS; NST = nst(c); SL = slotbytes(c); dmas = c.dmas; n = len(dmas)
    ka, kw = (16384 if c.ablk else 128) * c.sub, 64 * c.sub * c.ldb
    def head(lock=False):
        if c.order == "rot":
            a("s_add_u32 s%d, s%d, s%d" % (S_WA, S_KS, S_PHI)); a("s_and_b32 s%d, s%d, %d" % (S_WA, S_WA, NST - 1))
        elif c.order == "class" and not lock:
            a("s_and_b32 s%d, s%d, 1" % (S_WA, S_TAB)); a("s_and_b32 s%d, s%d, 2" % (S_WW, S_TAB)); a("s_lshl1_add_u32 s%d, s%d, s%d" % (S_WA, S_WW, S_WA))
            a("s_add_u32 s%d, s%d, s%d" % (S_WA, S_WA, S_KS)); a("s_sub_u32 s%d, s%d, 1" % (S_WA, S_WA))
            a("s_lshr_b64 s[%d:%d], s[%d:%d], 2" % (S_TAB, S_TAB + 1, S_TAB, S_TAB + 1))
            if c.xrot:
                a("s_add_u32 s%d, s%d, s%d" % (S_WA, S_WA, S_PHI)); a("s_and_b32 s%d, s%d, %d" % (S_WA, S_WA, NST - 1))
            if c.early:
                a("s_sub_u32 s%d, s%d, 16" % (S_T2, S_WA)); a("s_mul_i32 s%d, s%d, 43" % (S_WW, S_T2)); a("s_lshr_b32 s%d, s%d, 7" % (S_WW, S_WW))
                a("s_mul_i32 s%d, s%d, 3" % (S_T3, S_WW)); a("s_sub_u32 s%d, s%d, s%d" % (S_T2, S_T2, S_T3))
                a("s_mul_i32 s%d, s%d, 7" % (S_WW, S_WW)); a("s_add_u32 s%d, s%d, 2" % (S_WW, S_WW))
                a("s_lshr_b32 s%d, s%d, 2" % (S_T3, S_WA)); a("s_mul_i32 s%d, s%d, 7" % (S_T3, S_T3))
                a("s_cmp_lt_u32 s%d, 16" % S_WA); a("s_cselect_b32 s%d, s%d, s%d" % (S_WW, S_T3, S_WW))
                a("s_and_b32 s%d, s%d, 3" % (S_T3, S_WA)); a("s_cmp_lt_u32 s%d, 16" % S_WA); a("s_cselect_b32 s%d, s%d, s%d" % (S_T2, S_T3, S_T2))
                a("s_and_b32 s%d, s%d, 2" % (S_T3, S_T2)); a("s_add_u32 s%d, s%d, s%d" % (S_WA, S_WW, S_T2)); a("s_add_u32 s%d, s%d, s%d" % (S_WA, S_WA, S_T3))
        else:
            a("s_mov_b32 s%d, s%d" % (S_WA, S_KS))
        a("s_mul_i32 s%d, s%d, %d" % (S_WW, S_WA, kw)); a("s_mul_i32 s%d, s%d, %d" % (S_WA, S_WA, ka))
        a("s_add_u32 s%d, s%d, s%d" % (S_SOFA, S_BA, S_WA)); a("s_add_u32 s%d, s%d, s%d" % (S_SOFW, S_BW, S_WW))
        if c.halo: a("s_add_u32 s%d, s%d, s%d" % (S_SOFH, S_BH, S_WA))
        a("s_add_u32 s%d, s%d, 1" % (S_KS, S_KS))
    def tail():
        a("s_add_u32 s%d, s%d, %d" % (S_SLOT, S_SLOT, SL)); a("s_cmp_eq_u32 s%d, %d" % (S_SLOT, NS * SL)); a("s_cselect_b32 s%d, 0, s%d" % (S_SLOT, S_SLOT))
    def setm0(d): a("s_add_u32 m0, s%d, s%d" % (S_SLOT, S_G + d["g"]))
    def one(d, cur):
        if c.nodma: return d["g"]
        if d["g"] != cur:
            setm0(d)
            if not d["half"]: a("s_nop 0")
        if d["half"]:
            a("s_mov_b32 exec_hi, 0")
            if c.ones: a("s_mov_b32 exec_lo, s%d" % S_HM)
        a("buffer_load_dwordx4 v%d, s[%d:%d], s%d offen offset:%d %s lds" % (d["v"], d["srd"], d["srd"] + 3, d["soff"], d["imm"], d["fl"]))
        if d["half"]: a("s_mov_b64 exec, -1")
        return d["g"]
    def emit(i0, i1, fill=(), m0ok=True):
        fill = list(fill); k = i1 - i0
        cur = dmas[i0 % n]["g"] if m0ok else None
        for t, i in enumerate(range(i0, i1)):
            j = i % n
            cur = one(dmas[j], cur)
            if j == n - 1:
                tail(); head(); cur = None
            take = -(-len(fill) // (k - t))
            for g in fill[:take]:
                for l in g: a(l)
            fill = fill[take:]
        if dmas[i1 % n]["g"] != cur: setm0(dmas[i1 % n])
    ops = []
    a("s_mov_b32 s%d, 0" % S_SLOT); a("s_mov_b32 s%d, 0" % S_KS)
    if c.wres:
        wd = [d for d in dmas if d["t"] == "W"]
        dmas[:] = [d for d in dmas if d["t"] == "A"]; n = len(dmas)
        WB = wbytes(c)
        a("s_mov_b64 s[48:49], s[%d:%d]" % (S_TAB, S_TAB + 1))
        L = a.newlabel("Lwr"); a("s_mov_b32 s%d, %d" % (S_CNT, c.wres)); a.label(L)
        head(); cur = None
        for d in wd: cur = one(d, cur)
        a("s_add_u32 s%d, s%d, %d" % (S_SLOT, S_SLOT, WB))
        a("s_sub_u32 s%d, s%d, 1" % (S_CNT, S_CNT)); a("s_cmp_lg_u32 s%d, 0" % S_CNT); a("s_cbranch_scc1 %s" % L)
        for j in range(NST - c.wres):
            head(); a("s_mov_b32 s%d, s%d" % (16 + j, S_SOFW))
            def wlate(a, c, j=j):
                a("s_add_u32 m0, s%d, %d" % (S_G + wd[0]["g"], j * WB)); a("s_nop 0")
                for d in wd: a("buffer_load_dwordx4 v%d, s[%d:%d], s%d offen offset:%d %s lds" % (d["v"], d["srd"], d["srd"] + 3, 16 + j, d["imm"], d["fl"]))
            c.special.setdefault(j + 1, []).append(("post", wlate, len(wd)))
        a("s_mov_b64 s[%d:%d], s[48:49]" % (S_TAB, S_TAB + 1))
        c.hook("loader_wait", a, c)
        if c.dep: c.dep(a, c)
        trace(a, c)
        a("s_mov_b32 s%d, 0" % S_SLOT); a("s_mov_b32 s%d, 0" % S_KS)
        ramp = [NS * n]; pos = ramp[0]
        head(); emit(0, pos, m0ok=False)
        ops = [(i // n, 1) for i in range(pos)]
    elif c.dep is None:
        ramp = c.ramp or [2 * n]
        pos = ramp[0]
        head(); emit(0, pos, m0ok=False)
        ops = [(i // n, 1) for i in range(pos)]
    else:
        P = 2
        for typ in ("W", "A"):
            if typ == "W" and getattr(c, "wlate", False):
                c.hook("loader_wait", a, c)
                c.dep(a, c, 1)
            if typ == "A":
                if getattr(c, "wlate", False): c.dep(a, c, 2)
                else:
                    c.hook("loader_wait", a, c)
                    c.dep(a, c)
                trace(a, c)
                a("s_mov_b32 s%d, 0" % S_SLOT); a("s_mov_b32 s%d, 0" % S_KS)
            for st in range(P):
                head(lock=(typ == "W")); cur = None
                for d in dmas:
                    if d["t"] == typ:
                        cur = one(d, cur)
                        if typ == "A": ops.append((st, 1))
                tail()
        head(); setm0(dmas[0])
        pos = P * n; ramp = [pos] + list(getattr(c, 'dramp', []))
    m0dirty = False
    for (when, fn, nvm) in c.special.get(-1, []):
        fn(a, c); ops.append((None, nvm))
    plan = []
    for s in range(NST):
        idx = max(i for i, (st, k) in enumerate(ops) if st == s)
        w = sum(k for st, k in ops[idx + 1:])
        limit = min((NS - 1 if s == 0 else s - 1 + NS) + 1, NST) * n
        want = ramp[s + 1] if s + 1 < len(ramp) else (n if NS == 3 else 2 * n)
        k = max(0, min(want, limit - pos))
        sp = c.special.get(s, [])
        if getattr(c, "every", None) and k: ops.append((None, c.every[1]))
        for (when, fn, nvm) in sp:
            if when != "post": ops.append((None, nvm))
        for i in range(pos, pos + k): ops.append((i // n, 1))
        for (when, fn, nvm) in sp:
            if when == "post": ops.append((None, nvm))
        plan.append((min(w, 63), pos % n, k, s if sp else None))
        pos += k
    i = 0
    while i < NST:
        j = i
        while j + 1 < NST and plan[j + 1] == plan[i] and plan[i][2] % n == 0: j += 1
        w, p0, k, sp = plan[i]
        def body(loopctl=()):
            trace(a, c)
            a("s_waitcnt vmcnt(%d)" % w)
            trace(a, c)
            a("s_barrier")
            trace(a, c)
            acts = c.special.get(sp, [])
            for (when, fn, nvm) in acts:
                if when == "pre": fn(a, c)
            fill = record(a, c.every[0], c) if getattr(c, "every", None) and k else []
            for (when, fn, nvm) in acts:
                if when == "weave": fill += record(a, fn, c)
            if k: emit(p0, p0 + k, fill, m0ok=not (c.trace or c.wres))
            else:
                for g in fill:
                    for l in g: a(l)
            for (when, fn, nvm) in acts:
                if when == "post": fn(a, c)
        if j > i:
            L = a.newlabel("Lld"); a("s_mov_b32 s%d, %d" % (S_CNT, j - i + 1)); a.label(L)
            body()
            a("s_sub_u32 s%d, s%d, 1" % (S_CNT, S_CNT)); a("s_cmp_lg_u32 s%d, 0" % S_CNT); a("s_cbranch_scc1 %s" % L)
        else: body()
        i = j + 1
    trace(a, c)
    a("s_barrier")
    trace(a, c)

def trace_dump(a, c):
    if not c.trace: return
    trace(a, c)
    srd(a, S_SRDS, "ws", WS_STAMP + (1 << 20), 1 << 20)
    a("s_lshl_b32 s97, s2, 2"); a("s_add_u32 s97, s97, s%d" % S_LW); a("s_lshl_b32 s97, s97, 8"); a("s_add_u32 s97, s97, %d" % (c.kidx << 18))
    a("v_lshlrev_b32 v121, 2, v1")
    a("buffer_store_dword v120, v121, s[%d:%d], s97 offen" % (S_SRDS, S_SRDS + 3))
    a("s_mov_b32 s97, 0")

V_ADDR = 2
V_ACC = 16

def compute_setup(a, c):
    a("v_and_b32 v16, 15, v1"); a("v_lshrrev_b32 v17, 4, v1")
    a("v_bfe_u32 v18, v16, 1, 3"); a("v_xor_b32 v18, v18, v17"); a("v_lshlrev_b32 v18, 4, v18")
    a("v_lshl_add_u32 v19, v16, 7, v18")
    for i, fn in enumerate(c.aregs):
        fn(a, S_T0)
        if c.wres: a("s_add_u32 s%d, s%d, %d" % (S_T0, S_T0, abase(c)))
        a("v_add_u32 v%d, s%d, v19" % (V_ADDR + 2 * i, S_T0)); a("v_xor_b32 v%d, 64, v%d" % (V_ADDR + 2 * i + 1, V_ADDR + 2 * i))
    nA = 2 * len(c.aregs)
    a("v_bfe_u32 v18, v1, 2, 2"); a("v_lshl_add_u32 v18, v17, 3, v18")
    a("v_bfe_u32 v19, v1, 1, 1"); a("v_and_b32 v20, 1, v1"); a("v_lshlrev_b32 v20, 3, v20")
    a("v_bfe_u32 v21, v1, 3, 2"); a("v_lshlrev_b32 v21, 1, v21"); a("v_xor_b32 v21, v21, v19")
    a("v_lshl_add_u32 v21, v21, 4, v20"); a("v_lshl_add_u32 v21, v18, 7, v21")
    if 32 in c.segw:
        a("v_bfe_u32 v17, v1, 4, 1"); a("v_lshlrev_b32 v17, 1, v17"); a("v_xor_b32 v17, v17, v19")
        a("v_lshl_add_u32 v17, v17, 4, v20"); a("v_lshl_add_u32 v17, v18, 6, v17")
    so = segoffs(c)
    for i, (seg, segwc, pc, pwc) in enumerate(c.wregs):
        src = 21 if c.segw[seg] == 64 else 17
        d = V_ADDR + nA + i
        assert d < 16
        if callable(pwc):
            pwc(a, S_T0); a("v_xor_b32 v%d, s%d, v%d" % (d, S_T0, src))
        elif pwc:
            a("s_mul_i32 s%d, s%d, %d" % (S_T0, S_WC, pwc * 32))
            if pc: a("s_add_u32 s%d, s%d, %d" % (S_T0, S_T0, pc * 32))
            a("v_xor_b32 v%d, s%d, v%d" % (d, S_T0, src))
        else: a("v_xor_b32 v%d, %d, v%d" % (d, pc * 32, src))
        if segwc:
            a("s_mul_i32 s%d, s%d, %d" % (S_T0, S_WC, segwc * 8192)); a("s_add_u32 s%d, s%d, %d" % (S_T0, S_T0, so[seg]))
            a("v_add_u32 v%d, s%d, v%d" % (d, S_T0, d))
        else: a("v_add_u32 v%d, %d, v%d" % (d, so[seg], d))
    c.nA = nA; c.naddr = nA + len(c.wregs)

def frag_regs(c):
    MB = len(c.mblk); NB = len(c.nblk); kpb = 2 if c.wres else c.sub
    per = (MB + NB) * 4 * kpb
    return (lambda s, kk, mb: s * per + (kk * (MB + NB) + mb) * 4), (lambda s, kk, nb: s * per + (kk * (MB + NB) + MB + nb) * 4), 2 * per

def fr(i, n):
    return ar(i, n) if i < 88 else vr(140 + i - 88, n)

def reads(c, s, blk):
    fa, fw, _ = frag_regs(c); out = []
    lst = [(0, 0, 0), (1, 1, 0)] if c.wres else [(0, blk, 0)] if c.sub == 1 else [(0, 0, blk * subbytes(c)), (1, 1, blk * subbytes(c))]
    for kk, kabs, so in lst:
        for mb, (ap, row) in enumerate(c.mblk):
            out.append("ds_read_b128 %s, v%d offset:%d" % (fr(fa(s, kk, mb), 4), V_ADDR + 2 * ap + kabs, so + row * 128))
        for nb, (wreg, immseg, rs) in enumerate(c.nblk):
            for h in range(2):
                out.append("ds_read_b64_tr_b16 %s, v%d offset:%d" % (fr(fw(s, kk, nb) + 2 * h, 2), V_ADDR + c.nA + wreg, so + immseg + (32 * kabs + 4 * h) * rs))
    return [] if c.noread else out

def mfmas(c, s):
    fa, fw, _ = frag_regs(c); out = []
    for kk in range(2 if c.wres else c.sub):
        for i, (mb, nb, swap) in enumerate(c.mf):
            acc = vr(V_ACC + 4 * i, 4)
            A, B = fr(fw(s, kk, nb), 4), fr(fa(s, kk, mb), 4)
            if swap: A, B = B, A
            out.append("v_mfma_f32_16x16x32_bf16 %s, %s, %s, %s" % (acc, A, B, acc))
    return [] if c.nomfma else out

def weave(main, first, rest, rpm, start=0):
    out = []; q = list(first); r = list(rest)
    for i, m in enumerate(main):
        out.append(m)
        if i < start: continue
        if q:
            for _ in range(rpm):
                if q: out.append(q.pop(0))
        elif r:
            out.append(r.pop(0))
            if len(r) > len(main) - i - 1: out.append(r.pop(0))
    return out + q + r

def compute_loop(a, c):
    NST = nst(c); SL = slotbytes(c); NS = c.NS
    for i in range(0, len(c.mf) * 4, 2): a("v_mov_b64 v[%d:%d], 0" % (V_ACC + i, V_ACC + i + 1))
    a("s_mov_b32 s%d, 0" % S_SLOT); a("s_mov_b32 s%d, %d" % (S_T2, SL)); a("s_mov_b32 s%d, %d" % (S_T3, (-(NS - 1) * SL) & 0xffffffff))
    if c.prio: a("s_setprio %d" % c.prio)
    adv_s = ["s_add_u32 s%d, s%d, %d" % (S_SLOT, S_SLOT, SL), "s_cmp_eq_u32 s%d, %d" % (S_SLOT, NS * SL),
             "s_cselect_b32 s%d, s%d, s%d" % (S_DELTA, S_T3, S_T2), "s_cselect_b32 s%d, 0, s%d" % (S_SLOT, S_SLOT)]
    adv_v = ["v_add_u32 v%d, s%d, v%d" % (V_ADDR + i, S_DELTA, V_ADDR + i) for i in range(c.naddr)]
    cnt = ["s_sub_u32 s%d, s%d, 1" % (S_CNT, S_CNT), "s_cmp_lg_u32 s%d, 0" % S_CNT]
    L = a.newlabel("Lc")
    flag = []
    if c.flagiter:
        Lf, Lb = a.newlabel("Lfg"), a.newlabel("Lfb")
        a("s_mov_b32 s%d, %d" % (S_FIT, c.flagiter[0]))
        flag = ["s_cmp_eq_u32 s%d, s%d\ns_cbranch_scc1 %s\n%s:" % (S_CNT, S_FIT, Lf, Lb)]
    hookA = []
    if getattr(c, "hookA", None):
        c.LA = (a.newlabel("Lha"), a.newlabel("Lhb"))
        hookA = ["s_cmp_eq_u32 s%d, %d\ns_cbranch_scc1 %s\n%s:" % (S_CNT, NST, c.LA[0], c.LA[1])]
    def emit(l):
        for x in l: a(x)
    if c.dep and not c.early:
        a("s_waitcnt vmcnt(0)"); a("s_barrier"); a("s_barrier")
    stamp_w0(a, c, 1)
    a("s_barrier")
    stamp_w0(a, c, 2)
    if c.wres:
        WB = wbytes(c)
        a("s_mov_b32 s40, 0"); a("s_mov_b32 s41, %d" % WB); a("s_mov_b32 s42, %d" % ((-(c.wres - 1) * WB) & 0xffffffff))
        adv_w = ["s_add_u32 s40, s40, %d" % WB, "s_cmp_eq_u32 s40, %d" % (c.wres * WB), "s_cselect_b32 s43, s42, s41", "s_cselect_b32 s40, 0, s40"]
        adv = adv_s + adv_v[:c.nA] + adv_w + [x.replace("s%d," % S_DELTA, "s43,") for x in adv_v[c.nA:]]
        emit(reads(c, 0, 0)); emit(adv)
        a("s_mov_b32 s%d, %d" % (S_CNT, NST // 2))
        a.label(L)
        for s in range(2):
            a("s_waitcnt lgkmcnt(0)"); a("s_barrier")
            emit(weave(mfmas(c, s), reads(c, 1 - s, 0), adv + (cnt if s == 1 else []), c.rpm, c.read_start))
        a("s_cbranch_scc1 %s" % L)
    else:
        emit(reads(c, 0, 0))
        a("s_mov_b32 s%d, %d" % (S_CNT, NST))
        late = [x for i, x in enumerate(adv_v) if c.sub == 1 and i < c.nA and i % 2 == 1]
        early = [x for x in adv_v if x not in late]
        peel = getattr(c, "peel", 0)
        for part in ((0, 1) if peel else (0,)):
            if part: L = a.newlabel("Lc")
            a.label(L)
            hk = part == 0
            cn = ["s_sub_u32 s%d, s%d, 1" % (S_CNT, S_CNT), "s_cmp_lg_u32 s%d, %d" % (S_CNT, NST - peel if (peel and part == 0) else 0)]
            a("s_waitcnt lgkmcnt(0)")
            emit(weave(mfmas(c, 0), reads(c, 1, 1), adv_s + early, c.rpm, c.read_start) + (hookA if hk else []))
            a("s_waitcnt lgkmcnt(0)"); a("s_barrier")
            emit(weave(mfmas(c, 1), reads(c, 0, 0), late + (flag if hk else []) + cn, c.rpm, c.read_start))
            a("s_cbranch_scc1 %s" % L)
    a("s_waitcnt lgkmcnt(0)")
    if c.prio: a("s_setprio 0")
    if c.xbar and not getattr(c, "own_xbar", False): a("s_barrier")
    a("s_nop 7")
    stamp_w0(a, c, 3)
    if c.flagiter:
        c.outofline = (Lf, Lb)

def out_of_line(a, c):
    if getattr(c, "hookA", None):
        a.label(c.LA[0]); c.hookA(a, c); a("s_branch %s" % c.LA[1])
    if c.flagiter:
        Lf, Lb = c.outofline
        a.label(Lf); c.flagiter[1](a, c); a("s_branch %s" % Lb)

def signal(a, c):
    a("s_waitcnt vmcnt(0)")
    if c.sig is not None: a("s_barrier")

def sig_addr(a, c):
    a("s_lshl_b32 s%d, s%d, 8" % (S_SIG, S_MT)); a("s_lshl_b32 s%d, s%d, %d" % (S_T0, S_NT, c.flagshift)); a("s_add_u32 s%d, s%d, s%d" % (S_SIG, S_SIG, S_T0))
    a("s_add_u32 s%d, s%d, %d" % (S_SIG, S_SIG, c.sig * 4096))

def emit_kernel(name, phases):
    a = Asm(); a.lbl = phases[0].kidx * 1000
    a.lines.append(kernel_header(name).rstrip())
    a("s_cmp_ge_u32 s2, 256"); a("s_cbranch_scc1 %s_end" % name)
    a("s_load_dwordx16 s[76:91], s[0:1], 0"); a("s_load_dwordx2 s[92:93], s[0:1], 64")
    a("v_lshrrev_b32 v1, 6, v0")
    tile_map(a, phases[0])
    a("v_readfirstlane_b32 s%d, v1" % S_WAVE)
    a("v_and_b32 v1, 63, v0")
    a("s_cmp_ge_u32 s%d, 4" % S_WAVE); a("s_cbranch_scc1 %s_loader" % name)
    for i, c in enumerate(phases):
        a.label("%s_c" % c.name)
        if i: tile_map(a, c)
        a("s_lshr_b32 s%d, s%d, %d" % (S_WR, S_WAVE, c.wc_bits)); a("s_and_b32 s%d, s%d, %d" % (S_WC, S_WAVE, (1 << c.wc_bits) - 1))
        if i == 0:
            a("s_setprio 3")
            a("s_waitcnt lgkmcnt(0)")
            c.hook("compute_first", a, c)
            a("s_setprio 0")
            if c.stamps: srd(a, S_SRDS, "ws", WS_STAMP, 1 << 20)
        compute_setup(a, c)
        stamp_w0(a, c, 0)
        c.hook("compute_pre", a, c)
        compute_loop(a, c)
        a.label("%s_epi" % c.name)
        c.epilogue(a, c)
        if c.stamps or getattr(c, "dbgstamp", None) is not None:
            if getattr(c, "eflag", None) is None: a("s_waitcnt vmcnt(0)")
            stamp_w0(a, c, 4)

    a("s_endpgm")
    for c in phases: out_of_line(a, c)
    a.label("%s_loader" % name)
    a("s_sub_u32 s%d, s%d, 4" % (S_LW, S_WAVE))
    a("v_lshrrev_b32 v2, 3, v1"); a("v_and_b32 v3, 7, v1"); a("v_lshrrev_b32 v4, 4, v1")
    for i, c in enumerate(phases):
        a.label("%s_l" % c.name)
        if i:
            phases[i - 1].hook("loader_share", a, phases[i - 1])
            sig_addr(a, phases[i - 1]); tile_map(a, c)
        if c.trace:
            a("s_mov_b32 s97, 0"); a("v_mov_b32 v120, 0"); trace(a, c)
        loader_setup(a, c)
        if i == 0:
            a("s_waitcnt lgkmcnt(0)")
            if c.lprio: a("s_setprio %d" % c.lprio)
        srd(a, S_SRDA, *c.A); srd(a, S_SRDW, *c.W)
        if i and phases[i - 1].xbar and not getattr(phases[i - 1], "loader_share", None): a("s_barrier")
        loader_run(a, c)
        if i == len(phases) - 1:
            if c.xbar: a("s_barrier")
            c.hook("loader_post", a, c)
        trace_dump(a, c)
    a.label("%s_end" % name)
    a("s_endpgm")
    a.label("%s_last" % name)
    return a.text()

def code_touch(a, start, end, vt, maxbytes):
    L = a.newlabel("Lpc")
    a("s_getpc_b64 s[48:49]")
    a.label(L)
    a("s_sub_u32 s48, s48, %s-%s" % (L, start)); a("s_subb_u32 s49, s49, 0")
    n = -(-maxbytes // 8192)
    for t in range(n):
        a("v_lshlrev_b32 v%d, 7, v1" % vt)
        if t: a("v_add_u32 v%d, %d, v%d" % (vt, 8192 * t, vt))
        a("v_min_u32 v%d, %s-%s-4, v%d" % (vt, end, start, vt))
        a("global_load_dword v%d, v%d, s[48:49]" % (vt + 1, vt))
    return n

def pk(x): return "v[%d:%d]" % (x, x + 1)
def pack_pair(a, x, y, t):
    a("v_cvt_pk_bf16_f32 v%d, v%d, v%d" % (t, x, x + 1)); a("v_cvt_pk_bf16_f32 v%d, v%d, v%d" % (t + 1, x + 2, x + 3))
    a("v_cvt_pk_bf16_f32 v%d, v%d, v%d" % (t + 2, y, y + 1)); a("v_cvt_pk_bf16_f32 v%d, v%d, v%d" % (t + 3, y + 2, y + 3))
def swap_pair(a, t):
    a("v_permlane32_swap_b32 v%d, v%d" % (t, t + 2)); a("v_permlane32_swap_b32 v%d, v%d" % (t + 1, t + 3))
    a("s_nop 0")
    a("v_permlane16_swap_b32 v%d, v%d" % (t, t + 2)); a("v_permlane16_swap_b32 v%d, v%d" % (t + 1, t + 3))
def acc_of(c, mb, nb):
    for i, (m, n, s) in enumerate(c.mf):
        if m == mb and n == nb: return V_ACC + 4 * i
    raise KeyError

def build(kernels, path):
    hdr = "".join("; @launch kernel=%s grid=(256,1,1) block=(512,1,1) lds=%d\n" % (k[0], k[4]) for k in kernels)
    if len(kernels) == 1 and kernels[0][0].startswith("sequential"):
        hdr = "; @launch grid=(256,1,1) block=(512,1,1) lds=%d\n" % kernels[0][4]
    s = hdr + '.amdgcn_target "amdgcn-amd-amdhsa--gfx950"\n.text\n'
    for k in kernels: s += k[1]
    s += '.section .rodata,"a"\n'
    for k in kernels: s += kernel_desc(k[0], k[2], k[3])
    open(path, "w").write(s)
```

```python
from g10 import *

def rows_wr(mult, add=0):
    def f(a, d):
        a("s_mul_i32 s%d, s%d, %d" % (d, S_WR, mult * 128))
        if add: a("s_add_u32 s%d, s%d, %d" % (d, d, add * 128))
    return f
def rows_zero(a, d): a("s_mov_b32 s%d, 0" % d)

def trlane(a, d, t):
    a("v_bfe_u32 v%d, v1, 4, 1" % t); a("v_lshlrev_b32 v%d, 3, v%d" % (t, t))
    a("v_bfe_u32 v%d, v1, 5, 1" % (t + 1)); a("v_lshl_add_u32 v%d, v%d, 2, v%d" % (t, t + 1, t))
    a("v_bfe_u32 v%d, v1, 2, 2" % (t + 1)); a("v_add_u32 v%d, v%d, v%d" % (t, t, t + 1))
    a("v_bfe_u32 v%d, v1, 3, 2" % (t + 1)); a("v_lshlrev_b32 v%d, 1, v%d" % (t + 1, t + 1))
    a("v_bfe_u32 v%d, v1, 1, 1" % (t + 2)); a("v_xor_b32 v%d, v%d, v%d" % (t + 1, t + 1, t + 2))
    a("v_and_b32 v%d, 1, v1" % (t + 2)); a("v_lshlrev_b32 v%d, 3, v%d" % (t + 2, t + 2))
    a("v_lshl_add_u32 v%d, v%d, 4, v%d" % (t + 1, t + 1, t + 2)); a("v_lshl_add_u32 v%d, v%d, 7, v%d" % (d, t, t + 1))

def reduce4(a, X):
    a("s_nop 1")
    a("v_permlane32_swap_b32 v%d, v%d" % (X[0], X[2])); a("v_permlane32_swap_b32 v%d, v%d" % (X[1], X[3])); a("s_nop 0")
    a("v_add_f32 v%d, v%d, v%d" % (X[0], X[0], X[2])); a("v_add_f32 v%d, v%d, v%d" % (X[1], X[1], X[3])); a("s_nop 1")
    a("v_permlane16_swap_b32 v%d, v%d" % (X[0], X[1])); a("s_nop 0")
    a("v_add_f32 v%d, v%d, v%d" % (X[0], X[0], X[1]))

def finish_stats(a, s, q, t):
    a("v_mul_f32 v%d, 0x%x, v%d" % (s, f2u(1.0 / 1024), s)); a("v_mul_f32 v%d, 0x%x, v%d" % (q, f2u(1.0 / 1024), q))
    a("v_fma_f32 v%d, -v%d, v%d, v%d" % (q, s, s, q)); a("v_max_f32 v%d, 0, v%d" % (q, q))
    a("v_cvt_pk_bf16_f32 v%d, v%d, v%d" % (t, s, q))
    a("v_lshlrev_b32 v%d, 16, v%d" % (t + 1, t)); a("v_and_b32 v%d, 0xffff0000, v%d" % (q, t))
    a("v_add_f32 v%d, 0x%x, v%d" % (q, f2u(1e-5), q)); a("v_cvt_pk_bf16_f32 v%d, v%d, v%d" % (t, q, q)); a("v_and_b32 v%d, 0xffff0000, v%d" % (q, t))
    a("v_sqrt_f32 v%d, v%d" % (q, q)); a("s_nop 0"); a("v_cvt_pk_bf16_f32 v%d, v%d, v%d" % (t, q, q)); a("v_and_b32 v%d, 0xffff0000, v%d" % (q, t))
    a("v_rcp_f32 v%d, v%d" % (s, q)); a("v_sub_f32 v%d, 0, v%d" % (q, t + 1))

def flat_touch(a, c, ptr, nbytes, vt):
    srd(a, S_SRDP, ptr, 0, nbytes)
    per = nbytes // 1024
    a("s_lshl_b32 s%d, s2, 2" % S_T0); a("s_add_u32 s%d, s%d, s%d" % (S_T0, S_T0, S_LW)); a("s_mul_i32 s%d, s%d, %d" % (S_T0, S_T0, per))
    a("v_min_u32 v%d, %d, v1" % (vt, per // 128 - 1)); a("v_lshlrev_b32 v%d, 7, v%d" % (vt, vt))
    a("buffer_load_dword v%d, v%d, s[%d:%d], s%d offen" % (vt + 1, vt, S_SRDP, S_SRDP + 3, S_T0))
def tail_pf(a, c):
    for (ptr, nb) in c.tail_pf: flat_touch(a, c, ptr, nb, 98)
    for cp in c.codepf: code_touch(a, *cp)
def n_tail(c): return len(c.tail_pf) + sum(-(-cp[3] // 8192) for cp in c.codepf)

def cnt_add(a, word, sreg):
    a("s_mov_b32 s%d, 1" % sreg)
    a("s_atomic_add s%d, s[%d:%d], %d" % (sreg, PTR["dbg"], PTR["dbg"] + 1, 4 * word))
def cnt_poll(word, v=44):
    def f(a, c):
        srd(a, S_SRDP, "dbg", 0, 256)
        a("v_mov_b32 v%d, %d" % (v + 2, 4 * word))
        a("buffer_load_dword v%d, v%d, s[%d:%d], 0 offen sc1" % (v, v + 2, S_SRDP, S_SRDP + 3))
    return f
def cnt_check(a, v=44):
    L = a.newlabel("Lpo"); Ld = a.newlabel("Lpd")
    a("s_mov_b32 s%d, %d" % (S_DN, SPIN))
    a.label(L)
    a("v_cmp_gt_u32 vcc, 0x100, v%d" % v)
    a("s_cbranch_vccz %s" % Ld)
    a("s_sub_u32 s%d, s%d, 1" % (S_DN, S_DN)); a("s_cbranch_scc1 %s" % Ld)
    a("s_sleep 4")
    a("buffer_load_dword v%d, v%d, s[%d:%d], 0 offen sc1" % (v, v + 2, S_SRDP, S_SRDP + 3))
    a("s_waitcnt vmcnt(0)")
    a("s_branch %s" % L)
    a.label(Ld)

AUX1_W1 = 2048
XCH = 98304
def k1_setup(a, c):
    srd(a, S_SRDX, "ws", WS_RSP, 2048 * 8)
    a("v_mov_b32 v46, 0x3f803f80"); a("v_and_b32 v47, 31, v1"); a("v_lshlrev_b32 v47, 2, v47")
    a("ds_write_b32 v47, v46"); a("ds_write_b32 v47, v46 offset:%d" % slotbytes(c))
    a("v_add_u32 v47, %d, v47" % (2 * slotbytes(c))); a("ds_write_b32 v47, v46")
    a("s_waitcnt lgkmcnt(0)")
XR = 128
def rows_load(a, c):
    srd(a, S_SRDX, "x", 0, 4 << 20)
    a("s_lshl_b32 s42, s2, 2"); a("s_add_u32 s42, s42, s%d" % S_WAVE); a("s_lshl_b32 s41, s42, 12"); a("s_lshl_b32 s42, s42, 4")
    a("v_lshlrev_b32 v144, 4, v1")
    for i in range(4): a("buffer_load_dwordx4 v[%d:%d], v144, s[%d:%d], s41 offen offset:%d" % (XR + 4 * i, XR + 3 + 4 * i, S_SRDX, S_SRDX + 3, 1024 * i))
def rows_pub(a, c):
    if c.wtouch:
        k0 = c.wtouch * 64
        per = (1024 - k0) * 48 // 1024
        srd(a, S_SRDP, "wqkv", 0, 6 << 20)
        a("s_mul_i32 s41, s42, %d" % (per * 8)); a("s_add_u32 s41, s41, %d" % (k0 * 6144))
        a("v_min_u32 v8, %d, v1" % (per - 1)); a("v_lshlrev_b32 v8, 7, v8")
        a("buffer_load_dword v167, v8, s[%d:%d], s41 offen" % (S_SRDP, S_SRDP + 3))
    if c.slowt:
        srd(a, S_SRDP, "wqkv", 0, 6 << 20)
        a("s_lshr_b32 s41, s2, 3"); a("s_lshl_b32 s41, s41, 2"); a("s_add_u32 s41, s41, s%d" % S_WAVE); a("s_mul_i32 s41, s41, %d" % (8 * 6144))
        a("s_and_b32 s40, s2, 2"); a("s_lshl_b32 s40, s40, 9"); a("s_add_u32 s41, s41, s40"); a("s_add_u32 s41, s41, 384")
        a("s_bitcmp1_b32 s2, 0"); a("s_cselect_b32 s41, 0x1000000, s41")
        a("v_min_u32 v8, 23, v1"); a("v_lshlrev_b32 v8, 11, v8")
        a("buffer_load_dword v167, v8, s[%d:%d], s41 offen" % (S_SRDP, S_SRDP + 3))
    a("s_waitcnt vmcnt(%d)" % (1 if c.wtouch or c.slowt else 0))
    for d in range(8):
        for r in range(2):
            S, Q, t, x = 8 + 4 * r, 10 + 4 * r, 144 + 2 * r, XR + 8 * r + d
            a("v_lshlrev_b32 v%d, 16, v%d" % (t, x)); a("v_and_b32 v%d, 0xffff0000, v%d" % (t + 1, x))
            if d == 0:
                a("v_mov_b64 %s, %s" % (pk(S), pk(t))); a("v_pk_mul_f32 %s, %s, %s" % (pk(Q), pk(t), pk(t)))
            else:
                a("v_pk_add_f32 %s, %s, %s" % (pk(S), pk(S), pk(t))); a("v_pk_fma_f32 %s, %s, %s, %s" % (pk(Q), pk(t), pk(t), pk(Q)))
    for S in (8, 12, 10, 14): a("v_add_f32 v%d, v%d, v%d" % (S, S, S + 1))
    srd(a, S_SRDX, "ws", WS_RSP, 2048 * 8)
    a("v_permlane32_swap_b32 v8, v12"); a("v_permlane32_swap_b32 v10, v14"); a("s_nop 0")
    a("v_add_f32 v8, v8, v12"); a("v_add_f32 v9, v10, v14"); a("s_nop 0")
    a("v_mov_b32 v10, v8"); a("v_mov_b32 v11, v9"); a("s_nop 1")
    a("v_permlane16_swap_b32 v8, v10"); a("v_permlane16_swap_b32 v9, v11"); a("s_nop 0")
    a("v_add_f32 v8, v8, v10"); a("v_add_f32 v9, v9, v11")
    for sh in ("row_ror:1", "row_ror:2", "row_ror:4", "row_ror:8"):
        a("s_nop 1")
        a("v_add_f32_dpp v8, v8, v8 %s row_mask:0xf bank_mask:0xf" % sh); a("v_add_f32_dpp v9, v9, v9 %s row_mask:0xf bank_mask:0xf" % sh)
    finish_stats(a, 8, 9, 10)
    a("v_lshrrev_b32 v10, 5, v1"); a("v_lshlrev_b32 v10, 3, v10")
    a("s_mov_b32 exec_lo, 1"); a("s_mov_b32 exec_hi, 1")
    a("buffer_store_dwordx2 v[8:9], v10, s[%d:%d], s42 offen sc1" % (S_SRDX, S_SRDX + 3))
    if c.fused:
        srd(a, S_SRDP, "ws", WS_FLAG, 16384)
        a("s_mov_b64 exec, 15")
        a("v_mov_b32 v12, 0"); a("v_lshlrev_b32 v13, 2, v1")
        a("buffer_store_dword v12, v13, s[%d:%d], s42 offen sc1" % (S_SRDP, S_SRDP + 3))
    a("s_mov_b64 exec, -1")
    a("s_nop 3")
def k1_drain(a, c): a("s_waitcnt vmcnt(0)")
def lw0_cnt(word):
    def f(a, c):
        L = a.newlabel("Lc1f")
        a("s_cmp_lg_u32 s%d, 0" % S_LW); a("s_cbranch_scc1 %s" % L)
        cnt_add(a, word, S_T0)
        a.label(L)
    return f
def k1_prep(a, c):
    trlane(a, 24, 64)
    a("s_mul_i32 s%d, s%d, 36" % (S_T0, S_LW)); a("v_add_u32 v33, s%d, v1" % S_T0)
    a("s_lshl_b32 s%d, s%d, 7" % (S_T1, S_MT)); a("s_sub_i32 s%d, s%d, 16" % (S_T1, S_T1))
    a("v_add_u32 v34, s%d, v33" % S_T1); a("v_max_i32 v34, 0, v34"); a("v_lshlrev_b32 v34, 3, v34")
    a("v_lshlrev_b32 v33, 2, v33"); a("v_add_u32 v33, %d, v33" % auxbase(c))
    a("s_xor_b32 s%d, s2, %d" % (S_T0, c.w1flip)); a("s_lshl_b32 s%d, s%d, 2" % (S_T0, S_T0)); a("s_add_u32 s%d, s%d, s%d" % (S_T0, S_T0, S_LW))
    a("s_mul_hi_u32 s46, s%d, %d" % (S_T0, (1 << 32) // 56 + 1)); a("s_mul_i32 s%d, s46, 56" % S_T1); a("s_sub_u32 s47, s%d, s%d" % (S_T0, S_T1))
    a("s_mul_i32 s44, s46, %d" % (64 * 7168)); a("s_lshl_b32 s%d, s47, 7" % S_T1); a("s_add_u32 s44, s44, s%d" % S_T1)
    a("v_and_b32 v96, 1, v4"); a("v_lshlrev_b32 v96, 1, v96"); a("v_xor_b32 v96, v96, v3")
    a("v_mul_u32_u24 v97, 7168, v2"); a("v_lshl_add_u32 v96, v96, 4, v97"); a("v_xor_b32 v97, 64, v96")
def k1_tail(a, c):
    cnt_check(a)
    a("buffer_load_dwordx2 v[36:37], v34, s[%d:%d], 0 offen sc1" % (S_SRDX, S_SRDX + 3))
    srd(a, S_SRDW, "w1", 0, 1024 * 7168)
    a("s_lshl_b32 s%d, s%d, 13" % (S_T1, S_LW)); a("s_add_u32 s%d, s%d, %d" % (S_T1, S_T1, auxbase(c) + AUX1_W1))
    for i in range(8):
        a("s_mov_b32 m0, s%d" % S_T1); a("s_add_u32 s%d, s%d, 1024" % (S_T1, S_T1))
        a("buffer_load_dwordx4 v%d, s[%d:%d], s44 offen lds" % (96 + (i & 1), S_SRDW, S_SRDW + 3))
        if i < 7: a("s_add_u32 s44, s44, %d" % (8 * 7168))
    tail_pf(a, c)
def k1_fin(a, c):
    a("s_waitcnt vmcnt(%d)" % (8 + n_tail(c)))
    a("s_mov_b32 exec_hi, 15")
    a("ds_write_b32 v33, v36 offset:%d" % c.aux[0]); a("ds_write_b32 v33, v37 offset:%d" % c.aux[1])
    a("s_mov_b32 exec_hi, -1")
    a("s_waitcnt lgkmcnt(0)")
def k1_post_f(base, nafter):
    def f(a, c):
        srd(a, S_SRDY, "ws", WS_CS1, 16 * 3584 * 4)
        a("s_lshl_b32 s%d, s%d, 13" % (S_T1, S_LW)); a("s_add_u32 s%d, s%d, %d" % (S_T1, S_T1, base + AUX1_W1))
        for p in range(4):
            a("v_xor_b32 v%d, %d, v24" % (28 + p, 32 * p)); a("v_add_u32 v%d, s%d, v%d" % (28 + p, S_T1, 28 + p))
        for r in range(32, 40): a("v_mov_b32 v%d, 0" % r)
        a("s_mov_b32 s70, 0x3f803f80")
        a("s_waitcnt vmcnt(%d)" % nafter(c))
        for q in range(4):
            for p in range(4): a("ds_read_b64_tr_b16 v[%d:%d], v%d offset:%d" % (48 + 8 * q + 2 * p, 49 + 8 * q + 2 * p, 28 + p, 2048 * q))
        a("s_waitcnt lgkmcnt(0)")
        for q in range(4):
            for p in range(4):
                for d in range(2): a("v_dot2c_f32_bf16 v%d, s70, v%d" % (32 + 2 * p + d, 48 + 8 * q + 2 * p + d))
        a("s_nop 2")
        for p in range(4): a("v_add_f32 v%d, v%d, v%d" % (32 + 2 * p, 32 + 2 * p, 33 + 2 * p))
        reduce4(a, [32, 34, 36, 38])
        a("s_mul_i32 s%d, s46, %d" % (S_T0, 3584 * 4)); a("s_lshl_b32 s%d, s47, 8" % S_T1); a("s_add_u32 s%d, s%d, s%d" % (S_T0, S_T0, S_T1))
        a("v_lshlrev_b32 v28, 2, v1")
        a("buffer_store_dword v32, v28, s[%d:%d], s%d offen sc1" % (S_SRDY, S_SRDY + 3, S_T0))
    return f

BIAS = 148
def pre_k1(a, c):
    srd(a, S_SRDO, *c.O)
    a("v_and_b32 v12, 15, v1"); a("v_lshrrev_b32 v13, 4, v1")
    a("v_lshlrev_b32 v14, 2, v13"); a("v_sub_u32 v14, v12, v14")
    a("s_mov_b32 s%d, 0x%x" % (S_T0, f2u(-1e30))); a("v_mov_b32 v12, s%d" % S_T0)
    for half in range(2):
        for r in range(4):
            a("v_add_u32 v13, %d, v14" % ((16 if half == 0 else 0) - r)); a("v_and_b32 v13, 0xfffffff1, v13")
            a("v_cmp_ne_u32 vcc, 0, v13"); a("s_nop 1")
            a("v_cndmask_b32 v%d, 0, v12, vcc" % (BIAS + 4 * half + r))
    a("s_or_b32 s%d, s%d, s%d" % (S_T1, S_MT, S_WR)); a("s_cmp_eq_u32 s%d, 0" % S_T1); a("s_cselect_b32 s%d, s%d, 0" % (S_T1, S_T0))
    for r in range(4): a("v_add_f32 v%d, s%d, v%d" % (BIAS + 8 + r, S_T1, BIAS + r))
    base = auxbase(c); CSB = base + c.aux[2]
    a("v_lshlrev_b32 v12, 4, v1")
    a("s_mul_i32 s%d, s%d, 6144" % (S_T0, S_WAVE)); a("s_add_u32 s%d, s%d, %d" % (S_T0, S_T0, XCH))
    a("s_xor_b32 s%d, s%d, 2" % (S_T1, S_WAVE)); a("s_mul_i32 s%d, s%d, 6144" % (S_T1, S_T1)); a("s_add_u32 s%d, s%d, %d" % (S_T1, S_T1, XCH))
    a("v_add_u32 v160, s%d, v12" % S_T0)
    a("s_cmp_eq_u32 s%d, 0" % S_WR)
    for i, (own, s0, s1) in enumerate(((True, 0, 3), (False, 0, 2), (True, 1, 5), (False, 1, 4))):
        a("s_add_u32 s40, s%d, %d" % (S_T0 if own else S_T1, 1024 * s0)); a("s_add_u32 s41, s%d, %d" % (S_T1, 1024 * s1))
        a("s_cmp_eq_u32 s%d, 0" % S_WR); a("s_cselect_b32 s40, s40, s41")
        a("v_add_u32 v%d, s40, v12" % (161 + i))
    a("s_lshl_b32 s%d, s%d, 7" % (S_T0, S_WC)); a("s_lshl_b32 s%d, s%d, 6" % (S_T1, S_WR)); a("s_add_u32 s%d, s%d, s%d" % (S_T0, S_T0, S_T1)); a("s_add_u32 s%d, s%d, %d" % (S_T0, S_T0, CSB))
    a("v_lshrrev_b32 v13, 4, v1"); a("v_lshlrev_b32 v13, 4, v13"); a("v_add_u32 v165, s%d, v13" % S_T0)
    a("v_and_b32 v13, 15, v1"); a("v_lshlrev_b32 v13, 2, v13"); a("v_add_u32 v166, s%d, v13" % S_T0)

def epi_k1(a, c):
    base = auxbase(c); AUX_A, AUX_NM, AUX_CS = c.aux
    assert (base + AUX_CS) % 128 == 0
    hq, hk, hv = acc_of(c, 0, 0), acc_of(c, 0, 2), acc_of(c, 0, 4)
    A = lambda b, nb: (acc_of(c, b, nb) if b else {2: hk, 3: hq, 4: hv, 5: V_ACC + 108}[nb])
    for i, r in enumerate((hk, hv, A(4, 2), A(4, 3), A(4, 4), A(4, 5))): a("ds_write_b128 v160, v[%d:%d] offset:%d" % (r, r + 3, 1024 * i))
    a("s_mov_b32 exec_lo, 0x10001"); a("s_mov_b32 exec_hi, 0x10001")
    a("ds_write_b128 v165, v[%d:%d]" % (hq, hq + 3)); a("ds_write_b128 v165, v[%d:%d] offset:256" % (hk, hk + 3))
    a("s_mov_b64 exec, 0xffff")
    a("ds_write_b32 v166, v%d offset:512" % hv)
    a("s_mov_b64 exec, -1")
    a("v_and_b32 v2, 15, v1"); a("v_lshrrev_b32 v3, 4, v1")
    a("s_lshl_b32 s%d, s%d, 8" % (S_T0, S_WR)); a("s_add_u32 s%d, s%d, %d" % (S_T0, S_T0, base))
    a("v_lshlrev_b32 v4, 2, v2"); a("v_add_u32 v4, s%d, v4" % S_T0)
    a("v_lshlrev_b32 v5, 4, v3"); a("v_add_u32 v5, s%d, v5" % S_T0)
    a("v_xor_b32 v6, 64, v165"); a("v_xor_b32 v7, 64, v166")
    AN = 128; CQ = 140; CK = 160; CV = 138
    for mb in (1, 2, 3, 4, 0): a("ds_read2_b32 %s, v4 offset0:%d offset1:%d" % (pk(AN + 2 * mb), AUX_A // 4 + 16 * mb, AUX_NM // 4 + 16 * mb))
    a("ds_read_b128 v[8:11], v5 offset:%d" % AUX_A); a("ds_read_b128 v[12:15], v5 offset:%d" % AUX_NM)
    a("s_waitcnt lgkmcnt(7)")
    a("s_barrier")
    a("ds_read_b128 v[%d:%d], v165" % (CQ, CQ + 3)); a("ds_read_b128 v[%d:%d], v6" % (CQ + 4, CQ + 7))
    for i, nb in enumerate((2, 3, 4, 5)): a("ds_read_b128 v[%d:%d], v%d" % (A(0, nb), A(0, nb) + 3, 161 + i))
    a("ds_read_b32 v%d, v166 offset:512" % CV); a("ds_read_b32 v%d, v7 offset:512" % (CV + 1))
    a("ds_read_b128 v[%d:%d], v165 offset:256" % (CK, CK + 3)); a("ds_read_b128 v[%d:%d], v6 offset:256" % (CK + 4, CK + 7))
    def norm_rowlane(x, an, cs):
        for p in range(2): a("v_pk_fma_f32 %s, %s, %s, %s op_sel:[0,1,0] op_sel_hi:[1,1,1]" % (pk(x + 2 * p), pk(cs + 2 * p), pk(an), pk(x + 2 * p)))
    def scale_rowlane(x, an):
        for p in range(2): a("v_pk_mul_f32 %s, %s, %s op_sel_hi:[1,0]" % (pk(x + 2 * p), pk(x + 2 * p), pk(an)))
    def packqk(b, nb0, cs):
        x0, x1 = A(b, nb0), A(b, nb0 + 1)
        norm_rowlane(x0, AN + 2 * b, cs); norm_rowlane(x1, AN + 2 * b, cs + 4); scale_rowlane(x0, AN + 2 * b); scale_rowlane(x1, AN + 2 * b)
        pack_pair(a, x0, x1, x0)
    QP = {b: A(b, 0) for b in range(1, 5)}; KP = {b: A(b, 2) for b in range(5)}
    a("s_waitcnt lgkmcnt(8)")
    for b in range(1, 5): packqk(b, 0, CQ)
    a("s_waitcnt lgkmcnt(0)")
    for b in (1, 2, 3, 4, 0): packqk(b, 2, CK)
    S0 = {b: A(b, 1) for b in range(1, 5)}; S1 = {b: A(b, 3) for b in range(1, 5)}
    for b in (2, 3, 4, 1):
        a("v_mfma_f32_16x16x32_bf16 %s, %s, %s, 0" % (vr(S1[b], 4), vr(KP[b], 4), vr(QP[b], 4)))
        a("v_mfma_f32_16x16x32_bf16 %s, %s, %s, 0" % (vr(S0[b], 4), vr(KP[b - 1], 4), vr(QP[b], 4)))
    VP = [128, 158]
    VP = [128, 160 - 2]
    VB = [(8, 12), (140, 144)]
    a("s_mov_b32 s64, 0x%x" % f2u(32 ** -0.5 * LOG2E)); a("s_mov_b32 s65, s64")
    def vblock(b):
        va, vn = VB[b & 1]
        if b < 4:
            na, nn = VB[(b + 1) & 1]
            a("ds_read_b128 v[%d:%d], v5 offset:%d" % (na, na + 3, AUX_A + 64 * (b + 1))); a("ds_read_b128 v[%d:%d], v5 offset:%d" % (nn, nn + 3, AUX_NM + 64 * (b + 1)))
        a("s_waitcnt lgkmcnt(%d)" % (2 if b < 4 else 0))
        xs = [A(b, 4), A(b, 5)]
        for cc in range(2):
            for p in range(2):
                sel = "op_sel_hi:[1,0,1]" if cc == 0 else "op_sel:[0,1,0] op_sel_hi:[1,1,1]"
                a("v_pk_fma_f32 %s, %s, %s, %s %s" % (pk(xs[cc] + 2 * p), pk(vn + 2 * p), pk(CV), pk(xs[cc] + 2 * p), sel))
        for cc in range(2):
            for p in range(2): a("v_pk_mul_f32 %s, %s, %s" % (pk(xs[cc] + 2 * p), pk(xs[cc] + 2 * p), pk(va + 2 * p)))
    def vpack(b):
        xs = [A(b, 4), A(b, 5)]
        for cc in range(2):
            a("v_cvt_pk_bf16_f32 v%d, v%d, v%d" % (VP[cc] + 2 * b, xs[cc], xs[cc] + 1))
            a("v_cvt_pk_bf16_f32 v%d, v%d, v%d" % (VP[cc] + 2 * b + 1, xs[cc] + 2, xs[cc] + 3))
    vblock(0)
    for b in (1, 2, 3, 4):
        vblock(b); vpack(b)
    for b in range(1, 5):
        for h, s in enumerate((S0[b], S1[b])):
            bias = BIAS + 8 if (b == 1 and h == 0) else BIAS + 4 * h
            for p in range(2): a("v_pk_fma_f32 %s, %s, s[64:65], %s" % (pk(s + 2 * p), pk(s + 2 * p), pk(bias + 2 * p)))
    vpack(0)
    M, T = 8, 12
    for st in range(4):
        for b in range(1, 5):
            s, u = S0[b], S1[b]; m = M + b - 1
            a(["v_max3_f32 v%d, v%d, v%d, v%d" % (m, s, s + 1, s + 2), "v_max3_f32 v%d, v%d, v%d, v%d" % (m, m, s + 3, u),
               "v_max3_f32 v%d, v%d, v%d, v%d" % (m, m, u + 1, u + 2), "v_max_f32 v%d, v%d, v%d" % (m, m, u + 3)][st])
    def xreduce(op):
        for sw in ("v_permlane16_swap_b32", "v_permlane32_swap_b32"):
            for b in range(4): a("v_mov_b32 v%d, v%d" % (T + b, M + b))
            for b in range(4): a("%s v%d, v%d" % (sw, M + b, T + b))
            for b in range(4): a("%s v%d, v%d, v%d" % (op, M + b, M + b, T + b))
    xreduce("v_max_f32")
    def bsel(b):
        m = M + b - 1
        return (pk(m & ~1), "op_sel:[0,1] op_sel_hi:[1,1]" if m & 1 else "op_sel_hi:[1,0]")
    for b in range(1, 5):
        r, sel = bsel(b)
        for s in (S0[b], S1[b]):
            for p in range(2): a("v_pk_add_f32 %s, %s, %s %s neg_lo:[0,1] neg_hi:[0,1]" % (pk(s + 2 * p), pk(s + 2 * p), r, sel))
    for b in range(1, 5):
        for s in (S0[b], S1[b]):
            for j in range(4): a("v_exp_f32 v%d, v%d" % (s + j, s + j))
    U = 136
    for b in range(1, 5): a("v_pk_add_f32 %s, %s, %s" % (pk(U + 4 * b), pk(S0[b]), pk(S0[b] + 2)))
    for b in range(1, 5): a("v_pk_add_f32 %s, %s, %s" % (pk(U + 2 + 4 * b), pk(S1[b]), pk(S1[b] + 2)))
    for b in range(1, 5): a("v_pk_add_f32 %s, %s, %s" % (pk(U + 4 * b), pk(U + 4 * b), pk(U + 2 + 4 * b)))
    for b in range(1, 5): a("v_add_f32 v%d, v%d, v%d" % (M + b - 1, U + 4 * b, U + 1 + 4 * b))
    xreduce("v_add_f32")
    for b in range(4): a("v_rcp_f32 v%d, v%d" % (M + b, M + b))
    a("s_lshl_b32 s%d, s%d, 5" % (S_T0, S_MT)); a("s_lshl_b32 s%d, s%d, 1" % (S_T1, S_NT))
    for b in range(1, 5):
        r, sel = bsel(b)
        for s in (S0[b], S1[b]):
            for p in range(2): a("v_pk_mul_f32 %s, %s, %s %s" % (pk(s + 2 * p), pk(s + 2 * p), r, sel))
        pack_pair(a, S0[b], S1[b], QP[b])
    a("s_add_u32 s%d, s%d, s%d" % (S_T0, S_T0, S_T1)); a("s_add_u32 s%d, s%d, s%d" % (S_T0, S_T0, S_WC))
    for b in range(1, 5):
        for cc, o in enumerate((S0[b], S1[b])):
            a("v_mfma_f32_16x16x32_bf16 %s, %s, %s, 0" % (vr(o, 4), vr(VP[cc] + 2 * (b - 1), 4), vr(QP[b], 4)))
    a("s_lshl_b32 s%d, s%d, 1" % (S_T0, S_T0)); a("s_add_u32 s%d, s%d, s%d" % (S_T0, S_T0, S_WR)); a("s_lshl_b32 s%d, s%d, 12" % (S_T0, S_T0))
    a("s_lshl_b32 s%d, s%d, 1" % (S_T1, S_WR)); a("v_xor_b32 v3, s%d, v3" % S_T1)
    a("v_lshlrev_b32 v4, 6, v2"); a("v_lshl_add_u32 v4, v3, 4, v4")
    for b in range(1, 5): pack_pair(a, S0[b], S1[b], KP[b])
    for b in range(1, 5):
        swap_pair(a, KP[b])
        a("buffer_store_dwordx4 v[%d:%d], v4, s[%d:%d], s%d offen offset:%d %s" % (KP[b], KP[b] + 3, S_SRDO, S_SRDO + 3, S_T0, 1024 * (b - 1), c.stfl))

def pairAB(flip):
    def f(a, d):
        a("s_lshl_b32 s%d, s%d, 1" % (d, S_WC)); a("s_add_u32 s%d, s%d, s%d" % (d, d, S_WR))
        if flip: a("s_xor_b32 s%d, s%d, 1" % (d, d))
        a("s_lshl_b32 s%d, s%d, 5" % (d, d))
    return f
def cfg_p1(**kw):
    c = Cfg(name="p1", K=1024, lda=2048, ldb=6144, halo=16, ones=True,
            A=("x", 0, 4 << 20), W=("wqkv", 0, 1024 * 6144), O=("ws", WS_O, 4 << 20),
            segw=[64, 64, 64], col0=[0, 1024, 2048], cstep=64, wc_bits=1,
            aregs=[rows_wr(64, 16), rows_zero], mblk=[(1, 0), (0, 0), (0, 16), (0, 32), (0, 48)],
            wregs=[(0, 0, 0, pairAB(0)), (0, 0, 0, pairAB(1))],
            nblk=[(0, 0, 128), (1, 0, 128), (0, 8192, 128), (1, 8192, 128), (0, 16384, 128), (1, 16384, 128)],
            xa=8, xb=4, NS=3, order="rot", aux=(0, 576, 1152), own_xbar=True, stampv=8, wtouch=0, w1flip=1, slowt=0,
            tail_pf=[("wo", 2 << 20)], codepf=[], ramp=[17, 12, 12, 12, 13])
    c.mf = []
    for base, sw in ((0, False), (2, False), (4, True)):
        c.mf += [(mb, base, sw) for mb in range(5)] + [(mb, base + 1, sw) for mb in range(1, 5)]
    c.epilogue = epi_k1; c.compute_pre = pre_k1; c.compute_first = rows_load; c.hookA = rows_pub
    c.__dict__.update(kw)
    c.xbar = True
    c.special = {-1: [("post", k1_setup, 0)], 5: [("post", lw0_cnt(0), 0)], 13: [("weave", k1_prep, 0)], 12: [("pre", cnt_poll(0), 1)],
                 14: [("post", k1_tail, 9 + n_tail(c))], 15: [("post", k1_fin, 0)]}
    c.flagiter = (16 - 3, k1_drain)
    return c

def res_tail(a, c):
    srd(a, S_SRDX, *c.R)
    if c.splitk:
        blk_pattern(a, 30)
        a("s_lshl_b32 s%d, s%d, 3" % (S_T0, S_MT)); a("s_add_u32 s%d, s%d, s%d" % (S_T0, S_T0, S_NT)); a("s_lshl_b32 s%d, s%d, 1" % (S_T0, S_T0))
        a("s_and_b32 s%d, s%d, 1" % (S_T1, S_LW)); a("s_add_u32 s%d, s%d, s%d" % (S_T0, S_T0, S_T1)); a("s_lshl_b32 s%d, s%d, 14" % (S_T0, S_T0))
        a("s_and_b32 s%d, s%d, 2" % (S_T1, S_LW)); a("s_add_u32 s%d, s%d, s%d" % (S_T1, S_T1, S_KH)); a("s_lshl_b32 s%d, s%d, 11" % (S_T1, S_T1))
        a("s_add_u32 s%d, s%d, s%d" % (S_T0, S_T0, S_T1))
    elif c.rblk:
        blk_pattern(a, 30)
        a("s_lshl_b32 s%d, s%d, 4" % (S_T0, S_MT)); a("s_add_u32 s%d, s%d, s%d" % (S_T0, S_T0, S_NT)); a("s_lshl_b32 s%d, s%d, 14" % (S_T0, S_T0))
        a("s_lshl_b32 s%d, s%d, 11" % (S_T1, S_LW)); a("s_add_u32 s%d, s%d, s%d" % (S_T0, S_T0, S_T1))
    else:
        a("v_xor_b32 v5, v4, v3"); a("v_lshlrev_b32 v30, 11, v2"); a("v_lshl_add_u32 v30, v5, 4, v30")
        a("v_xor_b32 v31, 64, v30"); a("v_add_u32 v31, %d, v31" % (8 * 2048 - 1024))
        a("v_add_u32 v32, %d, v30" % (16 * 2048 - 2048)); a("v_add_u32 v33, %d, v31" % (16 * 2048 - 2048))
        a("s_lshl_b32 s%d, s%d, 2" % (S_T0, S_MT)); a("s_add_u32 s%d, s%d, s%d" % (S_T0, S_T0, S_LW)); a("s_lshl_b32 s%d, s%d, 16" % (S_T0, S_T0))
        a("s_lshl_b32 s%d, s%d, 7" % (S_T1, S_NT)); a("s_add_u32 s%d, s%d, s%d" % (S_T0, S_T0, S_T1))
    a("s_lshl_b32 s%d, s%d, 12" % (S_T1, S_LW)); a("s_add_u32 m0, s%d, %d" % (S_T1, c.resb)); a("s_nop 0")
    for j in range(4): a("buffer_load_dwordx4 v%d, s[%d:%d], s%d offen offset:%d %s lds" % (30 + j, S_SRDX, S_SRDX + 3, S_T0, 1024 * j, c.flr))
    tail_pf(a, c)
def res_fin(a, c): a("s_waitcnt vmcnt(%d)" % n_tail(c))
def pre_k24(a, c):
    srd(a, S_SRDO, *c.O)
    if c.dostats: srd(a, S_SRDY, "ws", WS_STATS, 16 * 2048 * 8)
    a("v_and_b32 v80, 15, v1"); a("v_lshrrev_b32 v81, 4, v1")
    if c.oblk:
        a("s_lshl_b32 s%d, s%d, 4" % (S_T0, S_MT)); a("s_add_u32 s%d, s%d, s%d" % (S_T0, S_T0, S_NT)); a("s_lshl_b32 s%d, s%d, 14" % (S_T0, S_T0))
        a("s_lshl_b32 s%d, s%d, 11" % (S_T1, S_WR)); a("s_add_u32 s64, s%d, s%d" % (S_T0, S_T1)); a("s_add_u32 s65, s64, 8192")
        a("v_lshlrev_b32 v82, 6, v80"); a("v_lshl_add_u32 v84, v81, 4, v82")
    else:
        if c.splitk:
            keep_rows(a, S_T1)
            a("s_lshl_b32 s%d, s%d, 14" % (S_T0, S_MT)); a("s_add_u32 s%d, s%d, s%d" % (S_T0, S_T0, S_T1)); a("s_lshl_b32 s%d, s%d, 4" % (S_T0, S_T0))
            a("s_lshl_b32 s%d, s%d, 1" % (S_T1, S_NT)); a("s_add_u32 s%d, s%d, s%d" % (S_T1, S_T1, S_WC)); a("s_lshl_b32 s%d, s%d, 7" % (S_T1, S_T1))
            a("s_add_u32 s64, s%d, s%d" % (S_T0, S_T1))
            a("v_lshrrev_b32 v85, 3, v1"); a("v_lshlrev_b32 v85, 11, v85"); a("v_and_b32 v82, 7, v1"); a("v_lshl_add_u32 v85, v82, 4, v85")
        else:
            a("s_lshl_b32 s%d, s%d, 7" % (S_T0, S_MT)); a("s_lshl_b32 s%d, s%d, 5" % (S_T1, S_WR))
            a("s_add_u32 s%d, s%d, s%d" % (S_T0, S_T0, S_T1)); a("s_lshl_b32 s%d, s%d, 11" % (S_T0, S_T0))
            a("s_lshl_b32 s%d, s%d, 7" % (S_T1, S_NT)); a("s_add_u32 s64, s%d, s%d" % (S_T0, S_T1))
        for i in range(1, 4): a("s_add_u32 s%d, s64, %d" % (64 + i, i * 8 * 2048))
        a("v_and_b32 v82, 7, v80"); a("v_lshlrev_b32 v82, 11, v82"); a("v_lshl_add_u32 v84, v81, 4, v82")
        a("v_lshrrev_b32 v82, 3, v80"); a("v_lshl_add_u32 v84, v82, 6, v84")
    a("v_bfe_u32 v82, v80, 1, 3"); a("v_lshrrev_b32 v83, 1, v81"); a("v_xor_b32 v82, v82, v83"); a("v_lshlrev_b32 v82, 4, v82")
    a("v_and_b32 v83, 1, v81"); a("v_lshl_add_u32 v82, v83, 3, v82"); a("v_lshl_add_u32 v82, v80, 7, v82")
    a("s_lshl_b32 s%d, s%d, 12" % (S_T0, S_WAVE)); a("s_add_u32 s%d, s%d, %d" % (S_T0, S_T0, c.resb))
    for nb in range(4):
        a("v_xor_b32 v%d, %d, v82" % (c.RA + nb, 32 * nb)); a("v_add_u32 v%d, s%d, v%d" % (c.RA + nb, S_T0, c.RA + nb))
    if c.dostats:
        a("v_and_b32 v113, 31, v1"); a("v_lshlrev_b32 v113, 3, v113"); a("v_lshrrev_b32 v114, 5, v1"); a("v_lshl_add_u32 v116, v114, 2, v113")
        a("s_lshl_b32 s%d, s%d, 14" % (S_T0, S_NT)); a("s_lshl_b32 s%d, s%d, 10" % (S_T1, S_MT)); a("s_add_u32 s%d, s%d, s%d" % (S_T0, S_T0, S_T1))
        a("s_lshl_b32 s%d, s%d, 8" % (S_T1, S_WR)); a("s_add_u32 s68, s%d, s%d" % (S_T0, S_T1))
def epi_k24(a, c):
    RES = c.RES; T = 96
    for mb in range(2):
        for nb in range(4): a("ds_read_b64 %s, v%d offset:%d" % (pk(RES + (mb * 4 + nb) * 2), c.RA + nb, 2048 * mb))
    if c.splitk:
        for i in range(4):
            x, y = acc_of(c, 2 + (i >> 1), 2 * (i & 1)), acc_of(c, 2 + (i >> 1), 2 * (i & 1) + 1)
            pack_pair(a, x, y, x)
            for d in range(4): a("v_min_u32 v%d, -2, v%d" % (x + d, x + d))
            a("s_xor_b32 s%d, s%d, %d" % (S_T0, 64 + i, 32 * 2048))
            a("buffer_store_dwordx4 v[%d:%d], v85, s[%d:%d], s%d offen sc1" % (x, x + 3, S_SRDO, S_SRDO + 3, S_T0))
        def addpk(r, x, t):
            for d in range(2):
                a("v_lshlrev_b32 v%d, 16, v%d" % (t + 2 * d, r + d)); a("v_and_b32 v%d, 0xffff0000, v%d" % (t + 2 * d + 1, r + d))
            for d in range(2): a("v_pk_add_f32 %s, %s, %s" % (pk(x + 2 * d), pk(x + 2 * d), pk(t + 2 * d)))
        a("s_waitcnt lgkmcnt(0)")
        for mb in range(2):
            for nb in range(4): addpk(RES + (mb * 4 + nb) * 2, acc_of(c, mb, nb), 86 + 4 * (nb & 1))
        if c.xsleep: a("s_sleep %d" % c.xsleep)
        L = a.newlabel("Lxp"); Le = a.newlabel("Lxe")
        a("s_mov_b32 s%d, %d" % (S_DN, SPIN))
        a.label(L)
        for i in range(4): a("buffer_load_dwordx4 v[%d:%d], v85, s[%d:%d], s%d offen sc1" % (RES + 4 * i, RES + 4 * i + 3, S_SRDO, S_SRDO + 3, 64 + i))
        a("s_sub_u32 s%d, s%d, 1" % (S_DN, S_DN)); a("s_cbranch_scc1 %s" % Le)
        a("s_waitcnt vmcnt(0)")
        a("v_max3_u32 v86, v%d, v%d, v%d" % (RES, RES + 1, RES + 2))
        for j in range(3, 15, 2): a("v_max3_u32 v86, v86, v%d, v%d" % (RES + j, RES + j + 1))
        a("v_max_u32 v86, v86, v%d" % (RES + 15))
        a("v_cmp_eq_u32 vcc, -1, v86")
        a("s_cbranch_vccnz %s" % L)
        a.label(Le)
    if c.dostats:
        a("s_mov_b32 s%d, 0x3f803f80" % S_T0)
        for r in range(112, 116): a("v_mov_b32 v%d, 0" % r)
    for mb in range(2):
        if not c.splitk: a("s_waitcnt lgkmcnt(%d)" % (4 - 4 * mb))
        for nb in range(4):
            r = RES + (mb * 4 + nb) * 2; x = acc_of(c, mb, nb); t = 86 + 4 * (nb & 1)
            for d in range(2):
                a("v_lshlrev_b32 v%d, 16, v%d" % (t + 2 * d, r + d)); a("v_and_b32 v%d, 0xffff0000, v%d" % (t + 2 * d + 1, r + d))
            for d in range(2): a("v_pk_add_f32 %s, %s, %s" % (pk(x + 2 * d), pk(x + 2 * d), pk(t + 2 * d)))
        for p in range(2): pack_pair(a, acc_of(c, mb, 2 * p), acc_of(c, mb, 2 * p + 1), T + (mb * 2 + p) * 4)
        if c.dostats:
            for j in range(8):
                d = T + mb * 8 + j
                a("v_dot2c_f32_bf16 v%d, s%d, v%d" % (112 + 2 * mb, S_T0, d)); a("v_dot2c_f32_bf16 v%d, v%d, v%d" % (113 + 2 * mb, d, d))
        else: a("s_nop 1")
        if c.oblk:
            for p in range(2):
                t = T + (mb * 2 + p) * 4
                swap_pair(a, t)
                a("buffer_store_dwordx4 v[%d:%d], v84, s[%d:%d], s%d offen offset:%d %s" % (t, t + 3, S_SRDO, S_SRDO + 3, 64 + p, 1024 * mb, c.stfl))
        else:
            X, Y, U = T + mb * 8, T + mb * 8 + 4, 120
            swap_pair(a, X); swap_pair(a, Y)
            for d in range(4): a("v_mov_b32 v%d, v%d" % (U + d, X + d))
            for d in range(4): a("v_mov_b32_dpp v%d, v%d row_ror:8 row_mask:0xf bank_mask:0xc" % (X + d, Y + d))
            for d in range(4): a("v_mov_b32_dpp v%d, v%d row_ror:8 row_mask:0xf bank_mask:0x3" % (Y + d, U + d))
            a("buffer_store_dwordx4 v[%d:%d], v84, s[%d:%d], s%d offen %s" % (X, X + 3, S_SRDO, S_SRDO + 3, 64 + 2 * mb, c.stfl))
            a("buffer_store_dwordx4 v[%d:%d], v84, s[%d:%d], s%d offen %s" % (Y, Y + 3, S_SRDO, S_SRDO + 3, 65 + 2 * mb, c.stfl))
    if c.dostats:
        a("v_permlane32_swap_b32 v112, v113"); a("v_permlane32_swap_b32 v114, v115"); a("s_nop 0")
        a("v_add_f32 v112, v112, v113"); a("v_add_f32 v114, v114, v115"); a("s_nop 1")
        a("v_permlane16_swap_b32 v112, v114"); a("s_nop 0")
        a("v_add_f32 v112, v112, v114")
        a("buffer_store_dword v112, v116, s[%d:%d], s68 offen sc1" % (S_SRDY, S_SRDY + 3))

def cfg_p24(**kw):
    c = Cfg(segw=[64], col0=[0], cstep=64, wc_bits=0, aregs=[rows_wr(32)], mblk=[(0, 0), (0, 16)],
            wregs=[(0, 0, 0, 0), (0, 0, 1, 0), (0, 0, 2, 0), (0, 0, 3, 0)],
            nblk=[(0, 0, 128), (1, 0, 128), (2, 0, 128), (3, 0, 128)],
            xa=4, xb=8, NS=3, sub=2, rpm=2, order="class", tail_pf=[], codepf=[], ramp=[20], flr="", resb=147456, RA=48, RES=64)
    c.mf = [(mb, nb, False) for nb in range(4) for mb in range(2)]
    c.compute_pre = pre_k24; c.epilogue = epi_k24
    c.__dict__.update(kw)
    if c.wres:
        c.sub = 1
        if c.NS == 4: c.resb = 45056
    N = nst(c)
    c.special = {N - 2: [("post", res_tail, 4 + n_tail(c))], N - 1: [("post", res_fin, 0)]}
    return c
def cfg_p2(**kw):
    return cfg_p24(name="p2", K=1024, lda=2048, ldb=2048, A=("ws", WS_O - 4096, (4 << 20) + 4096), ablk=32, W=("wo", 0, 2 << 20), O=("ws", WS_H, 4 << 20), oblk=True, R=("x", 0, 4 << 20), rblk=False, dostats=True, **kw)
def cfg_p4(**kw):
    return cfg_p24(name="p4", K=3584, lda=7168, ldb=2048, A=("ws", WS_H1 - 4096, 2048 * 7168 + 4096), ablk=112, W=("w2", 0, 3584 * 2048), O=("out", 0, 4 << 20), oblk=False, R=("ws", WS_H - 4096, (4 << 20) + 4096), rblk=True, dostats=False, **kw)

def keep_rows(a, d):
    a("s_lshl_b32 s%d, s%d, 1" % (d, S_WR)); a("s_add_u32 s%d, s%d, s%d" % (d, d, S_KH)); a("s_lshl_b32 s%d, s%d, 12" % (d, d))
def send_rows(a, d):
    keep_rows(a, d); a("s_xor_b32 s%d, s%d, 4096" % (d, d))
def cfg_p4s(**kw):
    d = dict(name="p4", K=1792, lda=7168, ldb=2048, A=("ws", WS_H1 - 4096, 2048 * 7168 + 4096), ablk=112, W=("w2", 0, 3584 * 2048), O=("out", 0, 4 << 20),
             oblk=False, R=("ws", WS_H - 4096, (4 << 20) + 4096), rblk=True, dostats=False, splitk=True,
             segw=[64, 64], col0=[0, 64], cstep=128, wc_bits=1, aregs=[keep_rows, send_rows], mblk=[(0, 0), (0, 16), (1, 0), (1, 16)],
             wregs=[(0, 1, 0, 0), (0, 1, 1, 0), (0, 1, 2, 0), (0, 1, 3, 0)], NS=4, sub=1, rpm=1, ramp=None, resb=131072, RA=124, RES=128, stampv=148, xsleep=0, samexcd=False, dramp=[10, 10, 10, 10],
             mf=[(mb, nb, False) for nb in range(4) for mb in range(4)])
    d.update(kw)
    return cfg_p24(**d)
def sentinel(a, c):
    srd(a, S_SRDP, "out", 0, 4 << 20)
    a("s_lshl_b32 s%d, s2, 2" % S_T0); a("s_add_u32 s%d, s%d, s%d" % (S_T0, S_T0, S_LW)); a("s_lshl_b32 s%d, s%d, 12" % (S_T0, S_T0))
    a("v_lshlrev_b32 v104, 4, v1")
    for r in range(108, 112): a("v_mov_b32 v%d, -1" % r)
    for i in range(4): a("buffer_store_dwordx4 v[108:111], v104, s[%d:%d], s%d offen offset:%d sc1" % (S_SRDP, S_SRDP + 3, S_T0, 1024 * i))

def pre_k3(a, c): srd(a, S_SRDO, *c.O)
def k3_cs(a, c):
    srd(a, S_SRDX, "ws", WS_CS1, 16 * 3584 * 4)
    if c.fused:
        cnt_poll(32)(a, c); a("s_waitcnt vmcnt(0)"); cnt_check(a)
    a("s_mul_i32 s44, s%d, 896" % S_NT); a("s_mul_i32 s45, s%d, 224" % S_LW)
    a("v_lshlrev_b32 v31, 2, v1"); a("s_and_b32 s%d, s%d, %d" % (S_T0, S_NT, 1 if c.oddalign else 0)); a("s_lshl_b32 s%d, s%d, 7" % (S_T0, S_T0)); a("s_add_u32 s%d, s%d, s45" % (S_T0, S_T0))
    a("v_add_u32 v30, s%d, v31" % S_T0); a("v_subrev_u32 v32, 896, v30"); a("v_min_u32 v30, v30, v32")
    for p in range(16):
        a("buffer_load_dword v%d, v30, s[%d:%d], s44 offen sc1" % (64 + p, S_SRDX, S_SRDX + 3))
        if p < 15: a("s_add_u32 s44, s44, %d" % (3584 * 4))
    a("s_add_u32 s45, s45, %d" % (auxbase(c) + c.aux[2])); a("v_add_u32 v31, s45, v31")
def k3_cs2(a, c):
    for st in (8, 4, 2, 1):
        for j in range(st): a("v_add_f32 v%d, v%d, v%d" % (64 + j, 64 + j, 64 + j + st))
    a("s_mov_b32 exec_hi, 0xffffff")
    a("ds_write_b32 v31, v64")
    a("s_mov_b32 exec_hi, -1")
def k3_stats(a, c):
    srd(a, S_SRDY, "ws", WS_STATS, 16 * 2048 * 8)
    a("v_and_b32 v28, 31, v1"); a("v_lshlrev_b32 v29, 3, v28"); a("v_lshrrev_b32 v30, 5, v1"); a("v_lshl_add_u32 v29, v30, 17, v29")
    a("s_lshl_b32 s44, s%d, 10" % S_MT); a("s_lshl_b32 s%d, s%d, 8" % (S_T0, S_LW)); a("s_add_u32 s44, s44, s%d" % S_T0)
    for j in range(8):
        a("buffer_load_dwordx2 %s, v29, s[%d:%d], s44 offen sc1" % (pk(48 + 2 * j), S_SRDY, S_SRDY + 3))
        if j < 7: a("s_add_u32 s44, s44, 16384")
def k3_fin(a, c):
    for st in (8, 4, 2):
        for j in range(st): a("v_add_f32 v%d, v%d, v%d" % (48 + j, 48 + j, 48 + j + st))
    a("s_lshl_b32 s%d, s%d, 7" % (S_T0, S_LW)); a("s_add_u32 s%d, s%d, %d" % (S_T0, S_T0, auxbase(c)))
    a("v_mov_b32 v50, v48"); a("v_mov_b32 v51, v49")
    a("v_lshlrev_b32 v28, 2, v28"); a("v_add_u32 v28, s%d, v28" % S_T0)
    a("v_permlane32_swap_b32 v48, v50"); a("v_permlane32_swap_b32 v49, v51"); a("s_nop 0")
    a("v_add_f32 v48, v48, v50"); a("v_add_f32 v49, v49, v51")
    finish_stats(a, 48, 49, 50)
    a("ds_write_b32 v28, v49 offset:%d" % c.aux[1]); a("ds_write_b32 v28, v48 offset:%d" % c.aux[0])
def lgkm0(a, c): a("s_waitcnt lgkmcnt(0)")
S_FLG = 43
def epi_k3(a, c, half=0):
    base = auxbase(c); AUX_A, AUX_NM, AUX_CS = c.aux
    AB = 128; CS = 136; E = 8
    alljobs = [(m, q) for q in range(4) for m in range(4) if q < 3 or m < 2]
    mine = alljobs
    if c.share:
        theirs = [(3, 0), (3, 1), (3, 2), (2, 0), (2, 1), (2, 2), (1, 3)][:c.share]
        mine = theirs if half else [j for j in alljobs if j not in theirs]
        W = S_LW if half else S_WAVE
        if half:
            a("s_lshr_b32 s%d, s%d, 1" % (S_WR, S_LW)); a("s_and_b32 s%d, s%d, 1" % (S_WC, S_LW)); srd(a, S_SRDO, *c.O)
        a("s_mul_i32 s%d, s%d, 24576" % (S_T0, W)); a("v_lshlrev_b32 v9, 4, v1"); a("v_add_u32 v9, s%d, v9" % S_T0)
        blocks = [acc_of(c, m, 2 * q + e) for (m, q) in theirs for e in range(2)]
        if not half:
            for i, x in enumerate(blocks): a("ds_write_b128 v9, v[%d:%d] offset:%d" % (x, x + 3, 1024 * i))
    a("v_and_b32 v2, 15, v1"); a("v_lshrrev_b32 v3, 4, v1")
    a("s_lshl_b32 s%d, s%d, 1" % (S_T0, S_WR)); a("s_add_u32 s%d, s%d, s%d" % (S_T0, S_T0, S_WC))
    a("s_lshl_b32 s%d, s%d, 7" % (S_T1, S_T0)); a("s_add_u32 s%d, s%d, %d" % (S_T1, S_T1, base))
    a("v_lshlrev_b32 v4, 2, v2"); a("v_add_u32 v4, s%d, v4" % S_T1); a("v_xor_b32 v10, 128, v4")
    a("v_lshlrev_b32 v5, 4, v3"); a("v_add_u32 v5, %d, v5" % (base + AUX_CS))
    a("s_lshl_b32 s%d, s%d, 8" % (S_T1, S_WC)); a("v_add_u32 v6, s%d, v5" % S_T1)
    a("s_lshl_b32 s%d, s%d, 7" % (S_T1, S_WC)); a("v_add_u32 v7, s%d, v5" % S_T1)
    ms = sorted(set(m for m, q in mine)); qs = sorted(set(q for m, q in mine))
    for m in ms: a("ds_read2_b32 %s, v%d offset0:%d offset1:%d" % (pk(AB + 2 * m), 4 if m < 2 else 10, AUX_A // 4 + 16 * (m & 1), AUX_NM // 4 + 16 * (m & 1)))
    for t in range(8):
        v, off = (6, 64 * t) if t < 4 else ((7, 512 + 64 * (t - 4)) if t < 6 else (5, 768 + 64 * (t - 6)))
        a("ds_read_b128 v[%d:%d], v%d offset:%d" % (CS + 4 * t, CS + 4 * t + 3, v, off))
    nrd = len(ms) + 8
    if c.share and not half:
        a("s_waitcnt lgkmcnt(%d)" % nrd); a("s_barrier")
    a("v_lshlrev_b32 v5, 6, v2"); a("v_lshl_add_u32 v5, v3, 4, v5"); a("s_lshl_b32 s%d, s%d, 11" % (S_T0, S_T0)); a("v_add_u32 v5, s%d, v5" % S_T0); a("v_xor_b32 v6, 0x800, v5")
    a("s_mul_i32 s%d, s%d, 112" % (S_T0, S_MT)); a("s_mul_i32 s%d, s%d, 7" % (S_T1, S_NT)); a("s_add_u32 s%d, s%d, s%d" % (S_T0, S_T0, S_T1))
    a("s_add_u32 s67, s%d, 6" % S_T0)
    if c.oddalign:
        a("s_bitcmp1_b32 s%d, 0" % S_NT); a("s_cselect_b32 s67, s%d, s67" % S_T0); a("s_addc_u32 s%d, s%d, 0" % (S_T0, S_T0))
    a("s_add_u32 s66, s%d, s%d" % (S_T0, S_WC)); a("s_add_u32 s64, s66, s%d" % S_WC); a("s_add_u32 s66, s66, 4"); a("s_add_u32 s65, s64, 1")
    for q in range(4): a("s_lshl_b32 s%d, s%d, 13" % (64 + q, 64 + q))
    a("s_mov_b32 s68, 0x%x" % f2u(-LOG2E)); a("s_mov_b32 s69, s68")
    if c.share and half:
        a("s_barrier")
        for i, x in enumerate(blocks): a("ds_read_b128 v[%d:%d], v9 offset:%d" % (x, x + 3, 1024 * i))
    pend = None
    for i, (m, q) in enumerate(mine):
        if c.share and half: a("s_waitcnt lgkmcnt(%d)" % (len(blocks) - 2 * i - 2))
        elif i == 0: a("s_waitcnt lgkmcnt(0)")
        prs = []
        for t in (2 * q, 2 * q + 1):
            x = acc_of(c, m, t)
            for p in range(2): prs.append((x + 2 * p, AB + 2 * m, CS + 4 * t + 2 * p))
        for (x, ab, cs) in prs: a("v_pk_fma_f32 %s, %s, %s, %s op_sel:[0,1,0] op_sel_hi:[1,1,1]" % (pk(x), pk(cs), pk(ab), pk(x)))
        if pend: pend()
        for (x, ab, cs) in prs: a("v_pk_mul_f32 %s, %s, %s op_sel_hi:[1,0]" % (pk(x), pk(x), pk(ab)))
        for j, (x, ab, cs) in enumerate(prs): a("v_pk_mul_f32 %s, %s, s[68:69]" % (pk(E + 2 * j), pk(x)))
        for j in range(8): a("v_exp_f32 v%d, v%d" % (E + j, E + j))
        for j in range(4): a("v_pk_add_f32 %s, %s, 1.0 op_sel_hi:[1,0]" % (pk(E + 2 * j), pk(E + 2 * j)))
        for j in range(8): a("v_rcp_f32 v%d, v%d" % (E + j, E + j))
        for j, (x, ab, cs) in enumerate(prs): a("v_pk_mul_f32 %s, %s, %s" % (pk(x), pk(x), pk(E + 2 * j)))
        t = prs[0][0]
        pack_pair(a, prs[0][0], prs[2][0], t)
        def fin(t=t, m=m, q=q):
            swap_pair(a, t)
            if c.thr is not None: a("s_waitcnt vmcnt(%d)" % c.thr)
            a("buffer_store_dwordx4 v[%d:%d], v%d, s[%d:%d], s%d offen offset:%d %s" % (t, t + 3, 5 if m < 2 else 6, S_SRDO, S_SRDO + 3, 64 + q, 1024 * (m & 1), c.stfl))
        pend = fin
        if c.eflag is not None and i == c.eflag:
            a("s_lshl_b32 s69, s%d, 4" % S_MT); a("s_add_u32 s69, s69, s%d" % S_NT); a("s_lshl_b32 s69, s69, 2"); a("s_add_u32 s69, s69, s%d" % S_WAVE); a("s_lshl_b32 s%d, s69, 2" % S_FLG)
            a("s_mov_b32 s69, s68")
            a("s_waitcnt vmcnt(%d)" % (i - 8))
            wave_flag(a, 3, S_FLG, 2)
    a("s_nop 1"); pend()
    if half:
        a("v_lshrrev_b32 v2, 3, v1"); a("v_and_b32 v3, 7, v1"); a("v_lshrrev_b32 v4, 4, v1")

def pw_setup(a, c):
    srd(a, S_SRDO, *c.O)
    a("s_mul_i32 s46, s%d, 112" % S_MT); a("s_mul_i32 s%d, s%d, 7" % (S_T1, S_NT)); a("s_add_u32 s46, s46, s%d" % S_T1); a("s_lshl_b32 s46, s46, 13")
    a("s_mul_i32 s%d, s%d, 14336" % (S_T1, S_LW)); a("s_add_u32 s46, s46, s%d" % S_T1)
    a("v_lshlrev_b32 v104, 4, v1")
    for r in range(108, 112): a("v_mov_b32 v%d, 0" % r)
def pw_step(a, c):
    a("buffer_store_dwordx4 v[108:111], v104, s[%d:%d], s46 offen sc1" % (S_SRDO, S_SRDO + 3)); a("s_add_u32 s46, s46, 1024")
def pw_fin(a, c): a("s_waitcnt vmcnt(%d)" % n_tail(c))
def slow4(h):
    def f(a, c):
        srd(a, S_SRDP, "w2", 0, 7 << 20)
        a("s_lshr_b32 s%d, s2, 3" % S_T0); a("s_lshl_b32 s%d, s%d, 2" % (S_T0, S_T0)); a("s_add_u32 s%d, s%d, s%d" % (S_T0, S_T0, S_LW)); a("s_mul_i32 s%d, s%d, 7" % (S_T0, S_T0))
        a("s_and_b32 s%d, s2, 1" % S_T1); a("s_mul_i32 s%d, s%d, 1792" % (S_T1, S_T1)); a("s_add_u32 s%d, s%d, s%d" % (S_T0, S_T0, S_T1))
        a("s_lshl_b32 s%d, s%d, 11" % (S_T0, S_T0)); a("s_add_u32 s%d, s%d, %d" % (S_T0, S_T0, h * 896 * 2048 + 384))
        a("v_min_u32 v102, 13, v1"); a("v_lshlrev_b32 v102, 10, v102")
        a("buffer_load_dword v103, v102, s[%d:%d], s%d offen" % (S_SRDP, S_SRDP + 3, S_T0))
    return f
def rows_p3(flip):
    def f(a, d):
        a("s_lshl_b32 s%d, s%d, 1" % (d, S_WR)); a("s_add_u32 s%d, s%d, s%d" % (d, d, S_WC))
        if flip: a("s_xor_b32 s%d, s%d, 1" % (d, d))
        a("s_lshl_b32 s%d, s%d, 12" % (d, d))
    return f
def cfg_p3(**kw):
    c = Cfg(name="p3", K=1024, lda=2048, ldb=7168, A=("ws", WS_H - 4096, (4 << 20) + 4096), ablk=32, W=("w1", 0, 1024 * 7168), O=("ws", WS_H1, 2048 * 7168),
            segw=[64, 64, 64, 32], col0=[0, 64, 128, 192], cstep=224, wc_bits=1,
            aregs=[rows_p3(0), rows_p3(1)], mblk=[(0, 0), (0, 16), (1, 0), (1, 16)],
            wregs=[(0, 1, 0, 0), (0, 1, 1, 0), (0, 1, 2, 0), (0, 1, 3, 0), (2, 0, 0, 2), (2, 0, 1, 2), (3, 0, 0, 0), (3, 0, 1, 0)],
            nblk=[(0, 0, 128), (1, 0, 128), (2, 0, 128), (3, 0, 128), (4, 0, 128), (5, 0, 128), (6, 0, 64), (7, 0, 64)],
            xa=8, xb=4, NS=3, order="class", aux=(0, 512, 1024), stampv=148,
            tail_pf=[("w2", 7 << 20)], codepf=[], ramp=[19, 11, 12, 12, 12], share=0, oddalign=True, eflag=None, tstep=13, pw=False, thr=None)
    c.mf = [(mb, nb, False) for nb in range(6) for mb in range(4)] + [(mb, nb, False) for nb in (6, 7) for mb in range(2)]
    c.compute_pre = pre_k3; c.epilogue = epi_k3
    c.__dict__.update(kw)
    if c.share:
        c.own_xbar = True; c.loader_share = lambda a, c: epi_k3(a, c, 1)
    c.special = {-1: [("post", k3_stats, 8)], c.tstep: [("post", tail_pf, n_tail(c))]}
    c.special.setdefault(14, [])
    c.special[14] += [("post", k3_fin, 0), ("post", k3_cs2, 0), ("post", lgkm0, 0)]
    if c.pw:
        c.special[-1].append(("post", pw_setup, 0)); c.every = (pw_step, 1); c.special.setdefault(15, []).append(("post", pw_fin, 0))
    if c.fused: c.loader_wait = k3_cs
    else: c.special[-1].append(("post", k3_cs, 16))
    return c

KNAME = "sequential_preLN__sliding_local_dilated__dense_activation_silu__prompt_kernel"
def multi(path, stamps=False, all={}, p1={}, p2={}, p3={}, p4={}):
    d = dict(stamps=stamps); d.update(all)
    cp = lambda s, e: [(s, e, 100, 16384)]
    c1 = cfg_p1(kidx=0, **{**d, "codepf": cp("p1_epi", "k2_kernel_last"), **p1}); c2 = cfg_p2(kidx=1, **{**d, "codepf": cp("p2_epi", "k3_kernel_last"), **p2})
    c3 = cfg_p3(kidx=2, **{**d, "codepf": cp("p3_epi", "k4_kernel_last"), **p3}); c4 = cfg_p4(kidx=3, **{**d, **p4})
    c1.loader_post = k1_post_f(auxbase(c1), n_tail)
    ks = [("k1_kernel", emit_kernel("k1_kernel", [c1]), 256, 168, 163840), ("k2_kernel", emit_kernel("k2_kernel", [c2]), 256, 168, 163840),
          ("k3_kernel", emit_kernel("k3_kernel", [c3]), 256, 168, auxbase(c3) + 2048), ("k4_kernel", emit_kernel("k4_kernel", [c4]), 256, 168, 163840)]
    build(ks, path)

def prewrite(a, c):
    for (off, nb) in c.prew:
        srd(a, S_SRDP, "ws" if off >= 0 else "out", max(off, 0), nb)
        per = nb // 1024
        a("s_lshl_b32 s%d, s2, 2" % S_T0); a("s_add_u32 s%d, s%d, s%d" % (S_T0, S_T0, S_LW)); a("s_mul_i32 s%d, s%d, %d" % (S_T0, S_T0, per))
        a("v_lshlrev_b32 v104, 4, v1")
        for r in range(108, 112): a("v_mov_b32 v%d, 0" % r)
        for i in range(per // 1024):
            a("buffer_store_dwordx4 v[108:111], v104, s[%d:%d], s%d offen sc1" % (S_SRDP, S_SRDP + 3, S_T0))
            a("s_add_u32 s%d, s%d, 1024" % (S_T0, S_T0))

def fused(path, stamps=False, all={}, p1={}, p2={}, p3={}, p4={}, nocode=False, prew=False, splitk=False, early=None, w2seam=False, slow4t=None, wbl2=None):
    d = dict(stamps=stamps, fused=True, xbar=True); d.update(all)
    if nocode:
        p1 = dict(p1, codepf=[]); p2 = dict(p2, codepf=[]); p3 = dict(p3, codepf=[])
    c1 = cfg_p1(kidx=0, sig=0, **{**d, "codepf": [("p1_epi", "p3_c", 100, 8192), ("p1_l", "p3_l", 100, 16384)], **p1})
    c2 = cfg_p2(kidx=1, sig=1, fla="sc1", **{**d, "codepf": [("p2_epi", "p4_c", 100, 8192), ("p2_l", "p4_l", 100, 8192)], **p2})
    if w2seam: p3 = dict(p3, tail_pf=[])
    c3 = cfg_p3(kidx=2, sig=2, fla="sc1", **{**d, "codepf": [("p3_epi", KNAME + "_loader", 100, 8192), ("p3_l", KNAME + "_last", 100, 8192)], **p3})
    c4 = (cfg_p4s if splitk else cfg_p4)(kidx=3, flr="sc1", **{**d, "fla": "sc1", "xbar": False, **p4})
    if w2seam:
        k3w = c3.loader_wait
        def lw3(a, c):
            flat_touch(a, c, "w2", 7 << 20, 98); k3w(a, c)
        c3.loader_wait = lw3
    if slow4t is not None:
        c3.special[15] = [("post", slow4(0), 1)]
        c4.special[slow4t] = [("post", slow4(1), 1)]
    if wbl2 is not None:
        def wb(a, c):
            L = a.newlabel("Lwb")
            a("s_lshr_b32 s%d, s2, 3" % S_T0); a("s_or_b32 s%d, s%d, s%d" % (S_T0, S_T0, S_WAVE)); a("s_cmp_lg_u32 s%d, 0" % S_T0); a("s_cbranch_scc1 %s" % L)
            a("buffer_wbl2 sc1")
            a.label(L)
        c4.flagiter = (28 - wbl2, wb)
    c2.dep = lambda a, c: seam_wait(a, c, c1, 0)
    c3.dep = lambda a, c, part=3: seam_wait(a, c, c2, 1, part)
    c4.dep = lambda a, c, part=3: seam_wait(a, c, c3, 2, part)
    if early is not None:
        c3.eflag = early; c4.early = True; c4.ldsflag = 140000; c4.dep = early_wait
        def clr(a, c):
            a("v_mov_b32 v113, 140000"); a("v_mov_b32 v111, 0"); a("ds_write_b32 v113, v111")
        c3.special[14].insert(1, ("post", clr, 0))
        def fb(a, c):
            a("s_waitcnt vmcnt(0)"); wave_flag(a, 2, S_FLG, 12); a("s_nop 3")
        c4.flagiter = (28 - 1, fb)
        c4.special[6] = [("pre", late_poll, 1)]; c4.special[9] = [("pre", late_check, 0)]
    c2.loader_wait = k1_post_f(auxbase(c1), lambda c: 2 * c.wres if c.wres else 2 * 4)
    if splitk:
        k1q = c2.loader_wait
        def lw2(a, c):
            k1q(a, c); sentinel(a, c)
        c2.loader_wait = lw2
    if prew:
        k1p = c2.loader_wait
        c2.prew = [(WS_H1, 14 << 20)]
        def lw(a, c):
            k1p(a, c); prewrite(a, c)
        c2.loader_wait = lw
    c2.special.setdefault(5, []).append(("post", lw0_cnt(32), 0))
    if c3.share: c4.loader_wait = lambda a, c: a("s_waitcnt vmcnt(8)")
    build([(KNAME, emit_kernel(KNAME, [c1, c2, c3, c4]), 256, 168, 163840)], path)
```

```python
from k10 import *
W = dict(wres=12, NS=4)
O = dict(stfl="sc1", wlate=True)
C = dict(order="class", peel=4, slowt=1)
fused("f45_a.s", p1=C, p2=W, p4=O, splitk=True, nocode=True)
fused("f45_b.s", p1=C, p2=W, p3=dict(xa=4, xb=8), p4=O, splitk=True, nocode=True)
fused("f45_c.s", p1=dict(order="class", peel=4), p2=W, p3=dict(xa=4, xb=8), p4=O, splitk=True, nocode=True)
fused("f45_d.s", p1=C, p2=W, p3=dict(xa=4, xb=8), p4=O, splitk=True, nocode=True, slow4t=8)
fused("f45_e.s", p1=C, p2=W, p3=dict(xa=4, xb=8), p4=dict(stfl="sc1"), splitk=True, nocode=True)
```

```python
from asmlib import *
import math, struct
def f2u(x): return struct.unpack("<I", struct.pack("<f", x))[0]
LOG2E = 1.4426950408889634

WS_O = 4 << 20; WS_H = 8 << 20; WS_H1 = 12 << 20
WS_STATS = 28 << 20
WS_RSP = 29 << 20
WS_CSP = 30 << 20
WS_CS1 = 31 << 20
WS_FLAG = 32 << 20
WS_STAMP = 0xF000000

S_SRDA = 4; S_SRDW = 8; S_SRDO = 12; S_SRDX = 16; S_SRDY = 20
S_WAVE = 24; S_MT = 25; S_NT = 26; S_WR = 27; S_WC = 28
S_SOFA = 29; S_SOFW = 30; S_CNT = 31; S_SLOT = 32; S_DELTA = 33
S_T0 = 34; S_T1 = 35; S_T2 = 36; S_T3 = 37; S_SOFH = 38; S_IR = 39
S_BA = 40; S_BW = 41; S_BH = 42; S_PHI = 43
S_KH = 3
S_STAMP = 50
S_IC = 54; S_LW = 55
S_SRDS = 56
S_EXEC = 60
S_FIT = 62; S_DN = 63
S_G = 64
S_SRDP = 72
PTR = dict(x=76, wqkv=78, wo=80, w1=84, w2=86, out=88, dbg=90, ws=92)
S_KS = 94; S_WA = 95; S_WW = 96; S_TAB = 100; S_HM = 27; S_SIG = 28

class Cfg:
    def __init__(self, **kw):
        self.halo = 0; self.NS = 3; self.bps = 2; self.K = 1024
        self.nodma = self.nomfma = self.noread = False
        self.stamps = False; self.kidx = 0; self.trace = False
        self.xa = 8; self.xb = 4; self.splitk = False
        self.fla = ""; self.flw = ""
        self.prio = 3; self.lprio = 2
        self.rpm = 1; self.read_start = 0
        self.ramp = None
        self.stfl = "sc1"
        self.rot = False; self.perm = 0; self.permoff = 2; self.permr = 1; self.permc = 1
        self.special = {}
        self.fused = False; self.dep = None; self.sig = None
        self.flagiter = None
        self.early = False; self.xrot = 0; self.wres = 0; self.ablk = 0; self.flagshift = 4; self.pollsleep = 2; self.ldsflag = 124000; self.xbar = False; self.sub = 1; self.order = None; self.ones = False
        self.__dict__.update(kw)
    def hook(self, name, *args):
        f = getattr(self, name, None)
        if f: return f(*args)

def srd(a, d, ptr, off, size):
    p = PTR[ptr]
    if off:
        a("s_add_u32 s%d, s%d, 0x%x" % (d, p, off)); a("s_addc_u32 s%d, s%d, 0" % (d + 1, p + 1))
    else:
        a("s_mov_b32 s%d, s%d" % (d, p)); a("s_mov_b32 s%d, s%d" % (d + 1, p + 1))
    a("s_mov_b32 s%d, 0x%x" % (d + 2, size)); a("s_mov_b32 s%d, 0x20000" % (d + 3))

def stamp_w0(a, c, idx):
    t = getattr(c, 'stampv', 128)
    if getattr(c, "dbgstamp", None) is not None:
        if idx == 1 or (idx == 0 and c.kidx): return
        word = 1 + (0 if idx == 0 else 3 * c.kidx + idx - 1)
        L = a.newlabel("Lst")
        a("s_lshl_b32 s%d, s2, 3" % S_STAMP); a("s_add_u32 s%d, s%d, s%d" % (S_STAMP, S_STAMP, S_WAVE))
        a("s_cmp_lg_u32 s%d, %d" % (S_STAMP, 8 * c.dbgstamp)); a("s_cbranch_scc1 %s" % L)
        a("s_memrealtime s[%d:%d]" % (S_STAMP, S_STAMP + 1)); a("s_waitcnt lgkmcnt(0)")
        srd(a, S_SRDS, "dbg", 0, 256)
        a("v_mov_b32 v%d, s%d" % (t, S_STAMP)); a("v_mov_b32 v%d, %d" % (t + 1, 4 * word))
        a("s_mov_b64 exec, 1")
        a("buffer_store_dword v%d, v%d, s[%d:%d], 0 offen sc1" % (t, t + 1, S_SRDS, S_SRDS + 3))
        a("s_mov_b64 exec, -1")
        a.label(L)
        return
    if not c.stamps: return
    L = a.newlabel("Lst")
    a("s_cmp_lg_u32 s%d, 0" % S_WAVE); a("s_cbranch_scc1 %s" % L)
    a("s_memrealtime s[%d:%d]" % (S_STAMP, S_STAMP + 1)); a("s_memtime s[%d:%d]" % (S_STAMP + 2, S_STAMP + 3))
    a("s_waitcnt lgkmcnt(0)")
    for i in range(4): a("v_mov_b32 v%d, s%d" % (t + i, S_STAMP + i))
    a("s_lshl_b32 s%d, s2, 7" % S_STAMP); a("s_add_u32 s%d, s%d, %d" % (S_STAMP, S_STAMP, c.kidx * 512 * 128 + idx * 8))
    a("v_mov_b32 v%d, s%d" % (t + 4, S_STAMP))
    a("s_mov_b64 exec, 1")
    a("buffer_store_dwordx2 v[%d:%d], v%d, s[%d:%d], 0 offen" % (t, t + 1, t + 4, S_SRDS, S_SRDS + 3))
    a("buffer_store_dwordx2 v[%d:%d], v%d, s[%d:%d], 0 offen offset:64" % (t + 2, t + 3, t + 4, S_SRDS, S_SRDS + 3))
    a("s_mov_b64 exec, -1")
    a.label(L)

def trace(a, c):
    if not c.trace: return
    a("s_memtime s[98:99]"); a("s_waitcnt lgkmcnt(0)")
    a("s_mov_b32 m0, s97"); a("v_writelane_b32 v120, s98, m0"); a("s_add_u32 s97, s97, 1"); a("s_min_u32 s97, s97, 63")

def tile_map(a, c):
    xa, xb = c.xa, c.xb
    la, lb = int(math.log2(xa)), int(math.log2(xb))
    a("s_and_b32 s%d, s2, 7" % S_T0); a("s_lshr_b32 s%d, s2, 3" % S_T1)
    a("s_lshr_b32 s%d, s%d, %d" % (S_IR, S_T1, lb)); a("s_and_b32 s%d, s%d, %d" % (S_IC, S_T1, xb - 1))
    if c.splitk and c.samexcd:
        a("s_and_b32 s%d, s%d, 1" % (S_KH, S_T1)); a("s_lshr_b32 s%d, s%d, 3" % (S_IR, S_T1)); a("s_bfe_u32 s%d, s%d, 0x20001" % (S_IC, S_T1))
        a("s_lshr_b32 s%d, s%d, 1" % (S_MT, S_T0)); a("s_lshl2_add_u32 s%d, s%d, s%d" % (S_MT, S_MT, S_IR))
        a("s_and_b32 s%d, s%d, 1" % (S_NT, S_T0)); a("s_lshl2_add_u32 s%d, s%d, s%d" % (S_NT, S_NT, S_IC))
        return
    if c.splitk:
        a("s_and_b32 s%d, s%d, 1" % (S_KH, S_T0)); a("s_lshr_b32 s%d, s%d, 1" % (S_MT, S_T0)); a("s_lshl2_add_u32 s%d, s%d, s%d" % (S_MT, S_MT, S_IR))
        a("s_mov_b32 s%d, s%d" % (S_NT, S_IC))
        return
    gcols = 16 // xb; lg = int(math.log2(gcols))
    a("s_lshr_b32 s%d, s%d, %d" % (S_T2, S_T0, lg)); a("s_and_b32 s%d, s%d, %d" % (S_T3, S_T0, gcols - 1))
    a("s_lshl_b32 s%d, s%d, %d" % (S_MT, S_T2, la)); a("s_lshl_b32 s%d, s%d, %d" % (S_NT, S_T3, lb))
    a("s_add_u32 s%d, s%d, s%d" % (S_MT, S_MT, S_IR)); a("s_add_u32 s%d, s%d, s%d" % (S_NT, S_NT, S_IC))

def abytes(c): return (128 + c.halo) * 128
def wbytes(c): return sum(64 * w * 2 for w in c.segw)
def subbytes(c): return abytes(c) + wbytes(c)
def slotbytes(c): return c.sub * (abytes(c) if c.wres else subbytes(c))
def suboff(c, t): return (abytes(c) if t == 'A' else wbytes(c)) if c.wres else subbytes(c)
def abase(c): return c.wres * wbytes(c)
def nst(c): return c.K // 64 // c.sub
def auxbase(c): return c.NS * slotbytes(c)
def segoffs(c):
    o = 0 if c.wres else abytes(c); r = []
    for w in c.segw:
        r.append(o); o += 64 * w * 2
    return r

def record(a, fn, c):
    t = Asm(); t.lbl = a.lbl
    fn(t, c); a.lbl = t.lbl
    groups = []; cur = None
    for l in t.lines:
        s = l.strip()
        if cur is not None:
            cur.append(s)
            if s in ("s_mov_b32 exec_hi, -1", "s_mov_b64 exec, -1"): groups.append(cur); cur = None
        elif s.startswith("s_mov_b32 exec") or s.startswith("s_mov_b64 exec"):
            cur = [s]
        elif (s.startswith("s_addc") or s.startswith("s_cselect") or s.startswith("s_subb")) and groups:
            groups[-1].append(s)
        else:
            groups.append([s])
    assert cur is None
    return groups

LDSFLAG = 163840 - 4 - 16384 - 2048 + 0
def seam_wait(a, c, prev, phase, part=3):
    if part & 1:
        L0 = a.newlabel("Lsv")
        srd(a, S_SRDP, "ws", WS_FLAG, 16384)
        a("v_mov_b32 v110, 0"); a("v_mov_b32 v111, 1")
        a("s_lshl_b32 s44, s%d, 8" % S_MT); a("s_add_u32 s44, s44, %d" % (phase * 4096))
        if c.splitk:
            a("s_lshl_b32 s%d, s%d, %d" % (S_T1, S_KH, 3 + c.flagshift)); a("s_add_u32 s44, s44, s%d" % S_T1)
        a("v_and_b32 v112, %d, v1" % (7 if c.splitk else 15)); a("v_lshlrev_b32 v112, %d, v112" % c.flagshift)
        a("s_cmp_lg_u32 s%d, 0" % S_LW)
        a("s_barrier")
        a("s_cbranch_scc1 %s" % L0)
        a("s_mov_b64 exec, 1")
        a("buffer_store_dword v111, v110, s[%d:%d], s%d offen sc1" % (S_SRDP, S_SRDP + 3, S_SIG))
        a("s_mov_b64 exec, -1")
        a.label(L0)
    if part & 2:
        L1 = a.newlabel("Lsw")
        a("s_cmp_lg_u32 s%d, 0" % S_LW); a("s_cbranch_scc1 %s" % L1)
        trace(a, c)
        spin(a, "v111", "v112", 44, c.pollsleep)
        a.label(L1)
        a("s_barrier")

def wave_flag(a, phase, sreg, v):
    srd(a, S_SRDP, "ws", WS_FLAG + phase * 4096, 4096)
    a("v_mov_b32 v%d, 0" % v); a("v_mov_b32 v%d, 1" % (v + 1))
    a("s_mov_b64 exec, 1")
    a("buffer_store_dword v%d, v%d, s[%d:%d], s%d offen sc1" % (v + 1, v, S_SRDP, S_SRDP + 3, sreg))
    a("s_mov_b64 exec, -1")
def half_flags_addr(a, phase):
    srd(a, S_SRDP, "ws", WS_FLAG, 16384)
    a("s_lshl_b32 s44, s%d, 8" % S_MT); a("s_lshl_b32 s%d, s%d, 7" % (S_T1, S_KH)); a("s_add_u32 s44, s44, s%d" % S_T1)
    a("s_add_u32 s44, s44, %d" % (phase * 4096))
    a("v_and_b32 v112, 31, v1"); a("v_lshlrev_b32 v112, 2, v112")
def early_wait(a, c):
    L1 = a.newlabel("Lsw"); L2 = a.newlabel("Lsx"); L3 = a.newlabel("Lsy")
    a("v_mov_b32 v113, %d" % c.ldsflag)
    a("s_cmp_lg_u32 s%d, 0" % S_LW); a("s_cbranch_scc1 %s" % L1)
    half_flags_addr(a, 3)
    spin(a, "v111", "v112", 44, c.pollsleep)
    a("v_mov_b32 v111, 1"); a("ds_write_b32 v113, v111")
    a("s_branch %s" % L2)
    a.label(L1)
    a("s_mov_b32 s%d, %d" % (S_DN, SPIN * 4))
    a.label(L3)
    a("s_sleep 1")
    a("ds_read_b32 v111, v113"); a("s_sub_u32 s%d, s%d, 1" % (S_DN, S_DN)); a("s_cbranch_scc1 %s" % L2)
    a("s_waitcnt lgkmcnt(0)")
    a("v_cmp_eq_u32 vcc, 0, v111")
    a("s_cbranch_vccnz %s" % L3)
    a.label(L2)
def late_poll(a, c):
    half_flags_addr(a, 2)
    a("buffer_load_dword v111, v112, s[%d:%d], s44 offen sc1" % (S_SRDP, S_SRDP + 3))
def late_check(a, c):
    L = a.newlabel("Llc")
    a("v_cmp_eq_u32 vcc, 0, v111"); a("s_cbranch_vccz %s" % L)
    spin(a, "v111", "v112", 44, 2)
    a.label(L)

SPIN = 1 << 18
def spin(a, vd, va, soff, sleep=0):
    L = a.newlabel("Lpf"); Le = a.newlabel("Lpe")
    a("s_mov_b32 s%d, %d" % (S_DN, SPIN))
    a.label(L)
    if sleep: a("s_sleep %d" % sleep)
    a("buffer_load_dword %s, %s, s[%d:%d], s%d offen sc1" % (vd, va, S_SRDP, S_SRDP + 3, soff))
    a("s_sub_u32 s%d, s%d, 1" % (S_DN, S_DN))
    a("s_cbranch_scc1 %s" % Le)
    a("s_waitcnt vmcnt(0)")
    a("v_cmp_eq_u32 vcc, 0, %s" % vd)
    a("s_cbranch_vccnz %s" % L)
    a.label(Le)

def blk_pattern(a, d):
    a("v_xor_b32 v5, v4, v3"); a("v_lshrrev_b32 v%d, 2, v5" % d); a("v_lshlrev_b32 v%d, 13, v%d" % (d, d)); a("v_and_b32 v5, 3, v5")
    a("v_lshl_add_u32 v%d, v5, 4, v%d" % (d, d)); a("v_lshl_add_u32 v%d, v2, 6, v%d" % (d, d))
    a("v_xor_b32 v%d, 0x2000, v%d" % (d + 1, d)); a("v_add_u32 v%d, %d, v%d" % (d + 1, 4096 - 512, d + 1))
    a("v_add_u32 v%d, %d, v%d" % (d + 2, 4096 - 1024, d)); a("v_add_u32 v%d, -1024, v%d" % (d + 3, d + 1)); a("v_add_u32 v%d, 4096, v%d" % (d, d))

def loader_setup(a, c):
    W = S_LW
    dmas = []
    if c.ablk:
        blk_pattern(a, 8)
    else:
        a("v_xor_b32 v5, v4, v3"); a("v_mul_u32_u24 v6, %d, v2" % c.lda); a("v_lshl_add_u32 v8, v5, 4, v6")
        a("v_xor_b32 v9, 64, v8"); a("v_add_u32 v9, %d, v9" % (8 * c.lda - 1024))
        a("v_add_u32 v10, %d, v8" % (16 * c.lda - 2048)); a("v_add_u32 v11, %d, v9" % (16 * c.lda - 2048))
    for j in range(4):
        dmas.append(dict(t="A", v=8 + j, srd=S_SRDA, soff=S_SOFA, m0c=abase(c) + c.halo * 128, m0w=4096, imm=1024 * j, half=False, fl=c.fla))
    vn = 12
    if c.ablk:
        a("s_mul_i32 s%d, s%d, %d" % (S_SOFA, S_MT, c.ablk * 8192)); a("s_lshl_b32 s%d, s%d, 11" % (S_T0, W)); a("s_add_u32 s%d, s%d, s%d" % (S_SOFA, S_SOFA, S_T0))
    else:
        a("s_lshl_b32 s%d, s%d, 2" % (S_T0, S_MT)); a("s_add_u32 s%d, s%d, s%d" % (S_T0, S_T0, W))
        a("s_mul_i32 s%d, s%d, %d" % (S_SOFA, S_T0, 32 * c.lda))
    if c.halo:
        a("s_lshl_b32 s%d, s%d, 1" % (S_T1, W))
        a("v_add_u32 v5, s%d, v4" % S_T1); a("v_xor_b32 v5, v5, v3"); a("v_and_b32 v5, 7, v5")
        a("v_lshl_add_u32 v%d, v5, 4, v6" % vn)
        a("s_lshl_b32 s%d, s%d, 5" % (S_T0, S_MT)); a("s_add_u32 s%d, s%d, s%d" % (S_T0, S_T0, W))
        a("s_sub_i32 s%d, s%d, 4" % (S_T0, S_T0)); a("s_max_i32 s%d, s%d, 0" % (S_T0, S_T0))
        a("s_mul_i32 s%d, s%d, %d" % (S_SOFH, S_T0, 4 * c.lda))
        dmas.append(dict(t="A", v=vn, srd=S_SRDA, soff=S_SOFH, m0c=0, m0w=512, imm=0, half=True, fl=c.fla))
        vn += 1
    a("v_and_b32 v5, 1, v4"); a("v_lshlrev_b32 v5, 1, v5"); a("v_xor_b32 v5, v5, v3")
    a("v_mul_u32_u24 v6, %d, v2" % c.ldb); a("v_lshl_add_u32 v6, v5, 4, v6")
    a("v_xor_b32 v7, 64, v6"); a("v_add_u32 v7, %d, v7" % (8 * c.ldb - 1024))
    if getattr(c, "oddalign", False):
        a("s_and_b32 s%d, s%d, 1" % (S_T1, S_NT)); a("s_lshl_b32 s%d, s%d, 6" % (S_T1, S_T1))
        a("v_add_u32 v6, s%d, v6" % S_T1); a("v_add_u32 v7, s%d, v7" % S_T1)
    so = segoffs(c)
    for s, w in enumerate(c.segw):
        if w == 64:
            for j in range(2):
                if c.col0[s] == 0: v = 6 + j
                else:
                    v = vn; vn += 1
                    a("v_add_u32 v%d, %d, v%d" % (v, c.col0[s] * 2, 6 + j))
                dmas.append(dict(t="W", v=v, srd=S_SRDW, soff=S_SOFW, m0c=so[s], m0w=2048, imm=1024 * j, half=False, fl=c.flw))
        else:
            a("v_lshrrev_b32 v5, 2, v1"); a("v_mul_u32_u24 v5, %d, v5" % c.ldb)
            a("v_lshrrev_b32 v%d, 5, v1" % vn); a("v_lshlrev_b32 v%d, 1, v%d" % (vn, vn)); a("v_xor_b32 v%d, v%d, v1" % (vn, vn))
            a("v_and_b32 v%d, 3, v%d" % (vn, vn)); a("v_lshl_add_u32 v%d, v%d, 4, v5" % (vn, vn))
            if getattr(c, "oddalign", False):
                a("s_bitcmp1_b32 s%d, 0" % S_NT); a("s_cselect_b32 s%d, 0, %d" % (S_T1, c.col0[s] * 2))
                a("v_add_u32 v%d, s%d, v%d" % (vn, S_T1, vn))
            else:
                a("v_add_u32 v%d, %d, v%d" % (vn, c.col0[s] * 2, vn))
            dmas.append(dict(t="W", v=vn, srd=S_SRDW, soff=S_SOFW, m0c=so[s], m0w=1024, imm=0, half=False, fl=c.flw))
            vn += 1
    a("s_mul_i32 s%d, s%d, %d" % (S_SOFW, W, 16 * c.ldb))
    a("s_mul_i32 s%d, s%d, %d" % (S_T0, S_NT, c.cstep * 2)); a("s_add_u32 s%d, s%d, s%d" % (S_SOFW, S_SOFW, S_T0))
    if c.splitk:
        a("s_mul_i32 s%d, s%d, %d" % (S_T0, S_KH, c.K * 256 if c.ablk else c.K * 2)); a("s_add_u32 s%d, s%d, s%d" % (S_SOFA, S_SOFA, S_T0))
        a("s_mul_i32 s%d, s%d, %d" % (S_T0, S_KH, c.K * c.ldb)); a("s_add_u32 s%d, s%d, s%d" % (S_SOFW, S_SOFW, S_T0))
    if c.sub == 2:
        ex = []
        for d in dmas:
            e = dict(d); e["v"] = vn; vn += 1; e["m0c"] = d["m0c"] + suboff(c, d["t"])
            a("v_add_u32 v%d, %d, v%d" % (e["v"], (16384 if c.ablk else 128) if d["t"] == "A" else 64 * c.ldb, d["v"]))
            ex.append(e)
        dmas += ex
    assert vn <= 24
    groups = []
    for d in dmas:
        key = (d["m0c"], d["m0w"])
        if key not in groups: groups.append(key)
        d["g"] = groups.index(key)
    assert len(groups) <= 6
    for g, (m0c, m0w) in enumerate(groups):
        a("s_mul_i32 s%d, s%d, %d" % (S_G + g, W, m0w))
        if m0c: a("s_add_u32 s%d, s%d, %d" % (S_G + g, S_G + g, m0c))
    a("s_mov_b32 s%d, s%d" % (S_BA, S_SOFA)); a("s_mov_b32 s%d, s%d" % (S_BW, S_SOFW))
    if c.halo:
        a("s_mov_b32 s%d, s%d" % (S_BH, S_SOFH))
        if c.ones:
            a("s_cmp_eq_u32 s%d, 0" % W); a("s_cselect_b32 s%d, 0xffffff00, -1" % S_HM)
    if c.order == "rot": a("s_add_u32 s%d, s%d, s%d" % (S_PHI, S_MT, S_NT))
    elif c.order == "class":
        a("s_add_u32 s%d, s%d, s%d" % (S_PHI, S_IR, S_IC)); a("s_and_b32 s%d, s%d, 3" % (S_PHI, S_PHI))
        for cl in range(4):
            tb = class_table(nst(c), c.permoff, cl)
            if cl == 0:
                a("s_mov_b32 s%d, 0x%x" % (S_TAB, tb & 0xffffffff)); a("s_mov_b32 s%d, 0x%x" % (S_TAB + 1, tb >> 32))
            else:
                a("s_cmp_eq_u32 s%d, %d" % (S_PHI, cl))
                a("s_cselect_b32 s%d, 0x%x, s%d" % (S_TAB, tb & 0xffffffff, S_TAB)); a("s_cselect_b32 s%d, 0x%x, s%d" % (S_TAB + 1, tb >> 32, S_TAB + 1))
    if c.order == "class" and c.xrot:
        a("s_and_b32 s%d, s2, 7" % S_PHI); a("s_mul_i32 s%d, s%d, %d" % (S_PHI, S_PHI, c.xrot))
    c.dmas = dmas; c.ndma = len(dmas)

def class_table(N, po, cl):
    M = N - po
    key = lambda X: X - 4.5 if (X % 4 == cl and X >= 4) else X
    seq = list(range(po)) + [po + X for X in sorted(range(M), key=key)]
    tb = 0
    for p, s in enumerate(seq):
        code = {-1: 0, 0: 1, 3: 2, 4: 3}[s - p]
        tb |= code << (2 * p)
    assert sorted(seq) == list(range(N)) and tb < (1 << 64)
    return tb

def loader_run(a, c):
    NS = c.NS; NST = nst(c); SL = slotbytes(c); dmas = c.dmas; n = len(dmas)
    ka, kw = (16384 if c.ablk else 128) * c.sub, 64 * c.sub * c.ldb
    def head(lock=False):
        if c.order == "rot":
            a("s_add_u32 s%d, s%d, s%d" % (S_WA, S_KS, S_PHI)); a("s_and_b32 s%d, s%d, %d" % (S_WA, S_WA, NST - 1))
        elif c.order == "class" and not lock:
            a("s_and_b32 s%d, s%d, 1" % (S_WA, S_TAB)); a("s_and_b32 s%d, s%d, 2" % (S_WW, S_TAB)); a("s_lshl1_add_u32 s%d, s%d, s%d" % (S_WA, S_WW, S_WA))
            a("s_add_u32 s%d, s%d, s%d" % (S_WA, S_WA, S_KS)); a("s_sub_u32 s%d, s%d, 1" % (S_WA, S_WA))
            a("s_lshr_b64 s[%d:%d], s[%d:%d], 2" % (S_TAB, S_TAB + 1, S_TAB, S_TAB + 1))
            if c.xrot:
                a("s_add_u32 s%d, s%d, s%d" % (S_WA, S_WA, S_PHI)); a("s_and_b32 s%d, s%d, %d" % (S_WA, S_WA, NST - 1))
            if c.early:
                a("s_sub_u32 s%d, s%d, 16" % (S_T2, S_WA)); a("s_mul_i32 s%d, s%d, 43" % (S_WW, S_T2)); a("s_lshr_b32 s%d, s%d, 7" % (S_WW, S_WW))
                a("s_mul_i32 s%d, s%d, 3" % (S_T3, S_WW)); a("s_sub_u32 s%d, s%d, s%d" % (S_T2, S_T2, S_T3))
                a("s_mul_i32 s%d, s%d, 7" % (S_WW, S_WW)); a("s_add_u32 s%d, s%d, 2" % (S_WW, S_WW))
                a("s_lshr_b32 s%d, s%d, 2" % (S_T3, S_WA)); a("s_mul_i32 s%d, s%d, 7" % (S_T3, S_T3))
                a("s_cmp_lt_u32 s%d, 16" % S_WA); a("s_cselect_b32 s%d, s%d, s%d" % (S_WW, S_T3, S_WW))
                a("s_and_b32 s%d, s%d, 3" % (S_T3, S_WA)); a("s_cmp_lt_u32 s%d, 16" % S_WA); a("s_cselect_b32 s%d, s%d, s%d" % (S_T2, S_T3, S_T2))
                a("s_and_b32 s%d, s%d, 2" % (S_T3, S_T2)); a("s_add_u32 s%d, s%d, s%d" % (S_WA, S_WW, S_T2)); a("s_add_u32 s%d, s%d, s%d" % (S_WA, S_WA, S_T3))
        else:
            a("s_mov_b32 s%d, s%d" % (S_WA, S_KS))
        a("s_mul_i32 s%d, s%d, %d" % (S_WW, S_WA, kw)); a("s_mul_i32 s%d, s%d, %d" % (S_WA, S_WA, ka))
        a("s_add_u32 s%d, s%d, s%d" % (S_SOFA, S_BA, S_WA)); a("s_add_u32 s%d, s%d, s%d" % (S_SOFW, S_BW, S_WW))
        if c.halo: a("s_add_u32 s%d, s%d, s%d" % (S_SOFH, S_BH, S_WA))
        a("s_add_u32 s%d, s%d, 1" % (S_KS, S_KS))
    def tail():
        a("s_add_u32 s%d, s%d, %d" % (S_SLOT, S_SLOT, SL)); a("s_cmp_eq_u32 s%d, %d" % (S_SLOT, NS * SL)); a("s_cselect_b32 s%d, 0, s%d" % (S_SLOT, S_SLOT))
    def setm0(d): a("s_add_u32 m0, s%d, s%d" % (S_SLOT, S_G + d["g"]))
    def one(d, cur):
        if c.nodma: return d["g"]
        if d["g"] != cur:
            setm0(d)
            if not d["half"]: a("s_nop 0")
        if d["half"]:
            a("s_mov_b32 exec_hi, 0")
            if c.ones: a("s_mov_b32 exec_lo, s%d" % S_HM)
        a("buffer_load_dwordx4 v%d, s[%d:%d], s%d offen offset:%d %s lds" % (d["v"], d["srd"], d["srd"] + 3, d["soff"], d["imm"], d["fl"]))
        if d["half"]: a("s_mov_b64 exec, -1")
        return d["g"]
    def emit(i0, i1, fill=(), m0ok=True):
        fill = list(fill); k = i1 - i0
        cur = dmas[i0 % n]["g"] if m0ok else None
        for t, i in enumerate(range(i0, i1)):
            j = i % n
            cur = one(dmas[j], cur)
            if j == n - 1:
                tail(); head(); cur = None
            take = -(-len(fill) // (k - t))
            for g in fill[:take]:
                for l in g: a(l)
            fill = fill[take:]
        if dmas[i1 % n]["g"] != cur: setm0(dmas[i1 % n])
    ops = []
    a("s_mov_b32 s%d, 0" % S_SLOT); a("s_mov_b32 s%d, 0" % S_KS)
    if c.wres:
        wd = [d for d in dmas if d["t"] == "W"]
        dmas[:] = [d for d in dmas if d["t"] == "A"]; n = len(dmas)
        WB = wbytes(c) * c.sub; WR = c.wres // c.sub
        a("s_mov_b64 s[48:49], s[%d:%d]" % (S_TAB, S_TAB + 1))
        L = a.newlabel("Lwr"); a("s_mov_b32 s%d, %d" % (S_CNT, WR)); a.label(L)
        head(); cur = None
        for d in wd: cur = one(d, cur)
        a("s_add_u32 s%d, s%d, %d" % (S_SLOT, S_SLOT, WB))
        a("s_sub_u32 s%d, s%d, 1" % (S_CNT, S_CNT)); a("s_cmp_lg_u32 s%d, 0" % S_CNT); a("s_cbranch_scc1 %s" % L)
        for j in range(NST - WR):
            head(); a("s_mov_b32 s%d, s%d" % (16 + j, S_SOFW))
            def wlate(a, c, j=j):
                for d in wd:
                    if d["imm"] == 0: a("s_add_u32 m0, s%d, %d" % (S_G + d["g"], j * WB)); a("s_nop 0")
                    a("buffer_load_dwordx4 v%d, s[%d:%d], s%d offen offset:%d %s lds" % (d["v"], d["srd"], d["srd"] + 3, 16 + j, d["imm"], d["fl"]))
            c.special.setdefault(j + 1, []).append(("post", wlate, len(wd)))
        a("s_mov_b64 s[%d:%d], s[48:49]" % (S_TAB, S_TAB + 1))
        c.hook("loader_wait", a, c)
        if c.dep: c.dep(a, c)
        trace(a, c)
        a("s_mov_b32 s%d, 0" % S_SLOT); a("s_mov_b32 s%d, 0" % S_KS)
        ramp = c.ramp if c.sub == 2 else [NS * n]; pos = ramp[0]
        head(); emit(0, pos, m0ok=False)
        ops = [(i // n, 1) for i in range(pos)]
    elif c.dep is None:
        ramp = c.ramp or [2 * n]
        pos = ramp[0]
        head(); emit(0, pos, m0ok=False)
        ops = [(i // n, 1) for i in range(pos)]
    else:
        P = 2
        for typ in ("W", "A"):
            if typ == "W" and getattr(c, "wlate", False):
                c.hook("loader_wait", a, c)
                c.dep(a, c, 1)
            if typ == "A":
                if getattr(c, "wlate", False): c.dep(a, c, 2)
                else:
                    c.hook("loader_wait", a, c)
                    c.dep(a, c)
                trace(a, c)
                a("s_mov_b32 s%d, 0" % S_SLOT); a("s_mov_b32 s%d, 0" % S_KS)
            for st in range(P):
                head(lock=(typ == "W")); cur = None
                for d in dmas:
                    if d["t"] == typ:
                        cur = one(d, cur)
                        if typ == "A": ops.append((st, 1))
                tail()
        head(); setm0(dmas[0])
        pos = P * n; ramp = [pos] + list(getattr(c, 'dramp', []))
    m0dirty = False
    for (when, fn, nvm) in c.special.get(-1, []):
        fn(a, c); ops.append((None, nvm))
    plan = []
    for s in range(NST):
        idx = max(i for i, (st, k) in enumerate(ops) if st == s)
        w = sum(k for st, k in ops[idx + 1:])
        limit = min((NS - 1 if s == 0 else s - 1 + NS) + 1, NST) * n
        want = ramp[s + 1] if s + 1 < len(ramp) else (n if NS == 3 else 2 * n)
        k = max(0, min(want, limit - pos))
        sp = c.special.get(s, [])
        if getattr(c, "every", None) and k: ops.append((None, c.every[1]))
        for (when, fn, nvm) in sp:
            if when != "post": ops.append((None, nvm))
        for i in range(pos, pos + k): ops.append((i // n, 1))
        for (when, fn, nvm) in sp:
            if when == "post": ops.append((None, nvm))
        plan.append((min(w, 63), pos % n, k, s if sp else None))
        pos += k
    i = 0
    while i < NST:
        j = i
        while j + 1 < NST and plan[j + 1] == plan[i] and plan[i][2] % n == 0: j += 1
        w, p0, k, sp = plan[i]
        def body(loopctl=()):
            trace(a, c)
            a("s_waitcnt vmcnt(%d)" % w)
            trace(a, c)
            a("s_barrier")
            trace(a, c)
            acts = c.special.get(sp, [])
            for (when, fn, nvm) in acts:
                if when == "pre": fn(a, c)
            fill = record(a, c.every[0], c) if getattr(c, "every", None) and k else []
            for (when, fn, nvm) in acts:
                if when == "weave": fill += record(a, fn, c)
            if k: emit(p0, p0 + k, fill, m0ok=not (c.trace or c.wres))
            else:
                for g in fill:
                    for l in g: a(l)
            for (when, fn, nvm) in acts:
                if when == "post": fn(a, c)
        if j > i:
            L = a.newlabel("Lld"); a("s_mov_b32 s%d, %d" % (S_CNT, j - i + 1)); a.label(L)
            body()
            a("s_sub_u32 s%d, s%d, 1" % (S_CNT, S_CNT)); a("s_cmp_lg_u32 s%d, 0" % S_CNT); a("s_cbranch_scc1 %s" % L)
        else: body()
        i = j + 1
    trace(a, c)
    a("s_barrier")
    trace(a, c)

def trace_dump(a, c):
    if not c.trace: return
    trace(a, c)
    srd(a, S_SRDS, "ws", WS_STAMP + (1 << 20), 1 << 20)
    a("s_lshl_b32 s97, s2, 2"); a("s_add_u32 s97, s97, s%d" % S_LW); a("s_lshl_b32 s97, s97, 8"); a("s_add_u32 s97, s97, %d" % (c.kidx << 18))
    a("v_lshlrev_b32 v121, 2, v1")
    a("buffer_store_dword v120, v121, s[%d:%d], s97 offen" % (S_SRDS, S_SRDS + 3))
    a("s_mov_b32 s97, 0")

V_ADDR = 2
V_ACC = 16

def compute_setup(a, c):
    a("v_and_b32 v16, 15, v1"); a("v_lshrrev_b32 v17, 4, v1")
    a("v_bfe_u32 v18, v16, 1, 3"); a("v_xor_b32 v18, v18, v17"); a("v_lshlrev_b32 v18, 4, v18")
    a("v_lshl_add_u32 v19, v16, 7, v18")
    for i, fn in enumerate(c.aregs):
        fn(a, S_T0)
        if c.wres: a("s_add_u32 s%d, s%d, %d" % (S_T0, S_T0, abase(c)))
        a("v_add_u32 v%d, s%d, v19" % (V_ADDR + 2 * i, S_T0)); a("v_xor_b32 v%d, 64, v%d" % (V_ADDR + 2 * i + 1, V_ADDR + 2 * i))
    nA = 2 * len(c.aregs)
    a("v_bfe_u32 v18, v1, 2, 2"); a("v_lshl_add_u32 v18, v17, 3, v18")
    a("v_bfe_u32 v19, v1, 1, 1"); a("v_and_b32 v20, 1, v1"); a("v_lshlrev_b32 v20, 3, v20")
    a("v_bfe_u32 v21, v1, 3, 2"); a("v_lshlrev_b32 v21, 1, v21"); a("v_xor_b32 v21, v21, v19")
    a("v_lshl_add_u32 v21, v21, 4, v20"); a("v_lshl_add_u32 v21, v18, 7, v21")
    if 32 in c.segw:
        a("v_bfe_u32 v17, v1, 4, 1"); a("v_lshlrev_b32 v17, 1, v17"); a("v_xor_b32 v17, v17, v19")
        a("v_lshl_add_u32 v17, v17, 4, v20"); a("v_lshl_add_u32 v17, v18, 6, v17")
    so = segoffs(c)
    for i, (seg, segwc, pc, pwc) in enumerate(c.wregs):
        src = 21 if c.segw[seg] == 64 else 17
        d = V_ADDR + nA + i
        assert d < 16
        if callable(pwc):
            pwc(a, S_T0); a("v_xor_b32 v%d, s%d, v%d" % (d, S_T0, src))
        elif pwc:
            a("s_mul_i32 s%d, s%d, %d" % (S_T0, S_WC, pwc * 32))
            if pc: a("s_add_u32 s%d, s%d, %d" % (S_T0, S_T0, pc * 32))
            a("v_xor_b32 v%d, s%d, v%d" % (d, S_T0, src))
        else: a("v_xor_b32 v%d, %d, v%d" % (d, pc * 32, src))
        if segwc:
            a("s_mul_i32 s%d, s%d, %d" % (S_T0, S_WC, segwc * 8192)); a("s_add_u32 s%d, s%d, %d" % (S_T0, S_T0, so[seg]))
            a("v_add_u32 v%d, s%d, v%d" % (d, S_T0, d))
        else: a("v_add_u32 v%d, %d, v%d" % (d, so[seg], d))
    c.nA = nA; c.naddr = nA + len(c.wregs)

def frag_regs(c):
    MB = len(c.mblk); NB = len(c.nblk); kpb = 2 if c.wres else c.sub
    per = (MB + NB) * 4 * kpb
    return (lambda s, kk, mb: s * per + (kk * (MB + NB) + mb) * 4), (lambda s, kk, nb: s * per + (kk * (MB + NB) + MB + nb) * 4), 2 * per

def fr(i, n):
    return ar(i, n) if i < 88 else vr(140 + i - 88, n)

def reads(c, s, blk):
    fa, fw, _ = frag_regs(c); out = []
    lst = [(0, 0, 0), (1, 1, 0)] if (c.wres and c.sub == 1) else [(0, blk, 0)] if c.sub == 1 else [(0, 0, blk), (1, 1, blk)]
    for kk, kabs, sb in lst:
        so = sb * suboff(c, "A"); sw = sb * suboff(c, "W")
        for mb, (ap, row) in enumerate(c.mblk):
            out.append("ds_read_b128 %s, v%d offset:%d" % (fr(fa(s, kk, mb), 4), V_ADDR + 2 * ap + kabs, so + row * 128))
        for nb, (wreg, immseg, rs) in enumerate(c.nblk):
            for h in range(2):
                out.append("ds_read_b64_tr_b16 %s, v%d offset:%d" % (fr(fw(s, kk, nb) + 2 * h, 2), V_ADDR + c.nA + wreg, sw + immseg + (32 * kabs + 4 * h) * rs))
    return [] if c.noread else out

def mfmas(c, s):
    fa, fw, _ = frag_regs(c); out = []
    for kk in range(2 if c.wres else c.sub):
        for i, (mb, nb, swap) in enumerate(c.mf):
            acc = vr(V_ACC + 4 * i, 4)
            A, B = fr(fw(s, kk, nb), 4), fr(fa(s, kk, mb), 4)
            if swap: A, B = B, A
            out.append(((kk, mb, nb), "v_mfma_f32_16x16x32_bf16 %s, %s, %s, %s" % (acc, A, B, acc)))
    mo = getattr(c, "morder", "snake")
    if mo == "mb": out.sort(key=lambda t: t[0])
    elif mo == "snake": out.sort(key=lambda t: (t[0][0], t[0][2], t[0][1] if t[0][2] % 2 == 0 else -t[0][1]))
    elif mo == "diag": out.sort(key=lambda t: (t[0][0], (t[0][1] + t[0][2]) % 4, t[0][2]))
    out = [t[1] for t in out]
    return [] if c.nomfma else out

def weave(main, first, rest, rpm, start=0):
    out = []; q = list(first); r = list(rest)
    for i, m in enumerate(main):
        out.append(m)
        if i < start: continue
        if q:
            for _ in range(rpm):
                if q: out.append(q.pop(0))
        elif r:
            out.append(r.pop(0))
            if len(r) > len(main) - i - 1: out.append(r.pop(0))
    return out + q + r

def compute_loop(a, c):
    NST = nst(c); SL = slotbytes(c); NS = c.NS
    for i in range(0, len(c.mf) * 4, 2): a("v_mov_b64 v[%d:%d], 0" % (V_ACC + i, V_ACC + i + 1))
    a("s_mov_b32 s%d, 0" % S_SLOT); a("s_mov_b32 s%d, %d" % (S_T2, SL)); a("s_mov_b32 s%d, %d" % (S_T3, (-(NS - 1) * SL) & 0xffffffff))
    if c.prio: a("s_setprio %d" % c.prio)
    adv_s = ["s_add_u32 s%d, s%d, %d" % (S_SLOT, S_SLOT, SL), "s_cmp_eq_u32 s%d, %d" % (S_SLOT, NS * SL),
             "s_cselect_b32 s%d, s%d, s%d" % (S_DELTA, S_T3, S_T2), "s_cselect_b32 s%d, 0, s%d" % (S_SLOT, S_SLOT)]
    adv_v = ["v_add_u32 v%d, s%d, v%d" % (V_ADDR + i, S_DELTA, V_ADDR + i) for i in range(c.naddr)]
    cnt = ["s_sub_u32 s%d, s%d, 1" % (S_CNT, S_CNT), "s_cmp_lg_u32 s%d, 0" % S_CNT]
    L = a.newlabel("Lc")
    flag = []
    if c.flagiter:
        Lf, Lb = a.newlabel("Lfg"), a.newlabel("Lfb")
        a("s_mov_b32 s%d, %d" % (S_FIT, c.flagiter[0]))
        flag = ["s_cmp_eq_u32 s%d, s%d\ns_cbranch_scc1 %s\n%s:" % (S_CNT, S_FIT, Lf, Lb)]
    hookA = []
    if getattr(c, "hookA", None):
        c.LA = (a.newlabel("Lha"), a.newlabel("Lhb"))
        hookA = ["s_cmp_eq_u32 s%d, %d\ns_cbranch_scc1 %s\n%s:" % (S_CNT, NST, c.LA[0], c.LA[1])]
    def emit(l):
        for x in l: a(x)
    if c.dep and not c.early:
        a("s_waitcnt vmcnt(0)"); a("s_barrier"); a("s_barrier")
    stamp_w0(a, c, 1)
    a("s_barrier")
    stamp_w0(a, c, 2)
    if c.wres:
        WB = wbytes(c) * c.sub; WR = c.wres // c.sub
        a("s_mov_b32 s40, 0"); a("s_mov_b32 s41, %d" % WB); a("s_mov_b32 s42, %d" % ((-(WR - 1) * WB) & 0xffffffff))
        adv_w = ["s_add_u32 s40, s40, %d" % WB, "s_cmp_eq_u32 s40, %d" % (WR * WB), "s_cselect_b32 s43, s42, s41", "s_cselect_b32 s40, 0, s40"]
        adv = adv_s + adv_v[:c.nA] + adv_w + [x.replace("s%d," % S_DELTA, "s43,") for x in adv_v[c.nA:]]
    if c.wres and c.sub == 2:
        emit(adv_s + adv_w)
        emit(reads(c, 0, 0))
        a("s_mov_b32 s%d, %d" % (S_CNT, NST))
        a.label(L)
        a("s_waitcnt lgkmcnt(0)")
        emit(weave(mfmas(c, 0), reads(c, 1, 1), [x for x in adv if x.startswith("v_")], c.rpm, c.read_start))
        a("s_waitcnt lgkmcnt(0)"); a("s_barrier")
        emit(weave(mfmas(c, 1), reads(c, 0, 0), adv_s + adv_w + cnt, c.rpm, c.read_start))
        a("s_cbranch_scc1 %s" % L)
    elif c.wres:
        emit(reads(c, 0, 0)); emit(adv)
        a("s_mov_b32 s%d, %d" % (S_CNT, NST // 2))
        a.label(L)
        for s in range(2):
            a("s_waitcnt lgkmcnt(0)"); a("s_barrier")
            emit(weave(mfmas(c, s), reads(c, 1 - s, 0), adv + (cnt if s == 1 else []), c.rpm, c.read_start))
        a("s_cbranch_scc1 %s" % L)
    else:
        emit(reads(c, 0, 0))
        a("s_mov_b32 s%d, %d" % (S_CNT, NST))
        late = [x for i, x in enumerate(adv_v) if c.sub == 1 and i < c.nA and i % 2 == 1]
        early = [x for x in adv_v if x not in late]
        peel = getattr(c, "peel", 0)
        for part in ((0, 1) if peel else (0,)):
            if part: L = a.newlabel("Lc")
            a.label(L)
            hk = part == 0
            cn = ["s_sub_u32 s%d, s%d, 1" % (S_CNT, S_CNT), "s_cmp_lg_u32 s%d, %d" % (S_CNT, NST - peel if (peel and part == 0) else 0)]
            a("s_waitcnt lgkmcnt(0)")
            emit(weave(mfmas(c, 0), reads(c, 1, 1), adv_s + early, c.rpm, c.read_start) + (hookA if hk else []))
            a("s_waitcnt lgkmcnt(0)"); a("s_barrier")
            emit(weave(mfmas(c, 1), reads(c, 0, 0), late + (flag if hk else []) + cn, c.rpm, c.read_start))
            a("s_cbranch_scc1 %s" % L)
    a("s_waitcnt lgkmcnt(0)")
    if c.prio: a("s_setprio 0")
    if c.xbar and not getattr(c, "own_xbar", False): a("s_barrier")
    a("s_nop 7")
    stamp_w0(a, c, 3)
    if c.flagiter:
        c.outofline = (Lf, Lb)

def out_of_line(a, c):
    if getattr(c, "hookA", None):
        a.label(c.LA[0]); c.hookA(a, c); a("s_branch %s" % c.LA[1])
    if c.flagiter:
        Lf, Lb = c.outofline
        a.label(Lf); c.flagiter[1](a, c); a("s_branch %s" % Lb)

def signal(a, c):
    a("s_waitcnt vmcnt(0)")
    if c.sig is not None: a("s_barrier")

def sig_addr(a, c):
    a("s_lshl_b32 s%d, s%d, 8" % (S_SIG, S_MT)); a("s_lshl_b32 s%d, s%d, %d" % (S_T0, S_NT, c.flagshift)); a("s_add_u32 s%d, s%d, s%d" % (S_SIG, S_SIG, S_T0))
    a("s_add_u32 s%d, s%d, %d" % (S_SIG, S_SIG, c.sig * 4096))

def emit_kernel(name, phases):
    a = Asm(); a.lbl = phases[0].kidx * 1000
    a.lines.append(kernel_header(name).rstrip())
    a("s_cmp_ge_u32 s2, 256"); a("s_cbranch_scc1 %s_end" % name)
    a("s_load_dwordx16 s[76:91], s[0:1], 0"); a("s_load_dwordx2 s[92:93], s[0:1], 64")
    a("v_lshrrev_b32 v1, 6, v0")
    tile_map(a, phases[0])
    a("v_readfirstlane_b32 s%d, v1" % S_WAVE)
    a("v_and_b32 v1, 63, v0")
    a("s_cmp_ge_u32 s%d, 4" % S_WAVE); a("s_cbranch_scc1 %s_loader" % name)
    for i, c in enumerate(phases):
        a.label("%s_c" % c.name)
        if i: tile_map(a, c)
        a("s_lshr_b32 s%d, s%d, %d" % (S_WR, S_WAVE, c.wc_bits)); a("s_and_b32 s%d, s%d, %d" % (S_WC, S_WAVE, (1 << c.wc_bits) - 1))
        if i == 0:
            a("s_setprio 3")
            a("s_waitcnt lgkmcnt(0)")
            c.hook("compute_first", a, c)
            a("s_setprio 0")
            if c.stamps: srd(a, S_SRDS, "ws", WS_STAMP, 1 << 20)
        compute_setup(a, c)
        stamp_w0(a, c, 0)
        c.hook("compute_pre", a, c)
        compute_loop(a, c)
        a.label("%s_epi" % c.name)
        c.epilogue(a, c)
        if c.stamps or getattr(c, "dbgstamp", None) is not None:
            if getattr(c, "eflag", None) is None: a("s_waitcnt vmcnt(0)")
            stamp_w0(a, c, 4)

    a("s_endpgm")
    for c in phases: out_of_line(a, c)
    a.label("%s_loader" % name)
    a("s_sub_u32 s%d, s%d, 4" % (S_LW, S_WAVE))
    a("v_lshrrev_b32 v2, 3, v1"); a("v_and_b32 v3, 7, v1"); a("v_lshrrev_b32 v4, 4, v1")
    for i, c in enumerate(phases):
        a.label("%s_l" % c.name)
        if i:
            phases[i - 1].hook("loader_share", a, phases[i - 1])
            sig_addr(a, phases[i - 1]); tile_map(a, c)
        if c.trace:
            a("s_mov_b32 s97, 0"); a("v_mov_b32 v120, 0"); trace(a, c)
        loader_setup(a, c)
        if i == 0:
            a("s_waitcnt lgkmcnt(0)")
            if c.lprio: a("s_setprio %d" % c.lprio)
        srd(a, S_SRDA, *c.A); srd(a, S_SRDW, *c.W)
        if i and phases[i - 1].xbar and not getattr(phases[i - 1], "loader_share", None): a("s_barrier")
        loader_run(a, c)
        if i == len(phases) - 1:
            if c.xbar: a("s_barrier")
            c.hook("loader_post", a, c)
        trace_dump(a, c)
    a.label("%s_end" % name)
    a("s_endpgm")
    a.label("%s_last" % name)
    return a.text()

def code_touch(a, start, end, vt, maxbytes):
    L = a.newlabel("Lpc")
    a("s_getpc_b64 s[48:49]")
    a.label(L)
    a("s_sub_u32 s48, s48, %s-%s" % (L, start)); a("s_subb_u32 s49, s49, 0")
    n = -(-maxbytes // 8192)
    for t in range(n):
        a("v_lshlrev_b32 v%d, 7, v1" % vt)
        if t: a("v_add_u32 v%d, %d, v%d" % (vt, 8192 * t, vt))
        a("v_min_u32 v%d, %s-%s-4, v%d" % (vt, end, start, vt))
        a("global_load_dword v%d, v%d, s[48:49]" % (vt + 1, vt))
    return n

def pk(x): return "v[%d:%d]" % (x, x + 1)
def pack_pair(a, x, y, t):
    a("v_cvt_pk_bf16_f32 v%d, v%d, v%d" % (t, x, x + 1)); a("v_cvt_pk_bf16_f32 v%d, v%d, v%d" % (t + 1, x + 2, x + 3))
    a("v_cvt_pk_bf16_f32 v%d, v%d, v%d" % (t + 2, y, y + 1)); a("v_cvt_pk_bf16_f32 v%d, v%d, v%d" % (t + 3, y + 2, y + 3))
def swap_pair(a, t):
    a("v_permlane32_swap_b32 v%d, v%d" % (t, t + 2)); a("v_permlane32_swap_b32 v%d, v%d" % (t + 1, t + 3))
    a("s_nop 0")
    a("v_permlane16_swap_b32 v%d, v%d" % (t, t + 2)); a("v_permlane16_swap_b32 v%d, v%d" % (t + 1, t + 3))
def acc_of(c, mb, nb):
    for i, (m, n, s) in enumerate(c.mf):
        if m == mb and n == nb: return V_ACC + 4 * i
    raise KeyError

def build(kernels, path):
    hdr = "".join("; @launch kernel=%s grid=(256,1,1) block=(512,1,1) lds=%d\n" % (k[0], k[4]) for k in kernels)
    if len(kernels) == 1 and kernels[0][0].startswith("sequential"):
        hdr = "; @launch grid=(256,1,1) block=(512,1,1) lds=%d\n" % kernels[0][4]
    s = hdr + '.amdgcn_target "amdgcn-amd-amdhsa--gfx950"\n.text\n'
    for k in kernels: s += k[1]
    s += '.section .rodata,"a"\n'
    for k in kernels: s += kernel_desc(k[0], k[2], k[3])
    open(path, "w").write(s)
```

```python
from g11 import *

def rows_wr(mult, add=0):
    def f(a, d):
        a("s_mul_i32 s%d, s%d, %d" % (d, S_WR, mult * 128))
        if add: a("s_add_u32 s%d, s%d, %d" % (d, d, add * 128))
    return f
def rows_zero(a, d): a("s_mov_b32 s%d, 0" % d)

def trlane(a, d, t):
    a("v_bfe_u32 v%d, v1, 4, 1" % t); a("v_lshlrev_b32 v%d, 3, v%d" % (t, t))
    a("v_bfe_u32 v%d, v1, 5, 1" % (t + 1)); a("v_lshl_add_u32 v%d, v%d, 2, v%d" % (t, t + 1, t))
    a("v_bfe_u32 v%d, v1, 2, 2" % (t + 1)); a("v_add_u32 v%d, v%d, v%d" % (t, t, t + 1))
    a("v_bfe_u32 v%d, v1, 3, 2" % (t + 1)); a("v_lshlrev_b32 v%d, 1, v%d" % (t + 1, t + 1))
    a("v_bfe_u32 v%d, v1, 1, 1" % (t + 2)); a("v_xor_b32 v%d, v%d, v%d" % (t + 1, t + 1, t + 2))
    a("v_and_b32 v%d, 1, v1" % (t + 2)); a("v_lshlrev_b32 v%d, 3, v%d" % (t + 2, t + 2))
    a("v_lshl_add_u32 v%d, v%d, 4, v%d" % (t + 1, t + 1, t + 2)); a("v_lshl_add_u32 v%d, v%d, 7, v%d" % (d, t, t + 1))

def reduce4(a, X):
    a("s_nop 1")
    a("v_permlane32_swap_b32 v%d, v%d" % (X[0], X[2])); a("v_permlane32_swap_b32 v%d, v%d" % (X[1], X[3])); a("s_nop 0")
    a("v_add_f32 v%d, v%d, v%d" % (X[0], X[0], X[2])); a("v_add_f32 v%d, v%d, v%d" % (X[1], X[1], X[3])); a("s_nop 1")
    a("v_permlane16_swap_b32 v%d, v%d" % (X[0], X[1])); a("s_nop 0")
    a("v_add_f32 v%d, v%d, v%d" % (X[0], X[0], X[1]))

def finish_stats(a, s, q, t):
    a("v_mul_f32 v%d, 0x%x, v%d" % (s, f2u(1.0 / 1024), s)); a("v_mul_f32 v%d, 0x%x, v%d" % (q, f2u(1.0 / 1024), q))
    a("v_fma_f32 v%d, -v%d, v%d, v%d" % (q, s, s, q)); a("v_max_f32 v%d, 0, v%d" % (q, q))
    a("v_cvt_pk_bf16_f32 v%d, v%d, v%d" % (t, s, q))
    a("v_lshlrev_b32 v%d, 16, v%d" % (t + 1, t)); a("v_and_b32 v%d, 0xffff0000, v%d" % (q, t))
    a("v_add_f32 v%d, 0x%x, v%d" % (q, f2u(1e-5), q)); a("v_cvt_pk_bf16_f32 v%d, v%d, v%d" % (t, q, q)); a("v_and_b32 v%d, 0xffff0000, v%d" % (q, t))
    a("v_sqrt_f32 v%d, v%d" % (q, q)); a("s_nop 0"); a("v_cvt_pk_bf16_f32 v%d, v%d, v%d" % (t, q, q)); a("v_and_b32 v%d, 0xffff0000, v%d" % (q, t))
    a("v_rcp_f32 v%d, v%d" % (s, q)); a("v_sub_f32 v%d, 0, v%d" % (q, t + 1))

def flat_touch(a, c, ptr, nbytes, vt):
    srd(a, S_SRDP, ptr, 0, nbytes)
    per = nbytes // 1024
    a("s_lshl_b32 s%d, s2, 2" % S_T0); a("s_add_u32 s%d, s%d, s%d" % (S_T0, S_T0, S_LW)); a("s_mul_i32 s%d, s%d, %d" % (S_T0, S_T0, per))
    a("v_min_u32 v%d, %d, v1" % (vt, per // 128 - 1)); a("v_lshlrev_b32 v%d, 7, v%d" % (vt, vt))
    a("buffer_load_dword v%d, v%d, s[%d:%d], s%d offen" % (vt + 1, vt, S_SRDP, S_SRDP + 3, S_T0))
def tail_pf(a, c):
    for (ptr, nb) in c.tail_pf: flat_touch(a, c, ptr, nb, 98)
    for cp in c.codepf: code_touch(a, *cp)
def n_tail(c): return len(c.tail_pf) + sum(-(-cp[3] // 8192) for cp in c.codepf)

def cnt_add(a, word, sreg):
    a("s_mov_b32 s%d, 1" % sreg)
    a("s_atomic_add s%d, s[%d:%d], %d" % (sreg, PTR["dbg"], PTR["dbg"] + 1, 4 * word))
def cnt_poll(word, v=44):
    def f(a, c):
        srd(a, S_SRDP, "dbg", 0, 256)
        a("v_mov_b32 v%d, %d" % (v + 2, 4 * word))
        a("buffer_load_dword v%d, v%d, s[%d:%d], 0 offen sc1" % (v, v + 2, S_SRDP, S_SRDP + 3))
    return f
def cnt_check(a, v=44):
    L = a.newlabel("Lpo"); Ld = a.newlabel("Lpd")
    a("s_mov_b32 s%d, %d" % (S_DN, SPIN))
    a.label(L)
    a("v_cmp_gt_u32 vcc, 0x100, v%d" % v)
    a("s_cbranch_vccz %s" % Ld)
    a("s_sub_u32 s%d, s%d, 1" % (S_DN, S_DN)); a("s_cbranch_scc1 %s" % Ld)
    a("s_sleep 4")
    a("buffer_load_dword v%d, v%d, s[%d:%d], 0 offen sc1" % (v, v + 2, S_SRDP, S_SRDP + 3))
    a("s_waitcnt vmcnt(0)")
    a("s_branch %s" % L)
    a.label(Ld)

AUX1_W1 = 2048
XCH = 98304
def k1_setup(a, c):
    srd(a, S_SRDX, "ws", WS_RSP, 2048 * 8)
    a("v_mov_b32 v46, 0x3f803f80"); a("v_and_b32 v47, 31, v1"); a("v_lshlrev_b32 v47, 2, v47")
    a("ds_write_b32 v47, v46"); a("ds_write_b32 v47, v46 offset:%d" % slotbytes(c))
    a("v_add_u32 v47, %d, v47" % (2 * slotbytes(c))); a("ds_write_b32 v47, v46")
    a("s_waitcnt lgkmcnt(0)")
XR = 128
def rows_load(a, c):
    srd(a, S_SRDX, "x", 0, 4 << 20)
    a("s_lshl_b32 s42, s2, 2"); a("s_add_u32 s42, s42, s%d" % S_WAVE); a("s_lshl_b32 s41, s42, 12"); a("s_lshl_b32 s42, s42, 4")
    a("v_lshlrev_b32 v144, 4, v1")
    for i in range(4): a("buffer_load_dwordx4 v[%d:%d], v144, s[%d:%d], s41 offen offset:%d" % (XR + 4 * i, XR + 3 + 4 * i, S_SRDX, S_SRDX + 3, 1024 * i))
def rows_pub(a, c):
    if c.wtouch:
        k0 = c.wtouch * 64
        per = (1024 - k0) * 48 // 1024
        srd(a, S_SRDP, "wqkv", 0, 6 << 20)
        a("s_mul_i32 s41, s42, %d" % (per * 8)); a("s_add_u32 s41, s41, %d" % (k0 * 6144))
        a("v_min_u32 v8, %d, v1" % (per - 1)); a("v_lshlrev_b32 v8, 7, v8")
        a("buffer_load_dword v167, v8, s[%d:%d], s41 offen" % (S_SRDP, S_SRDP + 3))
    if c.slowt:
        srd(a, S_SRDP, "wqkv", 0, 6 << 20)
        a("s_lshr_b32 s41, s2, 3"); a("s_lshl_b32 s41, s41, 2"); a("s_add_u32 s41, s41, s%d" % S_WAVE); a("s_mul_i32 s41, s41, %d" % (8 * 6144))
        if c.xb == 4:
            a("s_and_b32 s40, s2, 2"); a("s_lshl_b32 s40, s40, 9"); a("s_add_u32 s41, s41, s40"); a("s_add_u32 s41, s41, 384")
            a("s_bitcmp1_b32 s2, 0"); a("s_cselect_b32 s41, 0x1000000, s41")
        else:
            a("s_and_b32 s40, s2, 1"); a("s_lshl_b32 s40, s40, 10"); a("s_add_u32 s41, s41, s40"); a("s_add_u32 s41, s41, 384")
        a("v_min_u32 v8, 23, v1"); a("v_lshlrev_b32 v8, 11, v8")
        a("buffer_load_dword v167, v8, s[%d:%d], s41 offen" % (S_SRDP, S_SRDP + 3))
    a("s_waitcnt vmcnt(%d)" % (1 if c.wtouch or c.slowt else 0))
    for d in range(8):
        for r in range(2):
            S, Q, t, x = 8 + 4 * r, 10 + 4 * r, 144 + 2 * r, XR + 8 * r + d
            a("v_lshlrev_b32 v%d, 16, v%d" % (t, x)); a("v_and_b32 v%d, 0xffff0000, v%d" % (t + 1, x))
            if d == 0:
                a("v_mov_b64 %s, %s" % (pk(S), pk(t))); a("v_pk_mul_f32 %s, %s, %s" % (pk(Q), pk(t), pk(t)))
            else:
                a("v_pk_add_f32 %s, %s, %s" % (pk(S), pk(S), pk(t))); a("v_pk_fma_f32 %s, %s, %s, %s" % (pk(Q), pk(t), pk(t), pk(Q)))
    for S in (8, 12, 10, 14): a("v_add_f32 v%d, v%d, v%d" % (S, S, S + 1))
    srd(a, S_SRDX, "ws", WS_RSP, 2048 * 8)
    a("v_permlane32_swap_b32 v8, v12"); a("v_permlane32_swap_b32 v10, v14"); a("s_nop 0")
    a("v_add_f32 v8, v8, v12"); a("v_add_f32 v9, v10, v14"); a("s_nop 0")
    a("v_mov_b32 v10, v8"); a("v_mov_b32 v11, v9"); a("s_nop 1")
    a("v_permlane16_swap_b32 v8, v10"); a("v_permlane16_swap_b32 v9, v11"); a("s_nop 0")
    a("v_add_f32 v8, v8, v10"); a("v_add_f32 v9, v9, v11")
    for sh in ("row_ror:1", "row_ror:2", "row_ror:4", "row_ror:8"):
        a("s_nop 1")
        a("v_add_f32_dpp v8, v8, v8 %s row_mask:0xf bank_mask:0xf" % sh); a("v_add_f32_dpp v9, v9, v9 %s row_mask:0xf bank_mask:0xf" % sh)
    finish_stats(a, 8, 9, 10)
    a("v_lshrrev_b32 v10, 5, v1"); a("v_lshlrev_b32 v10, 3, v10")
    a("s_mov_b32 exec_lo, 1"); a("s_mov_b32 exec_hi, 1")
    a("buffer_store_dwordx2 v[8:9], v10, s[%d:%d], s42 offen sc1" % (S_SRDX, S_SRDX + 3))
    if c.fused:
        srd(a, S_SRDP, "ws", WS_FLAG, 16384)
        a("s_mov_b64 exec, 15")
        a("v_mov_b32 v12, 0"); a("v_lshlrev_b32 v13, 2, v1")
        a("buffer_store_dword v12, v13, s[%d:%d], s42 offen sc1" % (S_SRDP, S_SRDP + 3))
    a("s_mov_b64 exec, -1")
    a("s_nop 3")
def k1_drain(a, c): a("s_waitcnt vmcnt(0)")
def lw0_cnt(word):
    def f(a, c):
        L = a.newlabel("Lc1f")
        a("s_cmp_lg_u32 s%d, 0" % S_LW); a("s_cbranch_scc1 %s" % L)
        cnt_add(a, word, S_T0)
        a.label(L)
    return f
def k1_prep(a, c):
    trlane(a, 24, 64)
    a("s_mul_i32 s%d, s%d, 36" % (S_T0, S_LW)); a("v_add_u32 v33, s%d, v1" % S_T0)
    a("s_lshl_b32 s%d, s%d, 7" % (S_T1, S_MT)); a("s_sub_i32 s%d, s%d, 16" % (S_T1, S_T1))
    a("v_add_u32 v34, s%d, v33" % S_T1); a("v_max_i32 v34, 0, v34"); a("v_lshlrev_b32 v34, 3, v34")
    a("v_lshlrev_b32 v33, 2, v33"); a("v_add_u32 v33, %d, v33" % auxbase(c))
    a("s_xor_b32 s%d, s2, %d" % (S_T0, c.w1flip)); a("s_lshl_b32 s%d, s%d, 2" % (S_T0, S_T0)); a("s_add_u32 s%d, s%d, s%d" % (S_T0, S_T0, S_LW))
    a("s_mul_hi_u32 s46, s%d, %d" % (S_T0, (1 << 32) // 56 + 1)); a("s_mul_i32 s%d, s46, 56" % S_T1); a("s_sub_u32 s47, s%d, s%d" % (S_T0, S_T1))
    a("s_mul_i32 s44, s46, %d" % (64 * 7168)); a("s_lshl_b32 s%d, s47, 7" % S_T1); a("s_add_u32 s44, s44, s%d" % S_T1)
    a("v_and_b32 v96, 1, v4"); a("v_lshlrev_b32 v96, 1, v96"); a("v_xor_b32 v96, v96, v3")
    a("v_mul_u32_u24 v97, 7168, v2"); a("v_lshl_add_u32 v96, v96, 4, v97"); a("v_xor_b32 v97, 64, v96")
def k1_tail(a, c):
    cnt_check(a)
    a("buffer_load_dwordx2 v[36:37], v34, s[%d:%d], 0 offen sc1" % (S_SRDX, S_SRDX + 3))
    srd(a, S_SRDW, "w1", 0, 1024 * 7168)
    a("s_lshl_b32 s%d, s%d, 13" % (S_T1, S_LW)); a("s_add_u32 s%d, s%d, %d" % (S_T1, S_T1, auxbase(c) + AUX1_W1))
    for i in range(8):
        a("s_mov_b32 m0, s%d" % S_T1); a("s_add_u32 s%d, s%d, 1024" % (S_T1, S_T1))
        a("buffer_load_dwordx4 v%d, s[%d:%d], s44 offen lds" % (96 + (i & 1), S_SRDW, S_SRDW + 3))
        if i < 7: a("s_add_u32 s44, s44, %d" % (8 * 7168))
    tail_pf(a, c)
def k1_fin(a, c):
    a("s_waitcnt vmcnt(%d)" % (8 + n_tail(c)))
    a("s_mov_b32 exec_hi, 15")
    a("ds_write_b32 v33, v36 offset:%d" % c.aux[0]); a("ds_write_b32 v33, v37 offset:%d" % c.aux[1])
    a("s_mov_b32 exec_hi, -1")
    a("s_waitcnt lgkmcnt(0)")
def k1_post_f(base, nafter):
    def f(a, c):
        srd(a, S_SRDY, "ws", WS_CS1, 16 * 3584 * 4)
        a("s_lshl_b32 s%d, s%d, 13" % (S_T1, S_LW)); a("s_add_u32 s%d, s%d, %d" % (S_T1, S_T1, base + AUX1_W1))
        for p in range(4):
            a("v_xor_b32 v%d, %d, v24" % (28 + p, 32 * p)); a("v_add_u32 v%d, s%d, v%d" % (28 + p, S_T1, 28 + p))
        for r in range(32, 40): a("v_mov_b32 v%d, 0" % r)
        a("s_mov_b32 s70, 0x3f803f80")
        a("s_waitcnt vmcnt(%d)" % nafter(c))
        for q in range(4):
            for p in range(4): a("ds_read_b64_tr_b16 v[%d:%d], v%d offset:%d" % (48 + 8 * q + 2 * p, 49 + 8 * q + 2 * p, 28 + p, 2048 * q))
        a("s_waitcnt lgkmcnt(0)")
        for q in range(4):
            for p in range(4):
                for d in range(2): a("v_dot2c_f32_bf16 v%d, s70, v%d" % (32 + 2 * p + d, 48 + 8 * q + 2 * p + d))
        a("s_nop 2")
        for p in range(4): a("v_add_f32 v%d, v%d, v%d" % (32 + 2 * p, 32 + 2 * p, 33 + 2 * p))
        reduce4(a, [32, 34, 36, 38])
        a("s_mul_i32 s%d, s46, %d" % (S_T0, 3584 * 4)); a("s_lshl_b32 s%d, s47, 8" % S_T1); a("s_add_u32 s%d, s%d, s%d" % (S_T0, S_T0, S_T1))
        a("v_lshlrev_b32 v28, 2, v1")
        a("buffer_store_dword v32, v28, s[%d:%d], s%d offen sc1" % (S_SRDY, S_SRDY + 3, S_T0))
    return f

BIAS = 148
def pre_k1(a, c):
    srd(a, S_SRDO, *c.O)
    a("v_and_b32 v12, 15, v1"); a("v_lshrrev_b32 v13, 4, v1")
    a("v_lshlrev_b32 v14, 2, v13"); a("v_sub_u32 v14, v12, v14")
    a("s_mov_b32 s%d, 0x%x" % (S_T0, f2u(-1e30))); a("v_mov_b32 v12, s%d" % S_T0)
    for half in range(2):
        for r in range(4):
            a("v_add_u32 v13, %d, v14" % ((16 if half == 0 else 0) - r)); a("v_and_b32 v13, 0xfffffff1, v13")
            a("v_cmp_ne_u32 vcc, 0, v13"); a("s_nop 1")
            a("v_cndmask_b32 v%d, 0, v12, vcc" % (BIAS + 4 * half + r))
    a("s_or_b32 s%d, s%d, s%d" % (S_T1, S_MT, S_WR)); a("s_cmp_eq_u32 s%d, 0" % S_T1); a("s_cselect_b32 s%d, s%d, 0" % (S_T1, S_T0))
    for r in range(4): a("v_add_f32 v%d, s%d, v%d" % (BIAS + 8 + r, S_T1, BIAS + r))
    base = auxbase(c); CSB = base + c.aux[2]
    a("v_lshlrev_b32 v12, 4, v1")
    a("s_mul_i32 s%d, s%d, 6144" % (S_T0, S_WAVE)); a("s_add_u32 s%d, s%d, %d" % (S_T0, S_T0, XCH))
    a("s_xor_b32 s%d, s%d, 2" % (S_T1, S_WAVE)); a("s_mul_i32 s%d, s%d, 6144" % (S_T1, S_T1)); a("s_add_u32 s%d, s%d, %d" % (S_T1, S_T1, XCH))
    a("v_add_u32 v160, s%d, v12" % S_T0)
    a("s_cmp_eq_u32 s%d, 0" % S_WR)
    for i, (own, s0, s1) in enumerate(((True, 0, 3), (False, 0, 2), (True, 1, 5), (False, 1, 4))):
        a("s_add_u32 s40, s%d, %d" % (S_T0 if own else S_T1, 1024 * s0)); a("s_add_u32 s41, s%d, %d" % (S_T1, 1024 * s1))
        a("s_cmp_eq_u32 s%d, 0" % S_WR); a("s_cselect_b32 s40, s40, s41")
        a("v_add_u32 v%d, s40, v12" % (161 + i))
    a("s_lshl_b32 s%d, s%d, 7" % (S_T0, S_WC)); a("s_lshl_b32 s%d, s%d, 6" % (S_T1, S_WR)); a("s_add_u32 s%d, s%d, s%d" % (S_T0, S_T0, S_T1)); a("s_add_u32 s%d, s%d, %d" % (S_T0, S_T0, CSB))
    a("v_lshrrev_b32 v13, 4, v1"); a("v_lshlrev_b32 v13, 4, v13"); a("v_add_u32 v165, s%d, v13" % S_T0)
    a("v_and_b32 v13, 15, v1"); a("v_lshlrev_b32 v13, 2, v13"); a("v_add_u32 v166, s%d, v13" % S_T0)

def epi_k1(a, c):
    base = auxbase(c); AUX_A, AUX_NM, AUX_CS = c.aux
    assert (base + AUX_CS) % 128 == 0
    hq, hk, hv = acc_of(c, 0, 0), acc_of(c, 0, 2), acc_of(c, 0, 4)
    A = lambda b, nb: (acc_of(c, b, nb) if b else {2: hk, 3: hq, 4: hv, 5: V_ACC + 108}[nb])
    for i, r in enumerate((hk, hv, A(4, 2), A(4, 3), A(4, 4), A(4, 5))): a("ds_write_b128 v160, v[%d:%d] offset:%d" % (r, r + 3, 1024 * i))
    a("s_mov_b32 exec_lo, 0x10001"); a("s_mov_b32 exec_hi, 0x10001")
    a("ds_write_b128 v165, v[%d:%d]" % (hq, hq + 3)); a("ds_write_b128 v165, v[%d:%d] offset:256" % (hk, hk + 3))
    a("s_mov_b64 exec, 0xffff")
    a("ds_write_b32 v166, v%d offset:512" % hv)
    a("s_mov_b64 exec, -1")
    a("v_and_b32 v2, 15, v1"); a("v_lshrrev_b32 v3, 4, v1")
    a("s_lshl_b32 s%d, s%d, 8" % (S_T0, S_WR)); a("s_add_u32 s%d, s%d, %d" % (S_T0, S_T0, base))
    a("v_lshlrev_b32 v4, 2, v2"); a("v_add_u32 v4, s%d, v4" % S_T0)
    a("v_lshlrev_b32 v5, 4, v3"); a("v_add_u32 v5, s%d, v5" % S_T0)
    a("v_xor_b32 v6, 64, v165"); a("v_xor_b32 v7, 64, v166")
    AN = 128; CQ = 140; CK = 160; CV = 138
    for mb in (1, 2, 3, 4, 0): a("ds_read2_b32 %s, v4 offset0:%d offset1:%d" % (pk(AN + 2 * mb), AUX_A // 4 + 16 * mb, AUX_NM // 4 + 16 * mb))
    a("ds_read_b128 v[8:11], v5 offset:%d" % AUX_A); a("ds_read_b128 v[12:15], v5 offset:%d" % AUX_NM)
    a("s_waitcnt lgkmcnt(7)")
    a("s_barrier")
    a("ds_read_b128 v[%d:%d], v165" % (CQ, CQ + 3)); a("ds_read_b128 v[%d:%d], v6" % (CQ + 4, CQ + 7))
    for i, nb in enumerate((2, 3, 4, 5)): a("ds_read_b128 v[%d:%d], v%d" % (A(0, nb), A(0, nb) + 3, 161 + i))
    a("ds_read_b32 v%d, v166 offset:512" % CV); a("ds_read_b32 v%d, v7 offset:512" % (CV + 1))
    a("ds_read_b128 v[%d:%d], v165 offset:256" % (CK, CK + 3)); a("ds_read_b128 v[%d:%d], v6 offset:256" % (CK + 4, CK + 7))
    def norm_rowlane(x, an, cs):
        for p in range(2): a("v_pk_fma_f32 %s, %s, %s, %s op_sel:[0,1,0] op_sel_hi:[1,1,1]" % (pk(x + 2 * p), pk(cs + 2 * p), pk(an), pk(x + 2 * p)))
    def scale_rowlane(x, an):
        for p in range(2): a("v_pk_mul_f32 %s, %s, %s op_sel_hi:[1,0]" % (pk(x + 2 * p), pk(x + 2 * p), pk(an)))
    def packqk(b, nb0, cs):
        x0, x1 = A(b, nb0), A(b, nb0 + 1)
        norm_rowlane(x0, AN + 2 * b, cs); norm_rowlane(x1, AN + 2 * b, cs + 4); scale_rowlane(x0, AN + 2 * b); scale_rowlane(x1, AN + 2 * b)
        pack_pair(a, x0, x1, x0)
    QP = {b: A(b, 0) for b in range(1, 5)}; KP = {b: A(b, 2) for b in range(5)}
    a("s_waitcnt lgkmcnt(8)")
    for b in range(1, 5): packqk(b, 0, CQ)
    a("s_waitcnt lgkmcnt(0)")
    for b in (1, 2, 3, 4, 0): packqk(b, 2, CK)
    S0 = {b: A(b, 1) for b in range(1, 5)}; S1 = {b: A(b, 3) for b in range(1, 5)}
    for b in (2, 3, 4, 1):
        a("v_mfma_f32_16x16x32_bf16 %s, %s, %s, 0" % (vr(S1[b], 4), vr(KP[b], 4), vr(QP[b], 4)))
        a("v_mfma_f32_16x16x32_bf16 %s, %s, %s, 0" % (vr(S0[b], 4), vr(KP[b - 1], 4), vr(QP[b], 4)))
    VP = [128, 158]
    VP = [128, 160 - 2]
    VB = [(8, 12), (140, 144)]
    a("s_mov_b32 s64, 0x%x" % f2u(32 ** -0.5 * LOG2E)); a("s_mov_b32 s65, s64")
    def vblock(b):
        va, vn = VB[b & 1]
        if b < 4:
            na, nn = VB[(b + 1) & 1]
            a("ds_read_b128 v[%d:%d], v5 offset:%d" % (na, na + 3, AUX_A + 64 * (b + 1))); a("ds_read_b128 v[%d:%d], v5 offset:%d" % (nn, nn + 3, AUX_NM + 64 * (b + 1)))
        a("s_waitcnt lgkmcnt(%d)" % (2 if b < 4 else 0))
        xs = [A(b, 4), A(b, 5)]
        for cc in range(2):
            for p in range(2):
                sel = "op_sel_hi:[1,0,1]" if cc == 0 else "op_sel:[0,1,0] op_sel_hi:[1,1,1]"
                a("v_pk_fma_f32 %s, %s, %s, %s %s" % (pk(xs[cc] + 2 * p), pk(vn + 2 * p), pk(CV), pk(xs[cc] + 2 * p), sel))
        for cc in range(2):
            for p in range(2): a("v_pk_mul_f32 %s, %s, %s" % (pk(xs[cc] + 2 * p), pk(xs[cc] + 2 * p), pk(va + 2 * p)))
    def vpack(b):
        xs = [A(b, 4), A(b, 5)]
        for cc in range(2):
            a("v_cvt_pk_bf16_f32 v%d, v%d, v%d" % (VP[cc] + 2 * b, xs[cc], xs[cc] + 1))
            a("v_cvt_pk_bf16_f32 v%d, v%d, v%d" % (VP[cc] + 2 * b + 1, xs[cc] + 2, xs[cc] + 3))
    vblock(0)
    for b in (1, 2, 3, 4):
        vblock(b); vpack(b)
    for b in range(1, 5):
        for h, s in enumerate((S0[b], S1[b])):
            bias = BIAS + 8 if (b == 1 and h == 0) else BIAS + 4 * h
            for p in range(2): a("v_pk_fma_f32 %s, %s, s[64:65], %s" % (pk(s + 2 * p), pk(s + 2 * p), pk(bias + 2 * p)))
    vpack(0)
    M, T = 8, 12
    for st in range(4):
        for b in range(1, 5):
            s, u = S0[b], S1[b]; m = M + b - 1
            a(["v_max3_f32 v%d, v%d, v%d, v%d" % (m, s, s + 1, s + 2), "v_max3_f32 v%d, v%d, v%d, v%d" % (m, m, s + 3, u),
               "v_max3_f32 v%d, v%d, v%d, v%d" % (m, m, u + 1, u + 2), "v_max_f32 v%d, v%d, v%d" % (m, m, u + 3)][st])
    def xreduce(op):
        for sw in ("v_permlane16_swap_b32", "v_permlane32_swap_b32"):
            for b in range(4): a("v_mov_b32 v%d, v%d" % (T + b, M + b))
            for b in range(4): a("%s v%d, v%d" % (sw, M + b, T + b))
            for b in range(4): a("%s v%d, v%d, v%d" % (op, M + b, M + b, T + b))
    xreduce("v_max_f32")
    def bsel(b):
        m = M + b - 1
        return (pk(m & ~1), "op_sel:[0,1] op_sel_hi:[1,1]" if m & 1 else "op_sel_hi:[1,0]")
    for b in range(1, 5):
        r, sel = bsel(b)
        for s in (S0[b], S1[b]):
            for p in range(2): a("v_pk_add_f32 %s, %s, %s %s neg_lo:[0,1] neg_hi:[0,1]" % (pk(s + 2 * p), pk(s + 2 * p), r, sel))
    for b in range(1, 5):
        for s in (S0[b], S1[b]):
            for j in range(4): a("v_exp_f32 v%d, v%d" % (s + j, s + j))
    U = 136
    for b in range(1, 5): a("v_pk_add_f32 %s, %s, %s" % (pk(U + 4 * b), pk(S0[b]), pk(S0[b] + 2)))
    for b in range(1, 5): a("v_pk_add_f32 %s, %s, %s" % (pk(U + 2 + 4 * b), pk(S1[b]), pk(S1[b] + 2)))
    for b in range(1, 5): a("v_pk_add_f32 %s, %s, %s" % (pk(U + 4 * b), pk(U + 4 * b), pk(U + 2 + 4 * b)))
    for b in range(1, 5): a("v_add_f32 v%d, v%d, v%d" % (M + b - 1, U + 4 * b, U + 1 + 4 * b))
    xreduce("v_add_f32")
    for b in range(4): a("v_rcp_f32 v%d, v%d" % (M + b, M + b))
    a("s_lshl_b32 s%d, s%d, 5" % (S_T0, S_MT)); a("s_lshl_b32 s%d, s%d, 1" % (S_T1, S_NT))
    for b in range(1, 5):
        r, sel = bsel(b)
        for s in (S0[b], S1[b]):
            for p in range(2): a("v_pk_mul_f32 %s, %s, %s %s" % (pk(s + 2 * p), pk(s + 2 * p), r, sel))
        pack_pair(a, S0[b], S1[b], QP[b])
    a("s_add_u32 s%d, s%d, s%d" % (S_T0, S_T0, S_T1)); a("s_add_u32 s%d, s%d, s%d" % (S_T0, S_T0, S_WC))
    for b in range(1, 5):
        for cc, o in enumerate((S0[b], S1[b])):
            a("v_mfma_f32_16x16x32_bf16 %s, %s, %s, 0" % (vr(o, 4), vr(VP[cc] + 2 * (b - 1), 4), vr(QP[b], 4)))
    a("s_lshl_b32 s%d, s%d, 1" % (S_T0, S_T0)); a("s_add_u32 s%d, s%d, s%d" % (S_T0, S_T0, S_WR)); a("s_lshl_b32 s%d, s%d, 12" % (S_T0, S_T0))
    a("s_lshl_b32 s%d, s%d, 1" % (S_T1, S_WR)); a("v_xor_b32 v3, s%d, v3" % S_T1)
    a("v_lshlrev_b32 v4, 6, v2"); a("v_lshl_add_u32 v4, v3, 4, v4")
    for b in range(1, 5): pack_pair(a, S0[b], S1[b], KP[b])
    for b in range(1, 5):
        swap_pair(a, KP[b])
        a("buffer_store_dwordx4 v[%d:%d], v4, s[%d:%d], s%d offen offset:%d %s" % (KP[b], KP[b] + 3, S_SRDO, S_SRDO + 3, S_T0, 1024 * (b - 1), c.stfl))

def pairAB(flip):
    def f(a, d):
        a("s_lshl_b32 s%d, s%d, 1" % (d, S_WC)); a("s_add_u32 s%d, s%d, s%d" % (d, d, S_WR))
        if flip: a("s_xor_b32 s%d, s%d, 1" % (d, d))
        a("s_lshl_b32 s%d, s%d, 5" % (d, d))
    return f
def cfg_p1(**kw):
    c = Cfg(name="p1", K=1024, lda=2048, ldb=6144, halo=16, ones=True,
            A=("x", 0, 4 << 20), W=("wqkv", 0, 1024 * 6144), O=("ws", WS_O, 4 << 20),
            segw=[64, 64, 64], col0=[0, 1024, 2048], cstep=64, wc_bits=1,
            aregs=[rows_wr(64, 16), rows_zero], mblk=[(1, 0), (0, 0), (0, 16), (0, 32), (0, 48)],
            wregs=[(0, 0, 0, pairAB(0)), (0, 0, 0, pairAB(1))],
            nblk=[(0, 0, 128), (1, 0, 128), (0, 8192, 128), (1, 8192, 128), (0, 16384, 128), (1, 16384, 128)],
            xa=8, xb=4, NS=3, order="rot", aux=(0, 576, 1152), own_xbar=True, stampv=8, wtouch=0, w1flip=1, slowt=0,
            tail_pf=[("wo", 2 << 20)], codepf=[], ramp=[17, 12, 12, 12, 13])
    c.mf = []
    for base, sw in ((0, False), (2, False), (4, True)):
        c.mf += [(mb, base, sw) for mb in range(5)] + [(mb, base + 1, sw) for mb in range(1, 5)]
    c.epilogue = epi_k1; c.compute_pre = pre_k1; c.compute_first = rows_load; c.hookA = rows_pub
    c.__dict__.update(kw)
    c.xbar = True
    c.special = {-1: [("post", k1_setup, 0)], 5: [("post", lw0_cnt(0), 0)], 13: [("weave", k1_prep, 0)], 12: [("pre", cnt_poll(0), 1)],
                 14: [("post", k1_tail, 9 + n_tail(c))], 15: [("post", k1_fin, 0)]}
    c.flagiter = (16 - 3, k1_drain)
    return c

def res_tail(a, c):
    srd(a, S_SRDX, *c.R)
    if c.splitk:
        blk_pattern(a, 30)
        a("s_lshl_b32 s%d, s%d, 3" % (S_T0, S_MT)); a("s_add_u32 s%d, s%d, s%d" % (S_T0, S_T0, S_NT)); a("s_lshl_b32 s%d, s%d, 1" % (S_T0, S_T0))
        a("s_and_b32 s%d, s%d, 1" % (S_T1, S_LW)); a("s_add_u32 s%d, s%d, s%d" % (S_T0, S_T0, S_T1)); a("s_lshl_b32 s%d, s%d, 14" % (S_T0, S_T0))
        a("s_and_b32 s%d, s%d, 2" % (S_T1, S_LW)); a("s_add_u32 s%d, s%d, s%d" % (S_T1, S_T1, S_KH)); a("s_lshl_b32 s%d, s%d, 11" % (S_T1, S_T1))
        a("s_add_u32 s%d, s%d, s%d" % (S_T0, S_T0, S_T1))
    elif c.rblk:
        blk_pattern(a, 30)
        a("s_lshl_b32 s%d, s%d, 4" % (S_T0, S_MT)); a("s_add_u32 s%d, s%d, s%d" % (S_T0, S_T0, S_NT)); a("s_lshl_b32 s%d, s%d, 14" % (S_T0, S_T0))
        a("s_lshl_b32 s%d, s%d, 11" % (S_T1, S_LW)); a("s_add_u32 s%d, s%d, s%d" % (S_T0, S_T0, S_T1))
    else:
        a("v_xor_b32 v5, v4, v3"); a("v_lshlrev_b32 v30, 11, v2"); a("v_lshl_add_u32 v30, v5, 4, v30")
        a("v_xor_b32 v31, 64, v30"); a("v_add_u32 v31, %d, v31" % (8 * 2048 - 1024))
        a("v_add_u32 v32, %d, v30" % (16 * 2048 - 2048)); a("v_add_u32 v33, %d, v31" % (16 * 2048 - 2048))
        a("s_lshl_b32 s%d, s%d, 2" % (S_T0, S_MT)); a("s_add_u32 s%d, s%d, s%d" % (S_T0, S_T0, S_LW)); a("s_lshl_b32 s%d, s%d, 16" % (S_T0, S_T0))
        a("s_lshl_b32 s%d, s%d, 7" % (S_T1, S_NT)); a("s_add_u32 s%d, s%d, s%d" % (S_T0, S_T0, S_T1))
    a("s_lshl_b32 s%d, s%d, 12" % (S_T1, S_LW)); a("s_add_u32 m0, s%d, %d" % (S_T1, c.resb)); a("s_nop 0")
    for j in range(4): a("buffer_load_dwordx4 v%d, s[%d:%d], s%d offen offset:%d %s lds" % (30 + j, S_SRDX, S_SRDX + 3, S_T0, 1024 * j, c.flr))
    tail_pf(a, c)
def res_fin(a, c): a("s_waitcnt vmcnt(%d)" % n_tail(c))
def pre_k24(a, c):
    srd(a, S_SRDO, *c.O)
    if c.dostats: srd(a, S_SRDY, "ws", WS_STATS, 16 * 2048 * 8)
    a("v_and_b32 v80, 15, v1"); a("v_lshrrev_b32 v81, 4, v1")
    if c.oblk:
        a("s_lshl_b32 s%d, s%d, 4" % (S_T0, S_MT)); a("s_add_u32 s%d, s%d, s%d" % (S_T0, S_T0, S_NT)); a("s_lshl_b32 s%d, s%d, 14" % (S_T0, S_T0))
        a("s_lshl_b32 s%d, s%d, 11" % (S_T1, S_WR)); a("s_add_u32 s64, s%d, s%d" % (S_T0, S_T1)); a("s_add_u32 s65, s64, 8192")
        a("v_lshlrev_b32 v82, 6, v80"); a("v_lshl_add_u32 v84, v81, 4, v82")
    else:
        if c.splitk:
            keep_rows(a, S_T1)
            a("s_lshl_b32 s%d, s%d, 14" % (S_T0, S_MT)); a("s_add_u32 s%d, s%d, s%d" % (S_T0, S_T0, S_T1)); a("s_lshl_b32 s%d, s%d, 4" % (S_T0, S_T0))
            a("s_lshl_b32 s%d, s%d, 1" % (S_T1, S_NT)); a("s_add_u32 s%d, s%d, s%d" % (S_T1, S_T1, S_WC)); a("s_lshl_b32 s%d, s%d, 7" % (S_T1, S_T1))
            a("s_add_u32 s64, s%d, s%d" % (S_T0, S_T1))
            a("v_lshrrev_b32 v85, 3, v1"); a("v_lshlrev_b32 v85, 11, v85"); a("v_and_b32 v82, 7, v1"); a("v_lshl_add_u32 v85, v82, 4, v85")
        else:
            a("s_lshl_b32 s%d, s%d, 7" % (S_T0, S_MT)); a("s_lshl_b32 s%d, s%d, 5" % (S_T1, S_WR))
            a("s_add_u32 s%d, s%d, s%d" % (S_T0, S_T0, S_T1)); a("s_lshl_b32 s%d, s%d, 11" % (S_T0, S_T0))
            a("s_lshl_b32 s%d, s%d, 7" % (S_T1, S_NT)); a("s_add_u32 s64, s%d, s%d" % (S_T0, S_T1))
        for i in range(1, 4): a("s_add_u32 s%d, s64, %d" % (64 + i, i * 8 * 2048))
        a("v_and_b32 v82, 7, v80"); a("v_lshlrev_b32 v82, 11, v82"); a("v_lshl_add_u32 v84, v81, 4, v82")
        a("v_lshrrev_b32 v82, 3, v80"); a("v_lshl_add_u32 v84, v82, 6, v84")
    a("v_bfe_u32 v82, v80, 1, 3"); a("v_lshrrev_b32 v83, 1, v81"); a("v_xor_b32 v82, v82, v83"); a("v_lshlrev_b32 v82, 4, v82")
    a("v_and_b32 v83, 1, v81"); a("v_lshl_add_u32 v82, v83, 3, v82"); a("v_lshl_add_u32 v82, v80, 7, v82")
    a("s_lshl_b32 s%d, s%d, 12" % (S_T0, S_WAVE)); a("s_add_u32 s%d, s%d, %d" % (S_T0, S_T0, c.resb))
    for nb in range(4):
        a("v_xor_b32 v%d, %d, v82" % (c.RA + nb, 32 * nb)); a("v_add_u32 v%d, s%d, v%d" % (c.RA + nb, S_T0, c.RA + nb))
    if c.dostats:
        a("v_and_b32 v113, 31, v1"); a("v_lshlrev_b32 v113, 3, v113"); a("v_lshrrev_b32 v114, 5, v1"); a("v_lshl_add_u32 v116, v114, 2, v113")
        a("s_lshl_b32 s%d, s%d, 14" % (S_T0, S_NT)); a("s_lshl_b32 s%d, s%d, 10" % (S_T1, S_MT)); a("s_add_u32 s%d, s%d, s%d" % (S_T0, S_T0, S_T1))
        a("s_lshl_b32 s%d, s%d, 8" % (S_T1, S_WR)); a("s_add_u32 s68, s%d, s%d" % (S_T0, S_T1))
def epi_k24(a, c):
    RES = c.RES; T = 96
    for mb in range(2):
        for nb in range(4): a("ds_read_b64 %s, v%d offset:%d" % (pk(RES + (mb * 4 + nb) * 2), c.RA + nb, 2048 * mb))
    if c.splitk:
        XB = 144
        def xload():
            for i in range(4): a("buffer_load_dwordx4 v[%d:%d], v85, s[%d:%d], s%d offen sc1" % (XB + 4 * i, XB + 4 * i + 3, S_SRDO, S_SRDO + 3, 64 + i))
        if c.pollfirst: xload()
        for i in range(4):
            x, y = acc_of(c, 2 + (i >> 1), 2 * (i & 1)), acc_of(c, 2 + (i >> 1), 2 * (i & 1) + 1)
            pack_pair(a, x, y, x)
            for d in range(4): a("v_min_u32 v%d, -2, v%d" % (x + d, x + d))
            a("s_xor_b32 s%d, s%d, %d" % (S_T0, 64 + i, 32 * 2048))
            a("buffer_store_dwordx4 v[%d:%d], v85, s[%d:%d], s%d offen sc1" % (x, x + 3, S_SRDO, S_SRDO + 3, S_T0))
        def addpk(r, x, t):
            for d in range(2):
                a("v_lshlrev_b32 v%d, 16, v%d" % (t + 2 * d, r + d)); a("v_and_b32 v%d, 0xffff0000, v%d" % (t + 2 * d + 1, r + d))
            for d in range(2): a("v_pk_add_f32 %s, %s, %s" % (pk(x + 2 * d), pk(x + 2 * d), pk(t + 2 * d)))
        a("s_waitcnt lgkmcnt(0)")
        for mb in range(2):
            for nb in range(4): addpk(RES + (mb * 4 + nb) * 2, acc_of(c, mb, nb), 86 + 4 * (nb & 1))
        L = a.newlabel("Lxp"); Le = a.newlabel("Lxe")
        a("s_mov_b32 s%d, %d" % (S_DN, SPIN))
        if c.pollfirst: a("s_waitcnt vmcnt(4)")
        else:
            xload(); a("s_waitcnt vmcnt(0)")
        a.label(L)
        a("v_max3_u32 v86, v%d, v%d, v%d" % (XB, XB + 1, XB + 2)); a("v_max3_u32 v87, v%d, v%d, v%d" % (XB + 3, XB + 4, XB + 5))
        for j in range(6, 14, 4):
            a("v_max3_u32 v86, v86, v%d, v%d" % (XB + j, XB + j + 1)); a("v_max3_u32 v87, v87, v%d, v%d" % (XB + j + 2, XB + j + 3))
        a("v_max3_u32 v86, v86, v%d, v%d" % (XB + 14, XB + 15)); a("v_max_u32 v86, v86, v87")
        a("v_cmp_eq_u32 vcc, -1, v86")
        a("s_cbranch_vccz %s" % Le)
        a("s_sub_u32 s%d, s%d, 1" % (S_DN, S_DN)); a("s_cbranch_scc1 %s" % Le)
        if c.xsleep: a("s_sleep %d" % c.xsleep)
        xload()
        a("s_waitcnt vmcnt(0)")
        a("s_branch %s" % L)
        a.label(Le)
        RES = XB
    if c.dostats:
        a("s_mov_b32 s%d, 0x3f803f80" % S_T0)
        for r in range(112, 116): a("v_mov_b32 v%d, 0" % r)
    for mb in range(2):
        if not c.splitk: a("s_waitcnt lgkmcnt(%d)" % (4 - 4 * mb))
        for nb in range(4):
            r = RES + (mb * 4 + nb) * 2; x = acc_of(c, mb, nb); t = 86 + 4 * (nb & 1)
            for d in range(2):
                a("v_lshlrev_b32 v%d, 16, v%d" % (t + 2 * d, r + d)); a("v_and_b32 v%d, 0xffff0000, v%d" % (t + 2 * d + 1, r + d))
            for d in range(2): a("v_pk_add_f32 %s, %s, %s" % (pk(x + 2 * d), pk(x + 2 * d), pk(t + 2 * d)))
        for p in range(2): pack_pair(a, acc_of(c, mb, 2 * p), acc_of(c, mb, 2 * p + 1), T + (mb * 2 + p) * 4)
        if c.dostats:
            for j in range(8):
                d = T + mb * 8 + j
                a("v_dot2c_f32_bf16 v%d, s%d, v%d" % (112 + 2 * mb, S_T0, d)); a("v_dot2c_f32_bf16 v%d, v%d, v%d" % (113 + 2 * mb, d, d))
        else: a("s_nop 1")
        if c.oblk:
            for p in range(2):
                t = T + (mb * 2 + p) * 4
                swap_pair(a, t)
                a("buffer_store_dwordx4 v[%d:%d], v84, s[%d:%d], s%d offen offset:%d %s" % (t, t + 3, S_SRDO, S_SRDO + 3, 64 + p, 1024 * mb, c.stfl))
        else:
            X, Y, U = T + mb * 8, T + mb * 8 + 4, 120
            swap_pair(a, X); swap_pair(a, Y)
            for d in range(4): a("v_mov_b32 v%d, v%d" % (U + d, X + d))
            for d in range(4): a("v_mov_b32_dpp v%d, v%d row_ror:8 row_mask:0xf bank_mask:0xc" % (X + d, Y + d))
            for d in range(4): a("v_mov_b32_dpp v%d, v%d row_ror:8 row_mask:0xf bank_mask:0x3" % (Y + d, U + d))
            a("buffer_store_dwordx4 v[%d:%d], v84, s[%d:%d], s%d offen %s" % (X, X + 3, S_SRDO, S_SRDO + 3, 64 + 2 * mb, c.stfl))
            a("buffer_store_dwordx4 v[%d:%d], v84, s[%d:%d], s%d offen %s" % (Y, Y + 3, S_SRDO, S_SRDO + 3, 65 + 2 * mb, c.stfl))
    if c.dostats:
        a("v_permlane32_swap_b32 v112, v113"); a("v_permlane32_swap_b32 v114, v115"); a("s_nop 0")
        a("v_add_f32 v112, v112, v113"); a("v_add_f32 v114, v114, v115"); a("s_nop 1")
        a("v_permlane16_swap_b32 v112, v114"); a("s_nop 0")
        a("v_add_f32 v112, v112, v114")
        a("buffer_store_dword v112, v116, s[%d:%d], s68 offen sc1" % (S_SRDY, S_SRDY + 3))

def cfg_p24(**kw):
    c = Cfg(segw=[64], col0=[0], cstep=64, wc_bits=0, aregs=[rows_wr(32)], mblk=[(0, 0), (0, 16)],
            wregs=[(0, 0, 0, 0), (0, 0, 1, 0), (0, 0, 2, 0), (0, 0, 3, 0)],
            nblk=[(0, 0, 128), (1, 0, 128), (2, 0, 128), (3, 0, 128)],
            xa=4, xb=8, NS=3, sub=2, rpm=2, order="class", tail_pf=[], codepf=[], ramp=[20], flr="", resb=147456, RA=48, RES=64)
    c.mf = [(mb, nb, False) for nb in range(4) for mb in range(2)]
    c.compute_pre = pre_k24; c.epilogue = epi_k24
    c.__dict__.update(kw)
    if c.wres and c.NS == 4:
        c.sub = 1; c.resb = 45056
    N = nst(c)
    c.special = {N - 2: [("post", res_tail, 4 + n_tail(c))], N - 1: [("post", res_fin, 0)]}
    return c
def cfg_p2(**kw):
    return cfg_p24(name="p2", K=1024, lda=2048, ldb=2048, A=("ws", WS_O - 4096, (4 << 20) + 4096), ablk=32, W=("wo", 0, 2 << 20), O=("ws", WS_H, 4 << 20), oblk=True, R=("x", 0, 4 << 20), rblk=False, dostats=True, **kw)
def cfg_p4(**kw):
    return cfg_p24(name="p4", K=3584, lda=7168, ldb=2048, A=("ws", WS_H1 - 4096, 2048 * 7168 + 4096), ablk=112, W=("w2", 0, 3584 * 2048), O=("out", 0, 4 << 20), oblk=False, R=("ws", WS_H - 4096, (4 << 20) + 4096), rblk=True, dostats=False, **kw)

def keep_rows(a, d):
    a("s_lshl_b32 s%d, s%d, 1" % (d, S_WR)); a("s_add_u32 s%d, s%d, s%d" % (d, d, S_KH)); a("s_lshl_b32 s%d, s%d, 12" % (d, d))
def send_rows(a, d):
    keep_rows(a, d); a("s_xor_b32 s%d, s%d, 4096" % (d, d))
def cfg_p4s(**kw):
    d = dict(name="p4", K=1792, lda=7168, ldb=2048, A=("ws", WS_H1 - 4096, 2048 * 7168 + 4096), ablk=112, W=("w2", 0, 3584 * 2048), O=("out", 0, 4 << 20),
             oblk=False, R=("ws", WS_H - 4096, (4 << 20) + 4096), rblk=True, dostats=False, splitk=True,
             segw=[64, 64], col0=[0, 64], cstep=128, wc_bits=1, aregs=[keep_rows, send_rows], mblk=[(0, 0), (0, 16), (1, 0), (1, 16)],
             wregs=[(0, 1, 0, 0), (0, 1, 1, 0), (0, 1, 2, 0), (0, 1, 3, 0)], NS=4, sub=1, rpm=1, ramp=None, resb=131072, RA=124, RES=128, stampv=160, xsleep=0, pollfirst=False, samexcd=False, dramp=[10, 10, 10, 10],
             mf=[(mb, nb, False) for nb in range(4) for mb in range(4)])
    d.update(kw)
    return cfg_p24(**d)
def sentinel(a, c):
    srd(a, S_SRDP, "out", 0, 4 << 20)
    a("s_lshl_b32 s%d, s2, 2" % S_T0); a("s_add_u32 s%d, s%d, s%d" % (S_T0, S_T0, S_LW)); a("s_lshl_b32 s%d, s%d, 12" % (S_T0, S_T0))
    a("v_lshlrev_b32 v104, 4, v1")
    for r in range(108, 112): a("v_mov_b32 v%d, -1" % r)
    for i in range(4): a("buffer_store_dwordx4 v[108:111], v104, s[%d:%d], s%d offen offset:%d sc1" % (S_SRDP, S_SRDP + 3, S_T0, 1024 * i))

def pre_k3(a, c): srd(a, S_SRDO, *c.O)
def k3_cs(a, c):
    srd(a, S_SRDX, "ws", WS_CS1, 16 * 3584 * 4)
    if c.fused:
        cnt_poll(32)(a, c); a("s_waitcnt vmcnt(0)"); cnt_check(a)
    a("s_mul_i32 s44, s%d, 896" % S_NT); a("s_mul_i32 s45, s%d, 224" % S_LW)
    a("v_lshlrev_b32 v31, 2, v1"); a("s_and_b32 s%d, s%d, %d" % (S_T0, S_NT, 1 if c.oddalign else 0)); a("s_lshl_b32 s%d, s%d, 7" % (S_T0, S_T0)); a("s_add_u32 s%d, s%d, s45" % (S_T0, S_T0))
    a("v_add_u32 v30, s%d, v31" % S_T0); a("v_subrev_u32 v32, 896, v30"); a("v_min_u32 v30, v30, v32")
    for p in range(16):
        a("buffer_load_dword v%d, v30, s[%d:%d], s44 offen sc1" % (64 + p, S_SRDX, S_SRDX + 3))
        if p < 15: a("s_add_u32 s44, s44, %d" % (3584 * 4))
    a("s_add_u32 s45, s45, %d" % (auxbase(c) + c.aux[2])); a("v_add_u32 v31, s45, v31")
def k3_cs2(a, c):
    for st in (8, 4, 2, 1):
        for j in range(st): a("v_add_f32 v%d, v%d, v%d" % (64 + j, 64 + j, 64 + j + st))
    a("s_mov_b32 exec_hi, 0xffffff")
    a("ds_write_b32 v31, v64")
    a("s_mov_b32 exec_hi, -1")
def k3_stats(a, c):
    srd(a, S_SRDY, "ws", WS_STATS, 16 * 2048 * 8)
    a("v_and_b32 v28, 31, v1"); a("v_lshlrev_b32 v29, 3, v28"); a("v_lshrrev_b32 v30, 5, v1"); a("v_lshl_add_u32 v29, v30, 17, v29")
    a("s_lshl_b32 s44, s%d, 10" % S_MT); a("s_lshl_b32 s%d, s%d, 8" % (S_T0, S_LW)); a("s_add_u32 s44, s44, s%d" % S_T0)
    for j in range(8):
        a("buffer_load_dwordx2 %s, v29, s[%d:%d], s44 offen sc1" % (pk(48 + 2 * j), S_SRDY, S_SRDY + 3))
        if j < 7: a("s_add_u32 s44, s44, 16384")
def k3_fin(a, c):
    for st in (8, 4, 2):
        for j in range(st): a("v_add_f32 v%d, v%d, v%d" % (48 + j, 48 + j, 48 + j + st))
    a("s_lshl_b32 s%d, s%d, 7" % (S_T0, S_LW)); a("s_add_u32 s%d, s%d, %d" % (S_T0, S_T0, auxbase(c)))
    a("v_mov_b32 v50, v48"); a("v_mov_b32 v51, v49")
    a("v_lshlrev_b32 v28, 2, v28"); a("v_add_u32 v28, s%d, v28" % S_T0)
    a("v_permlane32_swap_b32 v48, v50"); a("v_permlane32_swap_b32 v49, v51"); a("s_nop 0")
    a("v_add_f32 v48, v48, v50"); a("v_add_f32 v49, v49, v51")
    finish_stats(a, 48, 49, 50)
    a("ds_write_b32 v28, v49 offset:%d" % c.aux[1]); a("ds_write_b32 v28, v48 offset:%d" % c.aux[0])
def lgkm0(a, c): a("s_waitcnt lgkmcnt(0)")
S_FLG = 43
def epi_k3(a, c, half=0):
    base = auxbase(c); AUX_A, AUX_NM, AUX_CS = c.aux
    AB = 128; CS = 136; E = 8
    alljobs = [(m, q) for q in range(4) for m in range(4) if q < 3 or m < 2]
    mine = alljobs
    if c.share:
        theirs = [(3, 0), (3, 1), (3, 2), (2, 0), (2, 1), (2, 2), (1, 3)][:c.share]
        mine = theirs if half else [j for j in alljobs if j not in theirs]
        W = S_LW if half else S_WAVE
        if half:
            a("s_lshr_b32 s%d, s%d, 1" % (S_WR, S_LW)); a("s_and_b32 s%d, s%d, 1" % (S_WC, S_LW)); srd(a, S_SRDO, *c.O)
        a("s_mul_i32 s%d, s%d, 24576" % (S_T0, W)); a("v_lshlrev_b32 v9, 4, v1"); a("v_add_u32 v9, s%d, v9" % S_T0)
        blocks = [acc_of(c, m, 2 * q + e) for (m, q) in theirs for e in range(2)]
        if not half:
            for i, x in enumerate(blocks): a("ds_write_b128 v9, v[%d:%d] offset:%d" % (x, x + 3, 1024 * i))
    a("v_and_b32 v2, 15, v1"); a("v_lshrrev_b32 v3, 4, v1")
    a("s_lshl_b32 s%d, s%d, 1" % (S_T0, S_WR)); a("s_add_u32 s%d, s%d, s%d" % (S_T0, S_T0, S_WC))
    a("s_lshl_b32 s%d, s%d, 7" % (S_T1, S_T0)); a("s_add_u32 s%d, s%d, %d" % (S_T1, S_T1, base))
    a("v_lshlrev_b32 v4, 2, v2"); a("v_add_u32 v4, s%d, v4" % S_T1); a("v_xor_b32 v10, 128, v4")
    a("v_lshlrev_b32 v5, 4, v3"); a("v_add_u32 v5, %d, v5" % (base + AUX_CS))
    a("s_lshl_b32 s%d, s%d, 8" % (S_T1, S_WC)); a("v_add_u32 v6, s%d, v5" % S_T1)
    a("s_lshl_b32 s%d, s%d, 7" % (S_T1, S_WC)); a("v_add_u32 v7, s%d, v5" % S_T1)
    ms = sorted(set(m for m, q in mine)); qs = sorted(set(q for m, q in mine))
    for m in ms: a("ds_read2_b32 %s, v%d offset0:%d offset1:%d" % (pk(AB + 2 * m), 4 if m < 2 else 10, AUX_A // 4 + 16 * (m & 1), AUX_NM // 4 + 16 * (m & 1)))
    for t in range(8):
        v, off = (6, 64 * t) if t < 4 else ((7, 512 + 64 * (t - 4)) if t < 6 else (5, 768 + 64 * (t - 6)))
        a("ds_read_b128 v[%d:%d], v%d offset:%d" % (CS + 4 * t, CS + 4 * t + 3, v, off))
    nrd = len(ms) + 8
    if c.share and not half:
        a("s_waitcnt lgkmcnt(%d)" % nrd); a("s_barrier")
    a("v_lshlrev_b32 v5, 6, v2"); a("v_lshl_add_u32 v5, v3, 4, v5"); a("s_lshl_b32 s%d, s%d, 11" % (S_T0, S_T0)); a("v_add_u32 v5, s%d, v5" % S_T0); a("v_xor_b32 v6, 0x800, v5")
    a("s_mul_i32 s%d, s%d, 112" % (S_T0, S_MT)); a("s_mul_i32 s%d, s%d, 7" % (S_T1, S_NT)); a("s_add_u32 s%d, s%d, s%d" % (S_T0, S_T0, S_T1))
    a("s_add_u32 s67, s%d, 6" % S_T0)
    if c.oddalign:
        a("s_bitcmp1_b32 s%d, 0" % S_NT); a("s_cselect_b32 s67, s%d, s67" % S_T0); a("s_addc_u32 s%d, s%d, 0" % (S_T0, S_T0))
    a("s_add_u32 s66, s%d, s%d" % (S_T0, S_WC)); a("s_add_u32 s64, s66, s%d" % S_WC); a("s_add_u32 s66, s66, 4"); a("s_add_u32 s65, s64, 1")
    for q in range(4): a("s_lshl_b32 s%d, s%d, 13" % (64 + q, 64 + q))
    a("s_mov_b32 s68, 0x%x" % f2u(-LOG2E)); a("s_mov_b32 s69, s68")
    if c.share and half:
        a("s_barrier")
        for i, x in enumerate(blocks): a("ds_read_b128 v[%d:%d], v9 offset:%d" % (x, x + 3, 1024 * i))
    pend = None
    for i, (m, q) in enumerate(mine):
        if c.share and half: a("s_waitcnt lgkmcnt(%d)" % (len(blocks) - 2 * i - 2))
        elif i == 0: a("s_waitcnt lgkmcnt(0)")
        prs = []
        for t in (2 * q, 2 * q + 1):
            x = acc_of(c, m, t)
            for p in range(2): prs.append((x + 2 * p, AB + 2 * m, CS + 4 * t + 2 * p))
        for (x, ab, cs) in prs: a("v_pk_fma_f32 %s, %s, %s, %s op_sel:[0,1,0] op_sel_hi:[1,1,1]" % (pk(x), pk(cs), pk(ab), pk(x)))
        if pend: pend()
        for (x, ab, cs) in prs: a("v_pk_mul_f32 %s, %s, %s op_sel_hi:[1,0]" % (pk(x), pk(x), pk(ab)))
        for j, (x, ab, cs) in enumerate(prs): a("v_pk_mul_f32 %s, %s, s[68:69]" % (pk(E + 2 * j), pk(x)))
        for j in range(8): a("v_exp_f32 v%d, v%d" % (E + j, E + j))
        for j in range(4): a("v_pk_add_f32 %s, %s, 1.0 op_sel_hi:[1,0]" % (pk(E + 2 * j), pk(E + 2 * j)))
        for j in range(8): a("v_rcp_f32 v%d, v%d" % (E + j, E + j))
        for j, (x, ab, cs) in enumerate(prs): a("v_pk_mul_f32 %s, %s, %s" % (pk(x), pk(x), pk(E + 2 * j)))
        t = prs[0][0]
        pack_pair(a, prs[0][0], prs[2][0], t)
        def fin(t=t, m=m, q=q):
            swap_pair(a, t)
            if c.thr is not None: a("s_waitcnt vmcnt(%d)" % c.thr)
            a("buffer_store_dwordx4 v[%d:%d], v%d, s[%d:%d], s%d offen offset:%d %s" % (t, t + 3, 5 if m < 2 else 6, S_SRDO, S_SRDO + 3, 64 + q, 1024 * (m & 1), c.stfl))
        pend = fin
        if c.eflag is not None and i == c.eflag:
            a("s_lshl_b32 s69, s%d, 4" % S_MT); a("s_add_u32 s69, s69, s%d" % S_NT); a("s_lshl_b32 s69, s69, 2"); a("s_add_u32 s69, s69, s%d" % S_WAVE); a("s_lshl_b32 s%d, s69, 2" % S_FLG)
            a("s_mov_b32 s69, s68")
            a("s_waitcnt vmcnt(%d)" % (i - 8))
            wave_flag(a, 3, S_FLG, 2)
    a("s_nop 1"); pend()
    if half:
        a("v_lshrrev_b32 v2, 3, v1"); a("v_and_b32 v3, 7, v1"); a("v_lshrrev_b32 v4, 4, v1")

def pw_setup(a, c):
    srd(a, S_SRDO, *c.O)
    a("s_mul_i32 s46, s%d, 112" % S_MT); a("s_mul_i32 s%d, s%d, 7" % (S_T1, S_NT)); a("s_add_u32 s46, s46, s%d" % S_T1); a("s_lshl_b32 s46, s46, 13")
    a("s_mul_i32 s%d, s%d, 14336" % (S_T1, S_LW)); a("s_add_u32 s46, s46, s%d" % S_T1)
    a("v_lshlrev_b32 v104, 4, v1")
    for r in range(108, 112): a("v_mov_b32 v%d, 0" % r)
def pw_step(a, c):
    a("buffer_store_dwordx4 v[108:111], v104, s[%d:%d], s46 offen sc1" % (S_SRDO, S_SRDO + 3)); a("s_add_u32 s46, s46, 1024")
def pw_fin(a, c): a("s_waitcnt vmcnt(%d)" % n_tail(c))
def slow4(h):
    def f(a, c):
        srd(a, S_SRDP, "w2", 0, 7 << 20)
        a("s_lshr_b32 s%d, s2, 3" % S_T0); a("s_lshl_b32 s%d, s%d, 2" % (S_T0, S_T0)); a("s_add_u32 s%d, s%d, s%d" % (S_T0, S_T0, S_LW)); a("s_mul_i32 s%d, s%d, 7" % (S_T0, S_T0))
        a("s_and_b32 s%d, s2, 1" % S_T1); a("s_mul_i32 s%d, s%d, 1792" % (S_T1, S_T1)); a("s_add_u32 s%d, s%d, s%d" % (S_T0, S_T0, S_T1))
        a("s_lshl_b32 s%d, s%d, 11" % (S_T0, S_T0)); a("s_add_u32 s%d, s%d, %d" % (S_T0, S_T0, h * 896 * 2048 + 384))
        a("v_min_u32 v102, 13, v1"); a("v_lshlrev_b32 v102, 10, v102")
        a("buffer_load_dword v103, v102, s[%d:%d], s%d offen" % (S_SRDP, S_SRDP + 3, S_T0))
    return f
def rows_p3(flip):
    def f(a, d):
        a("s_lshl_b32 s%d, s%d, 1" % (d, S_WR)); a("s_add_u32 s%d, s%d, s%d" % (d, d, S_WC))
        if flip: a("s_xor_b32 s%d, s%d, 1" % (d, d))
        a("s_lshl_b32 s%d, s%d, 12" % (d, d))
    return f
def cfg_p3(**kw):
    c = Cfg(name="p3", K=1024, lda=2048, ldb=7168, A=("ws", WS_H - 4096, (4 << 20) + 4096), ablk=32, W=("w1", 0, 1024 * 7168), O=("ws", WS_H1, 2048 * 7168),
            segw=[64, 64, 64, 32], col0=[0, 64, 128, 192], cstep=224, wc_bits=1,
            aregs=[rows_p3(0), rows_p3(1)], mblk=[(0, 0), (0, 16), (1, 0), (1, 16)],
            wregs=[(0, 1, 0, 0), (0, 1, 1, 0), (0, 1, 2, 0), (0, 1, 3, 0), (2, 0, 0, 2), (2, 0, 1, 2), (3, 0, 0, 0), (3, 0, 1, 0)],
            nblk=[(0, 0, 128), (1, 0, 128), (2, 0, 128), (3, 0, 128), (4, 0, 128), (5, 0, 128), (6, 0, 64), (7, 0, 64)],
            xa=8, xb=4, NS=3, order="class", aux=(0, 512, 1024), stampv=148,
            tail_pf=[("w2", 7 << 20)], codepf=[], ramp=[19, 11, 12, 12, 12], share=0, oddalign=True, eflag=None, tstep=13, pw=False, thr=None)
    c.mf = [(mb, nb, False) for nb in range(6) for mb in range(4)] + [(mb, nb, False) for nb in (6, 7) for mb in range(2)]
    c.compute_pre = pre_k3; c.epilogue = epi_k3
    c.__dict__.update(kw)
    if c.share:
        c.own_xbar = True; c.loader_share = lambda a, c: epi_k3(a, c, 1)
    c.special = {-1: [("post", k3_stats, 8)], c.tstep: [("post", tail_pf, n_tail(c))]}
    c.special.setdefault(14, [])
    c.special[14] += [("post", k3_fin, 0), ("post", k3_cs2, 0), ("post", lgkm0, 0)]
    if c.pw:
        c.special[-1].append(("post", pw_setup, 0)); c.every = (pw_step, 1); c.special.setdefault(15, []).append(("post", pw_fin, 0))
    if c.fused: c.loader_wait = k3_cs
    else: c.special[-1].append(("post", k3_cs, 16))
    return c

KNAME = "sequential_preLN__sliding_local_dilated__dense_activation_silu__prompt_kernel"
def multi(path, stamps=False, all={}, p1={}, p2={}, p3={}, p4={}):
    d = dict(stamps=stamps); d.update(all)
    cp = lambda s, e: [(s, e, 100, 16384)]
    c1 = cfg_p1(kidx=0, **{**d, "codepf": cp("p1_epi", "k2_kernel_last"), **p1}); c2 = cfg_p2(kidx=1, **{**d, "codepf": cp("p2_epi", "k3_kernel_last"), **p2})
    c3 = cfg_p3(kidx=2, **{**d, "codepf": cp("p3_epi", "k4_kernel_last"), **p3}); c4 = cfg_p4(kidx=3, **{**d, **p4})
    c1.loader_post = k1_post_f(auxbase(c1), n_tail)
    ks = [("k1_kernel", emit_kernel("k1_kernel", [c1]), 256, 168, 163840), ("k2_kernel", emit_kernel("k2_kernel", [c2]), 256, 168, 163840),
          ("k3_kernel", emit_kernel("k3_kernel", [c3]), 256, 168, auxbase(c3) + 2048), ("k4_kernel", emit_kernel("k4_kernel", [c4]), 256, 168, 163840)]
    build(ks, path)

def prewrite(a, c):
    for (off, nb) in c.prew:
        srd(a, S_SRDP, "ws" if off >= 0 else "out", max(off, 0), nb)
        per = nb // 1024
        a("s_lshl_b32 s%d, s2, 2" % S_T0); a("s_add_u32 s%d, s%d, s%d" % (S_T0, S_T0, S_LW)); a("s_mul_i32 s%d, s%d, %d" % (S_T0, S_T0, per))
        a("v_lshlrev_b32 v104, 4, v1")
        for r in range(108, 112): a("v_mov_b32 v%d, 0" % r)
        for i in range(per // 1024):
            a("buffer_store_dwordx4 v[108:111], v104, s[%d:%d], s%d offen sc1" % (S_SRDP, S_SRDP + 3, S_T0))
            a("s_add_u32 s%d, s%d, 1024" % (S_T0, S_T0))

def fused(path, stamps=False, all={}, p1={}, p2={}, p3={}, p4={}, nocode=False, prew=False, splitk=False, early=None, w2seam=False, slow4t=None, wbl2=None):
    d = dict(stamps=stamps, fused=True, xbar=True); d.update(all)
    if nocode:
        p1 = dict(p1, codepf=[]); p2 = dict(p2, codepf=[]); p3 = dict(p3, codepf=[])
    c1 = cfg_p1(kidx=0, sig=0, **{**d, "codepf": [("p1_epi", "p3_c", 100, 8192), ("p1_l", "p3_l", 100, 16384)], **p1})
    c2 = cfg_p2(kidx=1, sig=1, fla="sc1", **{**d, "codepf": [("p2_epi", "p4_c", 100, 8192), ("p2_l", "p4_l", 100, 8192)], **p2})
    if w2seam: p3 = dict(p3, tail_pf=[])
    c3 = cfg_p3(kidx=2, sig=2, fla="sc1", **{**d, "codepf": [("p3_epi", KNAME + "_loader", 100, 8192), ("p3_l", KNAME + "_last", 100, 8192)], **p3})
    c4 = (cfg_p4s if splitk else cfg_p4)(kidx=3, flr="sc1", **{**d, "fla": "sc1", "xbar": False, **p4})
    if w2seam:
        k3w = c3.loader_wait
        def lw3(a, c):
            flat_touch(a, c, "w2", 7 << 20, 98); k3w(a, c)
        c3.loader_wait = lw3
    if slow4t is not None:
        c3.special[15] = [("post", slow4(0), 1)]
        c4.special[slow4t] = [("post", slow4(1), 1)]
    if wbl2 is not None:
        def wb(a, c):
            L = a.newlabel("Lwb")
            a("s_lshr_b32 s%d, s2, 3" % S_T0); a("s_or_b32 s%d, s%d, s%d" % (S_T0, S_T0, S_WAVE)); a("s_cmp_lg_u32 s%d, 0" % S_T0); a("s_cbranch_scc1 %s" % L)
            a("buffer_wbl2 sc1")
            a.label(L)
        c4.flagiter = (28 - wbl2, wb)
    c2.dep = lambda a, c: seam_wait(a, c, c1, 0)
    c3.dep = lambda a, c, part=3: seam_wait(a, c, c2, 1, part)
    c4.dep = lambda a, c, part=3: seam_wait(a, c, c3, 2, part)
    if early is not None:
        c3.eflag = early; c4.early = True; c4.ldsflag = 140000; c4.dep = early_wait
        def clr(a, c):
            a("v_mov_b32 v113, 140000"); a("v_mov_b32 v111, 0"); a("ds_write_b32 v113, v111")
        c3.special[14].insert(1, ("post", clr, 0))
        def fb(a, c):
            a("s_waitcnt vmcnt(0)"); wave_flag(a, 2, S_FLG, 12); a("s_nop 3")
        c4.flagiter = (28 - 1, fb)
        c4.special[6] = [("pre", late_poll, 1)]; c4.special[9] = [("pre", late_check, 0)]
    c2.loader_wait = k1_post_f(auxbase(c1), lambda c: 2 * c.wres if c.wres else 2 * 4)
    if splitk:
        k1q = c2.loader_wait
        def lw2(a, c):
            k1q(a, c); sentinel(a, c)
        c2.loader_wait = lw2
    if prew:
        k1p = c2.loader_wait
        c2.prew = [(WS_H1, 14 << 20)]
        def lw(a, c):
            k1p(a, c); prewrite(a, c)
        c2.loader_wait = lw
    c2.special.setdefault(5 if c2.sub == 1 else 2, []).append(("post", lw0_cnt(32), 0))
    if c3.share: c4.loader_wait = lambda a, c: a("s_waitcnt vmcnt(8)")
    build([(KNAME, emit_kernel(KNAME, [c1, c2, c3, c4]), 256, 168, 163840)], path)
```

```python
from k11 import *
P2 = dict(wres=8, NS=3, ramp=[16, 8], permoff=0)
for st in (True, False):
    x = "s" if st else ""
    fused("f50_a%s.s" % x, stamps=st, p1=dict(order="class", peel=4, slowt=1), p2=P2, p3=dict(xa=4, xb=8), p4=dict(stfl="sc1", wlate=True), splitk=True, nocode=not st)
    fused("f50_nt%s.s" % x, stamps=st, p1=dict(order="class", peel=4, slowt=1), p2=P2, p3=dict(xa=4, xb=8), p4=dict(stfl="nt", wlate=True), splitk=True, nocode=not st)
```
